```python
import torch

def _softmax(x, axis=-1):
    return torch.softmax(x, dim=axis)
def _gelu(x):
    return torch.nn.functional.gelu(x, approximate="tanh")
def _silu(x):
    return torch.nn.functional.silu(x)
def _sigmoid(x):
    return torch.sigmoid(x)
def _layernorm(x, axis=-1, eps=1e-5):
    m = x.mean(dim=axis, keepdim=True)
    v = x.var(dim=axis, keepdim=True, unbiased=False)
    return (x - m) / torch.sqrt(v + eps)
def _scatter_add(tgt, idx, src, axis=0):
    return tgt.clone().index_add_(axis, idx, src)
def _segment_sum(src, seg, n):
    out = torch.zeros((n,) + src.shape[1:], dtype=src.dtype)
    return out.index_add_(0, seg, src)
def _pad(x, pw):
    flat = tuple(v for pair in reversed(pw) for v in pair)
    return torch.nn.functional.pad(x, flat)

kernel_name = 'standalone__mha_block_cached__near_ridge'

def setup_inputs():

    _w = (lambda a: (lambda t: t.to(torch.bfloat16) if t.is_floating_point() else t)(torch.as_tensor(a)))
    B, Sq, D = 16, 48, 640
    H, Sk, Dh = 32, 48, 128
    return {
        "x": _w((lambda *s: torch.randn(*s, dtype=torch.bfloat16) * 0.8)(B, Sq, D)),
        "k_cache": _w((lambda *s: torch.randn(*s, dtype=torch.bfloat16) * 0.8)(B, H, Sk, Dh)),
        "v_cache": _w((lambda *s: torch.randn(*s, dtype=torch.bfloat16) * 0.05)(B, H, Sk, Dh)),
        "wq": _w((lambda *s: torch.randn(*s, dtype=torch.bfloat16) * 0.8)(D, H * Dh) * (D ** -0.5)),
        "wo": _w((lambda *s: torch.randn(*s, dtype=torch.bfloat16) * 0.05)(H * Dh, D) * ((H * Dh) ** -0.5)),
    }

def reference(x, k_cache, v_cache, wq, wo):
    B, Sq, D = x.shape
    H, Dh = 32, 128
    q = (lambda x, *d: x.permute(*d))((x @ wq).reshape(B, Sq, H, Dh), 0, 2, 1, 3)
    scores = torch.einsum("bhqd,bhkd->bhqk", q, k_cache) * (Dh ** -0.5)
    p = _softmax(scores, axis=-1)
    o = torch.einsum("bhqk,bhkd->bhqd", p, v_cache)
    return (lambda x, *d: x.permute(*d))(o, 0, 2, 1, 3).reshape(B, Sq, H * Dh) @ wo
```

```python
import sys

class Asm:
    def __init__(self):
        self.l = []
    def __call__(self, s):
        for ln in s.strip("\n").split("\n"):
            self.l.append("    " + ln.strip() if not ln.strip().endswith(":") else ln.strip())
    def raw(self, s):
        self.l.append(s)
    def text(self):
        return "\n".join(self.l) + "\n"

def vr(b, n):
    return f"v[{b}:{b+n-1}]" if n > 1 else f"v{b}"

HDR = """; Kernarg layout for this problem (64 bytes, ptrs only, base s[0:1]):
"""

X_BYTES = 16*48*640*2
KV_BYTES = 16*32*48*128*2
W_BYTES = 640*4096*2
O_BYTES = 768*4096*2

def kd(name, nv, ns, acc=None):
    acc = acc or ((nv + 3)//4*4)
    return f""".amdhsa_kernel {name}
  .amdhsa_next_free_vgpr {nv}
  .amdhsa_next_free_sgpr {ns}
  .amdhsa_accum_offset {acc}
  .amdhsa_group_segment_fixed_size 0
  .amdhsa_kernarg_size 64
  .amdhsa_user_sgpr_count 2
  .amdhsa_user_sgpr_kernarg_segment_ptr 1
  .amdhsa_system_sgpr_workgroup_id_x 1
.end_amdhsa_kernel
"""

def srd(a, d, p, nbytes):
    a(f"""s_mov_b32 s{d}, s{p}
    s_and_b32 s{d+1}, s{p+1}, 0xffff
    s_mov_b32 s{d+2}, {nbytes}
    s_mov_b32 s{d+3}, 0x20000""")

def gen_k1(a):
    SLOT = 28672
    NSLOT = 4
    VBASE = SLOT*NSLOT
    sX, sK, sV, sW, sO = 8, 12, 16, 20, 24
    sH, sP, sWv, sB, sDH = 28, 29, 30, 31, 32
    sT0, sT1, sT2 = 33, 34, 35
    sXM0, sWM0 = 36, 37
    sC = 38
    vL, vG, vC = 1, 2, 3
    vXo, vW0, vW1 = 4, 5, 6
    vRX = 7
    vRA = 8
    vT = 12
    vKo = 20; vVo = 21; vOo = 22; vRV = 23
    vRV = 24
    vEx = 28
    ACC = 32
    FA = [80, 108]
    KF = 136
    SA = 160
    SB = 196
    PF = 232
    QF = 80; VF = 104
    def acc(tt, i): return ACC + (tt*3 + i)*4
    a("s_cmp_ge_u32 s2, 256")
    a("s_cbranch_scc1 L_k1_end")
    a(f"""s_load_dwordx4 s[40:43], s[0:1], 0
    s_load_dwordx4 s[44:47], s[0:1], 16
    s_load_dwordx2 s[48:49], s[0:1], 56
    v_and_b32 v{vL}, 63, v0
    v_lshrrev_b32 v{vT}, 6, v0
    v_lshrrev_b32 v{vG}, 4, v{vL}
    v_readfirstlane_b32 s{sWv}, v{vT}
    v_and_b32 v{vC}, 15, v{vL}
    s_and_b32 s{sT0}, s2, 7
    s_lshl_b32 s{sT0}, s{sT0}, 2
    s_lshr_b32 s{sT1}, s2, 3
    s_and_b32 s{sT1}, s{sT1}, 3
    s_add_u32 s{sH}, s{sT0}, s{sT1}
    s_lshr_b32 s{sP}, s2, 5
    s_lshr_b32 s{sB}, s{sWv}, 1
    s_and_b32 s{sDH}, s{sWv}, 1""")
    a(f"""s_mul_i32 s{sT0}, s{sP}, 96
    s_mul_i32 s{sT1}, s{sDH}, 48
    s_add_u32 s{sT0}, s{sT0}, s{sT1}
    s_mul_i32 s{sT0}, s{sT0}, 1280
    s_lshl_b32 s{sT1}, s{sB}, 6
    s_add_u32 s{sT0}, s{sT0}, s{sT1}
    v_mul_u32_u24 v{vXo}, 1280, v{vC}
    v_lshl_add_u32 v{vXo}, v{vG}, 4, v{vXo}
    v_add_u32 v{vXo}, s{sT0}, v{vXo}""")
    a(f"""s_lshl_b32 s{sT0}, s{sWv}, 17
    s_lshl_b32 s{sT1}, s{sH}, 8
    s_add_u32 s{sT0}, s{sT0}, s{sT1}
    v_lshlrev_b32 v{vT}, 1, v{vG}
    v_xor_b32 v{vT}, v{vT}, v{vC}
    v_lshlrev_b32 v{vT}, 4, v{vT}
    v_lshl_add_u32 v{vW0}, v{vG}, 13, v{vT}
    v_add_u32 v{vW0}, s{sT0}, v{vW0}
    v_xor_b32 v{vW1}, 0x80, v{vW0}""")
    a(f"""s_mul_i32 s{sXM0}, s{sWv}, 3072
    s_lshl_b32 s{sWM0}, s{sWv}, 12
    s_add_u32 s{sWM0}, s{sWM0}, 12288
    s_waitcnt lgkmcnt(0)""")
    srd(a, sX, 40, X_BYTES); srd(a, sK, 42, KV_BYTES); srd(a, sV, 44, KV_BYTES); srd(a, sW, 46, W_BYTES); srd(a, sO, 48, O_BYTES)

    def dma_step(kk):
        slot = (kk % NSLOT) * SLOT
        for i in range(3):
            a(f"""s_add_u32 m0, s{sXM0}, {slot + i*1024}
            s_mov_b32 s{sT0}, {kk*128 + i*20480}
            buffer_load_dwordx4 v{vXo}, s[{sX}:{sX+3}], s{sT0} offen lds""")
        for i in range(4):
            a(f"""s_add_u32 m0, s{sWM0}, {slot + i*1024}
            s_mov_b32 s{sT0}, {kk*64*8192 + i*4*8192}
            buffer_load_dwordx4 v{vW0 if i < 2 else vW1}, s[{sW}:{sW+3}], s{sT0} offen lds""")
    for kk in range(NSLOT):
        dma_step(kk)
    a(f"""s_lshl_b32 s{sT0}, s{sP}, 1
    s_add_u32 s{sT0}, s{sT0}, s{sB}
    s_lshl_b32 s{sT0}, s{sT0}, 5
    s_add_u32 s{sT0}, s{sT0}, s{sH}
    s_mul_i32 s{sT0}, s{sT0}, 12288
    s_lshl_b32 s{sT1}, s{sDH}, 7
    s_add_u32 s{sT0}, s{sT0}, s{sT1}
    v_lshlrev_b32 v{vKo}, 8, v{vC}
    v_lshl_add_u32 v{vKo}, v{vG}, 3, v{vKo}
    v_add_u32 v{vKo}, s{sT0}, v{vKo}""")
    for kt in range(3):
        a(f"s_mov_b32 s{sT1}, {kt*4096}")
        for T in range(2):
            for hf in range(2):
                r = KF + (kt*2 + T)*4 + hf*2
                a(f"buffer_load_dwordx2 {vr(r,2)}, v{vKo}, s[{sK}:{sK+3}], s{sT1} offen offset:{T*64 + hf*32}")
    a(f"""v_lshrrev_b32 v{vT}, 3, v{vL}
    v_and_b32 v{vT+1}, 7, v{vL}
    v_and_b32 v{vT+2}, 6, v{vT}
    v_xor_b32 v{vT+1}, v{vT+1}, v{vT+2}
    v_lshlrev_b32 v{vT+1}, 4, v{vT+1}
    v_lshl_add_u32 v{vVo}, v{vT}, 8, v{vT+1}
    v_add_u32 v{vVo}, s{sT0}, v{vVo}
    s_mul_i32 s{sT2}, s{sWv}, 6144""")
    for j in range(6):
        a(f"""s_add_u32 m0, s{sT2}, {VBASE + j*1024}
        s_mov_b32 s{sT1}, {j*2048}
        buffer_load_dwordx4 v{vVo}, s[{sV}:{sV+3}], s{sT1} offen lds""")
    a(f"""s_mul_i32 s{sT0}, s{sB}, 3072
    v_lshlrev_b32 v{vRX}, 4, v{vL}
    v_add_u32 v{vRX}, s{sT0}, v{vRX}""")
    a(f"""v_lshrrev_b32 v{vT}, 2, v{vC}
    v_lshl_add_u32 v{vT+1}, v{vG}, 3, v{vT}
    v_lshlrev_b32 v{vT+1}, 8, v{vT+1}
    v_and_b32 v{vT+2}, 1, v{vG}
    v_lshlrev_b32 v{vT+2}, 3, v{vT+2}
    v_lshl_add_u32 v{vT+2}, v{vT}, 1, v{vT+2}
    v_and_b32 v{vT+3}, 3, v{vC}
    v_lshlrev_b32 v{vT+3}, 3, v{vT+3}
    v_add_u32 v{vT+1}, v{vT+1}, v{vT+3}
    v_add_u32 v{vT+1}, 12288, v{vT+1}
    s_lshl_b32 s{sT0}, s{sDH}, 3""")
    for tt in range(4):
        a(f"""s_add_u32 s{sT1}, s{sT0}, {2*tt}
        v_xor_b32 v{vT+4}, s{sT1}, v{vT+2}
        v_lshl_add_u32 v{vRA+tt}, v{vT+4}, 4, v{vT+1}""")
    vRX2 = 29; vRA2 = 252
    a(f"v_add_u32 v{vRX2}, {2*SLOT}, v{vRX}")
    for tt in range(4):
        a(f"v_add_u32 v{vRA2+tt}, {2*SLOT}, v{vRA+tt}")

    def reads(kk, sub, fs):
        slot = kk % NSLOT
        rx = vRX if slot < 2 else vRX2
        ra = vRA if slot < 2 else vRA2
        so = (slot & 1) * SLOT
        F = FA[fs]
        for i in range(3):
            a(f"ds_read_b128 {vr(F+16+4*i,4)}, v{rx} offset:{so + sub*6144 + i*1024}")
        for tt in range(4):
            for r in range(2):
                a(f"ds_read_b64_tr_b16 {vr(F+4*tt+2*r,2)}, v{ra+tt} offset:{so + (32*sub + 4*r)*256}")
    def mfmas(fs, first):
        F = FA[fs]
        for tt in range(4):
            for i in range(3):
                c = "0" if first else vr(acc(tt,i),4)
                a(f"v_mfma_f32_16x16x32_bf16 {vr(acc(tt,i),4)}, {vr(F+4*tt,4)}, {vr(F+16+4*i,4)}, {c}")
    vm = [39,32,32,32,14,14,14,14,7,0]
    for kk in range(10):
        a(f"s_waitcnt vmcnt({vm[kk]}) lgkmcnt(0)")
        a("s_barrier")
        reads(kk, 0, 0)
        if kk >= 1 and kk + 3 <= 9:
            dma_step(kk + 3)
        if kk >= 1:
            mfmas(1, False)
        a("s_waitcnt lgkmcnt(0)")
        reads(kk, 1, 1)
        mfmas(0, kk == 0)
    a("s_waitcnt lgkmcnt(0)")
    mfmas(1, False)
    a(f"""v_lshrrev_b32 v{vT}, 2, v{vC}
    v_lshl_add_u32 v{vT}, v{vG}, 2, v{vT}
    v_and_b32 v{vT+2}, 6, v{vT}
    v_lshlrev_b32 v{vT+1}, 7, v{vT}
    v_and_b32 v{vT+3}, 3, v{vC}
    v_lshlrev_b32 v{vT+3}, 3, v{vT+3}
    v_add_u32 v{vT+1}, v{vT+1}, v{vT+3}
    s_add_u32 s{sT2}, s{sT2}, {VBASE}
    v_add_u32 v{vT+1}, s{sT2}, v{vT+1}""")
    for tt in range(4):
        a(f"""v_xor_b32 v{vT+4}, {2*tt}, v{vT+2}
        v_lshl_add_u32 v{vRV+tt}, v{vT+4}, 4, v{vT+1}""")
    a(f"""s_mul_i32 s{sT0}, s{sWv}, 9216
    s_add_u32 s{sT0}, s{sT0}, {2*SLOT}
    v_lshlrev_b32 v{vEx}, 4, v{vL}
    v_add_u32 v{vEx}, s{sT0}, v{vEx}
    s_xor_b32 s{sT1}, s{sWv}, 1
    s_mul_i32 s{sT1}, s{sT1}, 9216
    s_add_u32 s{sT1}, s{sT1}, {2*SLOT}
    v_lshlrev_b32 v{vT+5}, 4, v{vL}
    v_add_u32 v{vT+5}, s{sT1}, v{vT+5}
    s_nop 4""")
    for i in range(3):
        for T in range(2):
            for u in range(2):
                s = acc(2*T+u, i)
                d = QF + (i*2+T)*4 + 2*u
                a(f"v_cvt_pk_bf16_f32 v{d}, v{s}, v{s+1}")
                a(f"v_cvt_pk_bf16_f32 v{d+1}, v{s+2}, v{s+3}")
    for tt in range(4):
        for r in range(3):
            a(f"ds_read_b64_tr_b16 {vr(VF+tt*6+2*r,2)}, v{vRV+tt} offset:{r*2048}")
    a("s_nop 1")
    def sa(kt, i): return SA + (kt*3+i)*4
    def sb(kt, i): return SB + (kt*3+i)*4
    for T in range(2):
        for kt in range(3):
            for i in range(3):
                c = "0" if T == 0 else vr(sa(kt,i),4)
                a(f"v_mfma_f32_16x16x32_bf16 {vr(sa(kt,i),4)}, {vr(KF+(kt*2+T)*4,4)}, {vr(QF+(i*2+T)*4,4)}, {c}")
    a("s_nop 7")
    for j in range(9):
        a(f"ds_write_b128 v{vEx}, {vr(SA+4*j,4)} offset:{j*1024}")
    a("s_waitcnt lgkmcnt(0)")
    a("s_barrier")
    for j in range(9):
        a(f"ds_read_b128 {vr(SB+4*j,4)}, v{vT+5} offset:{j*1024}")
    import math
    c = (128 ** -0.5) * math.log2(math.e)
    import struct
    cbits = struct.unpack("<I", struct.pack("<f", c))[0]
    a(f"s_mov_b32 s{sC}, {cbits:#x}")
    a("s_waitcnt lgkmcnt(0)")
    for j in range(36):
        a(f"v_add_f32 v{SA+j}, v{SA+j}, v{SB+j}")
    M = SB; M2 = SB+4; L = SB+8; L2 = SB+12
    for i in range(3):
        vals = [sa(kt,i)+r for kt in range(3) for r in range(4)]
        a(f"v_max3_f32 v{M+i}, v{vals[0]}, v{vals[1]}, v{vals[2]}")
        for j in range(3, 11, 2):
            a(f"v_max3_f32 v{M+i}, v{M+i}, v{vals[j]}, v{vals[j+1]}")
        a(f"v_max_f32 v{M+i}, v{M+i}, v{vals[11]}")
    for sw in ("v_permlane32_swap_b32", "v_permlane16_swap_b32"):
        for i in range(3):
            a(f"v_mov_b32 v{M2+i}, v{M+i}")
        a("s_nop 1")
        for i in range(3):
            a(f"{sw} v{M+i}, v{M2+i}")
        a("s_nop 1")
        for i in range(3):
            a(f"v_max_f32 v{M+i}, v{M+i}, v{M2+i}")
    for i in range(3):
        a(f"v_mul_f32 v{M+i}, s{sC}, v{M+i}")
    for i in range(3):
        vals = [sa(kt,i)+r for kt in range(3) for r in range(4)]
        for v in vals:
            a(f"v_fma_f32 v{v}, v{v}, s{sC}, -v{M+i}")
        for v in vals:
            a(f"v_exp_f32 v{v}, v{v}")
    a("s_nop 0")
    for i in range(3):
        vals = [sa(kt,i)+r for kt in range(3) for r in range(4)]
        a(f"v_add_f32 v{L+i}, v{vals[0]}, v{vals[1]}")
        for v in vals[2:]:
            a(f"v_add_f32 v{L+i}, v{L+i}, v{v}")
    for sw in ("v_permlane32_swap_b32", "v_permlane16_swap_b32"):
        for i in range(3):
            a(f"v_mov_b32 v{L2+i}, v{L+i}")
        a("s_nop 1")
        for i in range(3):
            a(f"{sw} v{L+i}, v{L2+i}")
        a("s_nop 1")
        for i in range(3):
            a(f"v_add_f32 v{L+i}, v{L+i}, v{L2+i}")
    for i in range(3):
        a(f"v_rcp_f32 v{L+i}, v{L+i}")
    a("s_nop 0")
    for i in range(3):
        vals = [sa(kt,i)+r for kt in range(3) for r in range(4)]
        for v in vals:
            a(f"v_mul_f32 v{v}, v{v}, v{L+i}")
        for kt in range(3):
            s = sa(kt,i)
            a(f"v_cvt_pk_bf16_f32 v{PF+i*6+2*kt}, v{s}, v{s+1}")
            a(f"v_cvt_pk_bf16_f32 v{PF+i*6+2*kt+1}, v{s+2}, v{s+3}")
    a("s_nop 1")
    for tt in range(4):
        for i in range(3):
            a(f"v_mfma_f32_16x16x32_bf16 {vr(acc(tt,i),4)}, {vr(VF+tt*6,4)}, {vr(PF+i*6,4)}, 0")
    for tt in range(4):
        for i in range(3):
            a(f"v_mfma_f32_16x16x16_bf16 {vr(acc(tt,i),4)}, {vr(VF+tt*6+4,2)}, {vr(PF+i*6+4,2)}, {vr(acc(tt,i),4)}")
    a(f"""s_mul_i32 s{sT0}, s{sP}, 6
    s_mul_i32 s{sT1}, s{sB}, 3
    s_add_u32 s{sT0}, s{sT0}, s{sT1}
    s_lshl_b32 s{sT0}, s{sT0}, 7
    s_lshl_b32 s{sT1}, s{sH}, 2
    s_add_u32 s{sT0}, s{sT0}, s{sT1}
    s_lshl_b32 s{sT1}, s{sDH}, 1
    s_add_u32 s{sT0}, s{sT0}, s{sT1}
    s_lshl_b32 s{sT0}, s{sT0}, 10
    v_lshlrev_b32 v{vOo}, 4, v{vL}
    v_add_u32 v{vOo}, s{sT0}, v{vOo}
    s_nop 7""")
    for i in range(3):
        a(f"s_mov_b32 s{sT1}, {i*128*1024}")
        for T in range(2):
            d = QF + (i*2+T)*4
            for u in range(2):
                s = acc(2*T+u, i)
                a(f"v_cvt_pk_bf16_f32 v{d+2*u}, v{s}, v{s+1}")
                a(f"v_cvt_pk_bf16_f32 v{d+2*u+1}, v{s+2}, v{s+3}")
            a(f"buffer_store_dwordx4 {vr(d,4)}, v{vOo}, s[{sO}:{sO+3}], s{sT1} offen offset:{T*1024}")
    a("L_k1_end:")
    a("s_endpgm")
    return VBASE + 4*6144

def gen_k2(a):
    NS = 10
    sW, sO, sY = 8, 12, 16
    sWv, sQP, sNT, sT0, sT1, sT2, sM0 = 20, 21, 22, 23, 24, 25, 26
    sWoff, sOoff = 27, 28
    vL, vG, vC = 1, 2, 3
    vWo, vOo = 4, 5
    vRA = 8
    vT = 12
    ACC = 32
    AF = [64, 80]
    OF = 96
    def acc(tt, i): return ACC + (tt*2+i)*4
    a("s_cmp_ge_u32 s2, 240")
    a("s_cbranch_scc1 L_k2_end")
    a(f"""s_load_dwordx4 s[40:43], s[0:1], 32
    s_load_dwordx2 s[48:49], s[0:1], 56
    v_and_b32 v{vL}, 63, v0
    v_lshrrev_b32 v{vT}, 6, v0
    v_lshrrev_b32 v{vG}, 4, v{vL}
    v_readfirstlane_b32 s{sWv}, v{vT}
    v_and_b32 v{vC}, 15, v{vL}
    s_and_b32 s{sT0}, s2, 7
    s_lshr_b32 s{sT1}, s2, 3
    s_mul_i32 s{sT2}, s{sT1}, 52
    s_lshr_b32 s{sT2}, s{sT2}, 8
    s_mul_i32 s{sNT}, s{sT2}, 5
    s_sub_u32 s{sNT}, s{sT1}, s{sNT}
    s_lshr_b32 s{sQP}, s{sT0}, 1
    s_mul_i32 s{sQP}, s{sQP}, 6
    s_add_u32 s{sQP}, s{sQP}, s{sT2}
    s_and_b32 s{sT0}, s{sT0}, 1
    s_mul_i32 s{sT0}, s{sT0}, 5
    s_add_u32 s{sNT}, s{sNT}, s{sT0}""")
    a(f"""v_lshrrev_b32 v{vT}, 3, v{vL}
    v_and_b32 v{vT+1}, 7, v{vL}
    v_and_b32 v{vT+2}, 6, v{vT}
    v_xor_b32 v{vT+1}, v{vT+1}, v{vT+2}
    v_lshlrev_b32 v{vT+1}, 4, v{vT+1}
    v_mul_u32_u24 v{vWo}, 1280, v{vT}
    v_add_u32 v{vWo}, v{vWo}, v{vT+1}
    s_mul_i32 s{sT0}, s{sWv}, {1024*1280}
    s_lshl_b32 s{sT1}, s{sNT}, 7
    s_add_u32 s{sT0}, s{sT0}, s{sT1}
    v_add_u32 v{vWo}, s{sT0}, v{vWo}""")
    a(f"""s_lshl_b32 s{sT0}, s{sQP}, 8
    s_lshl_b32 s{sT1}, s{sWv}, 5
    s_add_u32 s{sT0}, s{sT0}, s{sT1}
    s_lshl_b32 s{sT0}, s{sT0}, 10
    v_lshlrev_b32 v{vOo}, 4, v{vL}
    v_add_u32 v{vOo}, s{sT0}, v{vOo}
    s_mul_i32 s{sM0}, s{sWv}, {NS*4096}
    s_waitcnt lgkmcnt(0)""")
    srd(a, sW, 40, W_BYTES); srd(a, sY, 42, X_BYTES); srd(a, sO, 48, O_BYTES)
    def issue(ks):
        slot = ks % NS
        for j in range(4):
            a(f"""s_add_u32 m0, s{sM0}, {slot*4096 + j*1024}
            s_mov_b32 s{sT0}, {(ks*32 + j*8)*1280}
            buffer_load_dwordx4 v{vWo}, s[{sW}:{sW+3}], s{sT0} offen lds""")
        for i in range(2):
            a(f"""s_mov_b32 s{sT0}, {ks*1024 + i*128*1024}
            buffer_load_dwordx4 {vr(OF+slot*8+4*i,4)}, v{vOo}, s[{sO}:{sO+3}], s{sT0} offen""")
    for ks in range(NS):
        issue(ks)
    a(f"""v_lshrrev_b32 v{vT}, 2, v{vC}
    v_lshl_add_u32 v{vT}, v{vG}, 2, v{vT}
    v_and_b32 v{vT+2}, 6, v{vT}
    v_lshlrev_b32 v{vT+1}, 7, v{vT}
    v_and_b32 v{vT+3}, 3, v{vC}
    v_lshlrev_b32 v{vT+3}, 3, v{vT+3}
    v_add_u32 v{vT+1}, v{vT+1}, v{vT+3}
    v_add_u32 v{vT+1}, s{sM0}, v{vT+1}""")
    for tt in range(4):
        a(f"""v_xor_b32 v{vT+4}, {2*tt}, v{vT+2}
        v_lshl_add_u32 v{vRA+tt}, v{vT+4}, 4, v{vT+1}""")
    for ks in range(32):
        slot = ks % NS
        n = (min(ks + NS - 1, 31) - ks) * 6
        a(f"s_waitcnt vmcnt({n})")
        F = AF[ks & 1]
        for tt in range(4):
            for r in range(2):
                a(f"ds_read_b64_tr_b16 {vr(F+4*tt+2*r,2)}, v{vRA+tt} offset:{slot*4096 + r*2048}")
        a("s_waitcnt lgkmcnt(0)")
        for tt in range(4):
            for i in range(2):
                c = "0" if ks == 0 else vr(acc(tt,i),4)
                a(f"v_mfma_f32_16x16x32_bf16 {vr(acc(tt,i),4)}, {vr(F+4*tt,4)}, {vr(OF+slot*8+4*i,4)}, {c}")
        if ks + NS <= 31:
            issue(ks + NS)
    a(f"""v_lshlrev_b32 v{vT}, 4, v{vL}
    v_add_u32 v{vT+1}, s{sM0}, v{vT}
    s_nop 7""")
    for j in range(8):
        a(f"ds_write_b128 v{vT+1}, {vr(ACC+4*j,4)} offset:{j*1024}")
    a("s_waitcnt lgkmcnt(0)")
    a("s_barrier")
    a(f"""s_lshl_b32 s{sT0}, s{sWv}, 11
    v_add_u32 v{vT}, s{sT0}, v{vT}
    v_add_u32 v{vT+1}, {2*NS*4096}, v{vT}""")
    R = 64
    for w in range(4):
        for i in range(2):
            base = vT if w < 2 else vT+1
            a(f"ds_read_b128 {vr(R+(w*2+i)*4,4)}, v{base} offset:{(w&1)*NS*4096 + i*1024}")
    a(f"""s_lshl_b32 s{sT0}, s{sQP}, 5
    s_mul_i32 s{sT0}, s{sT0}, 1280
    s_lshl_b32 s{sT1}, s{sNT}, 7
    s_add_u32 s{sT0}, s{sT0}, s{sT1}
    s_lshl_b32 s{sT1}, s{sWv}, 5
    s_add_u32 s{sT0}, s{sT0}, s{sT1}
    v_mul_u32_u24 v{vT+2}, 1280, v{vC}
    v_lshl_add_u32 v{vT+2}, v{vG}, 3, v{vT+2}
    v_add_u32 v{vT+2}, s{sT0}, v{vT+2}
    s_mov_b32 s{sT1}, {16*1280}
    s_waitcnt lgkmcnt(0)""")
    for i in range(2):
        for r in range(4):
            x = [R + (w*2+i)*4 + r for w in range(4)]
            a(f"v_add_f32 v{x[0]}, v{x[0]}, v{x[1]}")
            a(f"v_add_f32 v{x[2]}, v{x[2]}, v{x[3]}")
            a(f"v_add_f32 v{x[0]}, v{x[0]}, v{x[2]}")
        s = R + i*4
        a(f"v_cvt_pk_bf16_f32 v{ACC+2*i}, v{s}, v{s+1}")
        a(f"v_cvt_pk_bf16_f32 v{ACC+2*i+1}, v{s+2}, v{s+3}")
        a(f"buffer_store_dwordx2 {vr(ACC+2*i,2)}, v{vT+2}, s[{sY}:{sY+3}], {'0' if i == 0 else 's'+str(sT1)} offen")
    a("L_k2_end:")
    a("s_endpgm")
    return 4*NS*4096

def main(out):
    a1 = Asm(); l1 = gen_k1(a1)
    a2 = Asm(); l2 = gen_k2(a2)
    t = HDR
    t += f"; @launch kernel=mha_qattn_kernel grid=(256,1,1) block=(256,1,1) lds={l1}\n"
    t += f"; @launch kernel=mha_oproj_kernel grid=(240,1,1) block=(256,1,1) lds={l2}\n"
    t += '.amdgcn_target "amdgcn-amd-amdhsa--gfx950"\n.text\n'
    for name, a in (("mha_qattn_kernel", a1), ("mha_oproj_kernel", a2)):
        t += f".globl {name}\n.p2align 8\n.type {name},@function\n{name}:\n" + a.text()
    t += '.section .rodata,"a"\n.p2align 6\n' + kd("mha_qattn_kernel", 256, 64) + ".p2align 6\n" + kd("mha_oproj_kernel", 176, 64)
    open(out, "w").write(t)

if __name__ == "__main__":
    main(sys.argv[1])
```

```python
import sys

class Asm:
    def __init__(self):
        self.l = []
    def __call__(self, s):
        for ln in s.strip("\n").split("\n"):
            self.l.append("    " + ln.strip() if not ln.strip().endswith(":") else ln.strip())
    def raw(self, s):
        self.l.append(s)
    def text(self):
        return "\n".join(self.l) + "\n"

STAMP = False
K2ROT = 1
K2XR = 0
K2NS = 10
STAMP_BASE = 0x4000000
class Stamper:
    def __init__(self, a, first_sgpr=60):
        self.a = a; self.n = 0; self.f = first_sgpr
    def __call__(self):
        if STAMP:
            r = self.f + 2*self.n
            self.a(f"s_memrealtime s[{r}:{r+1}]")
            self.n += 1
    def dump(self, kidx, swave, wsptr, vt):
        if not STAMP: return
        a = self.a
        a(f"""s_waitcnt vmcnt(0) lgkmcnt(0)
        s_memrealtime s[{self.f+2*self.n}:{self.f+2*self.n+1}]
        s_mov_b32 s96, s{wsptr}
        s_and_b32 s97, s{wsptr+1}, 0xffff
        s_mov_b32 s98, 0x10000000
        s_mov_b32 s99, 0x20000
        s_lshl_b32 s100, s2, 3
        s_add_u32 s100, s100, s{swave}
        s_lshl_b32 s100, s100, 6
        s_add_u32 s100, s100, {STAMP_BASE + kidx*0x40000}
        s_getreg_b32 s101, hwreg(HW_REG_XCC_ID)
        s_waitcnt lgkmcnt(0)
        v_mov_b32 v{vt+1}, 0""")
        self.n += 1
        for i in range(self.n):
            a(f"v_mov_b32 v{vt}, s{self.f+2*i}")
            a(f"buffer_store_dword v{vt}, v{vt+1}, s[96:99], s100 offen offset:{4*i}")
        a(f"v_mov_b32 v{vt}, s101")
        a(f"buffer_store_dword v{vt}, v{vt+1}, s[96:99], s100 offen offset:60")

def vr(b, n):
    return f"v[{b}:{b+n-1}]" if n > 1 else f"v{b}"

HDR = """; Kernarg layout for this problem (64 bytes, ptrs only, base s[0:1]):
"""

X_BYTES = 16*48*640*2
KV_BYTES = 16*32*48*128*2
W_BYTES = 640*4096*2
O_BYTES = 768*4096*2

def kd(name, nv, ns, acc=None):
    acc = acc or ((nv + 3)//4*4)
    return f""".amdhsa_kernel {name}
  .amdhsa_next_free_vgpr {nv}
  .amdhsa_next_free_sgpr {ns}
  .amdhsa_accum_offset {acc}
  .amdhsa_group_segment_fixed_size 0
  .amdhsa_kernarg_size 64
  .amdhsa_user_sgpr_count 2
  .amdhsa_user_sgpr_kernarg_segment_ptr 1
  .amdhsa_system_sgpr_workgroup_id_x 1
.end_amdhsa_kernel
"""

def srd(a, d, p, nbytes):
    a(f"""s_mov_b32 s{d}, s{p}
    s_and_b32 s{d+1}, s{p+1}, 0xffff
    s_mov_b32 s{d+2}, {nbytes}
    s_mov_b32 s{d+3}, 0x20000""")

def gen_k1(a):
    SLOT = 28672
    NSLOT = 4
    VBASE = SLOT*NSLOT
    sX, sK, sV, sW, sO = 8, 12, 16, 20, 24
    sH, sP, sWv, sB, sDH = 28, 29, 30, 31, 32
    sT0, sT1, sT2 = 33, 34, 35
    sXM0, sWM0 = 36, 37
    sC = 38
    vL, vG, vC = 1, 2, 3
    vXo, vW0, vW1 = 4, 5, 6
    vRX = 7
    vRA = 8
    vT = 12
    vKo = 20; vVo = 21; vOo = 22; vRV = 23
    vRV = 24
    vEx = 28
    ACC = 32
    FA = [80, 108]
    KF = 136
    SA = 160
    SB = 196
    PF = 232
    QF = 80; VF = 104
    def acc(tt, i): return ACC + (tt*3 + i)*4
    a("s_cmp_ge_u32 s2, 256")
    a("s_cbranch_scc1 L_k1_end")
    st = Stamper(a); st()
    a(f"""s_load_dwordx4 s[40:43], s[0:1], 0
    s_load_dwordx4 s[44:47], s[0:1], 16
    s_load_dwordx2 s[48:49], s[0:1], 56
    v_and_b32 v{vL}, 63, v0
    v_lshrrev_b32 v{vT}, 6, v0
    v_lshrrev_b32 v{vG}, 4, v{vL}
    v_readfirstlane_b32 s{sWv}, v{vT}
    v_and_b32 v{vC}, 15, v{vL}
    s_and_b32 s{sT0}, s2, 7
    s_lshl_b32 s{sT0}, s{sT0}, 2
    s_lshr_b32 s{sT1}, s2, 3
    s_and_b32 s{sT1}, s{sT1}, 3
    s_add_u32 s{sH}, s{sT0}, s{sT1}
    s_lshr_b32 s{sP}, s2, 5
    s_lshr_b32 s{sB}, s{sWv}, 1
    s_and_b32 s{sDH}, s{sWv}, 1""")
    a(f"""s_mul_i32 s{sT0}, s{sP}, 96
    s_mul_i32 s{sT1}, s{sDH}, 48
    s_add_u32 s{sT0}, s{sT0}, s{sT1}
    s_mul_i32 s{sT0}, s{sT0}, 1280
    s_lshl_b32 s{sT1}, s{sB}, 6
    s_add_u32 s{sT0}, s{sT0}, s{sT1}
    v_mul_u32_u24 v{vXo}, 1280, v{vC}
    v_lshl_add_u32 v{vXo}, v{vG}, 4, v{vXo}
    v_add_u32 v{vXo}, s{sT0}, v{vXo}""")
    a(f"""s_lshl_b32 s{sT0}, s{sWv}, 17
    s_lshl_b32 s{sT1}, s{sH}, 8
    s_add_u32 s{sT0}, s{sT0}, s{sT1}
    v_lshlrev_b32 v{vT}, 1, v{vG}
    v_xor_b32 v{vT}, v{vT}, v{vC}
    v_lshlrev_b32 v{vT}, 4, v{vT}
    v_lshl_add_u32 v{vW0}, v{vG}, 13, v{vT}
    v_add_u32 v{vW0}, s{sT0}, v{vW0}
    v_xor_b32 v{vW1}, 0x80, v{vW0}""")
    a(f"""s_mul_i32 s{sXM0}, s{sWv}, 3072
    s_lshl_b32 s{sWM0}, s{sWv}, 12
    s_add_u32 s{sWM0}, s{sWM0}, 12288
    s_waitcnt lgkmcnt(0)""")
    srd(a, sX, 40, X_BYTES); srd(a, sK, 42, KV_BYTES); srd(a, sV, 44, KV_BYTES); srd(a, sW, 46, W_BYTES); srd(a, sO, 48, O_BYTES)

    def dma_step(kk):
        slot = (kk % NSLOT) * SLOT
        for i in range(3):
            a(f"""s_add_u32 m0, s{sXM0}, {slot + i*1024}
            s_mov_b32 s{sT0}, {kk*128 + i*20480}
            buffer_load_dwordx4 v{vXo}, s[{sX}:{sX+3}], s{sT0} offen lds""")
        for i in range(4):
            a(f"""s_add_u32 m0, s{sWM0}, {slot + i*1024}
            s_mov_b32 s{sT0}, {kk*64*8192 + i*4*8192}
            buffer_load_dwordx4 v{vW0 if i < 2 else vW1}, s[{sW}:{sW+3}], s{sT0} offen lds""")
    for kk in range(NSLOT):
        dma_step(kk)
    a(f"""s_lshl_b32 s{sT0}, s{sP}, 1
    s_add_u32 s{sT0}, s{sT0}, s{sB}
    s_lshl_b32 s{sT0}, s{sT0}, 5
    s_add_u32 s{sT0}, s{sT0}, s{sH}
    s_mul_i32 s{sT0}, s{sT0}, 12288
    s_lshl_b32 s{sT1}, s{sDH}, 7
    s_add_u32 s{sT0}, s{sT0}, s{sT1}
    v_lshlrev_b32 v{vKo}, 8, v{vC}
    v_lshl_add_u32 v{vKo}, v{vG}, 3, v{vKo}
    v_add_u32 v{vKo}, s{sT0}, v{vKo}""")
    for kt in range(3):
        a(f"s_mov_b32 s{sT1}, {kt*4096}")
        for T in range(2):
            for hf in range(2):
                r = KF + (kt*2 + T)*4 + hf*2
                a(f"buffer_load_dwordx2 {vr(r,2)}, v{vKo}, s[{sK}:{sK+3}], s{sT1} offen offset:{T*64 + hf*32}")
    a(f"""v_lshrrev_b32 v{vT}, 3, v{vL}
    v_and_b32 v{vT+1}, 7, v{vL}
    v_and_b32 v{vT+2}, 6, v{vT}
    v_xor_b32 v{vT+1}, v{vT+1}, v{vT+2}
    v_lshlrev_b32 v{vT+1}, 4, v{vT+1}
    v_lshl_add_u32 v{vVo}, v{vT}, 8, v{vT+1}
    v_add_u32 v{vVo}, s{sT0}, v{vVo}
    s_mul_i32 s{sT2}, s{sWv}, 6144""")
    for j in range(6):
        a(f"""s_add_u32 m0, s{sT2}, {VBASE + j*1024}
        s_mov_b32 s{sT1}, {j*2048}
        buffer_load_dwordx4 v{vVo}, s[{sV}:{sV+3}], s{sT1} offen lds""")
    a(f"""s_mul_i32 s{sT0}, s{sB}, 3072
    v_lshlrev_b32 v{vRX}, 4, v{vL}
    v_add_u32 v{vRX}, s{sT0}, v{vRX}""")
    a(f"""v_lshrrev_b32 v{vT}, 2, v{vC}
    v_lshl_add_u32 v{vT+1}, v{vG}, 3, v{vT}
    v_lshlrev_b32 v{vT+1}, 8, v{vT+1}
    v_and_b32 v{vT+2}, 1, v{vG}
    v_lshlrev_b32 v{vT+2}, 3, v{vT+2}
    v_lshl_add_u32 v{vT+2}, v{vT}, 1, v{vT+2}
    v_and_b32 v{vT+3}, 3, v{vC}
    v_lshlrev_b32 v{vT+3}, 3, v{vT+3}
    v_add_u32 v{vT+1}, v{vT+1}, v{vT+3}
    v_add_u32 v{vT+1}, 12288, v{vT+1}
    s_lshl_b32 s{sT0}, s{sDH}, 3""")
    for tt in range(4):
        a(f"""s_add_u32 s{sT1}, s{sT0}, {2*tt}
        v_xor_b32 v{vT+4}, s{sT1}, v{vT+2}
        v_lshl_add_u32 v{vRA+tt}, v{vT+4}, 4, v{vT+1}""")
    vRX2 = 29; vRA2 = 252
    a(f"v_add_u32 v{vRX2}, {2*SLOT}, v{vRX}")
    for tt in range(4):
        a(f"v_add_u32 v{vRA2+tt}, {2*SLOT}, v{vRA+tt}")

    def reads(kk, sub, fs):
        slot = kk % NSLOT
        rx = vRX if slot < 2 else vRX2
        ra = vRA if slot < 2 else vRA2
        so = (slot & 1) * SLOT
        F = FA[fs]
        for i in range(3):
            a(f"ds_read_b128 {vr(F+16+4*i,4)}, v{rx} offset:{so + sub*6144 + i*1024}")
        for tt in range(4):
            for r in range(2):
                a(f"ds_read_b64_tr_b16 {vr(F+4*tt+2*r,2)}, v{ra+tt} offset:{so + (32*sub + 4*r)*256}")
    def mfmas(fs, first):
        F = FA[fs]
        for tt in range(4):
            for i in range(3):
                c = "0" if first else vr(acc(tt,i),4)
                a(f"v_mfma_f32_16x16x32_bf16 {vr(acc(tt,i),4)}, {vr(F+4*tt,4)}, {vr(F+16+4*i,4)}, {c}")
    vm = [39,32,32,32,14,14,14,14,7,0]
    st()
    for kk in range(10):
        a(f"s_waitcnt vmcnt({vm[kk]}) lgkmcnt(0)")
        a("s_barrier")
        st()
        reads(kk, 0, 0)
        if kk >= 1 and kk + 3 <= 9:
            dma_step(kk + 3)
        if kk >= 1:
            mfmas(1, False)
        a("s_waitcnt lgkmcnt(0)")
        reads(kk, 1, 1)
        mfmas(0, kk == 0)
    a("s_waitcnt lgkmcnt(0)")
    mfmas(1, False)
    a(f"""v_lshrrev_b32 v{vT}, 2, v{vC}
    v_lshl_add_u32 v{vT}, v{vG}, 2, v{vT}
    v_and_b32 v{vT+2}, 6, v{vT}
    v_lshlrev_b32 v{vT+1}, 7, v{vT}
    v_and_b32 v{vT+3}, 3, v{vC}
    v_lshlrev_b32 v{vT+3}, 3, v{vT+3}
    v_add_u32 v{vT+1}, v{vT+1}, v{vT+3}
    s_add_u32 s{sT2}, s{sT2}, {VBASE}
    v_add_u32 v{vT+1}, s{sT2}, v{vT+1}""")
    for tt in range(4):
        a(f"""v_xor_b32 v{vT+4}, {2*tt}, v{vT+2}
        v_lshl_add_u32 v{vRV+tt}, v{vT+4}, 4, v{vT+1}""")
    a(f"""s_mul_i32 s{sT0}, s{sWv}, 9216
    s_add_u32 s{sT0}, s{sT0}, {2*SLOT}
    v_lshlrev_b32 v{vEx}, 4, v{vL}
    v_add_u32 v{vEx}, s{sT0}, v{vEx}
    s_xor_b32 s{sT1}, s{sWv}, 1
    s_mul_i32 s{sT1}, s{sT1}, 9216
    s_add_u32 s{sT1}, s{sT1}, {2*SLOT}
    v_lshlrev_b32 v{vT+5}, 4, v{vL}
    v_add_u32 v{vT+5}, s{sT1}, v{vT+5}
    s_nop 4""")
    for i in range(3):
        for T in range(2):
            for u in range(2):
                s = acc(2*T+u, i)
                d = QF + (i*2+T)*4 + 2*u
                a(f"v_cvt_pk_bf16_f32 v{d}, v{s}, v{s+1}")
                a(f"v_cvt_pk_bf16_f32 v{d+1}, v{s+2}, v{s+3}")
    for tt in range(4):
        for r in range(3):
            a(f"ds_read_b64_tr_b16 {vr(VF+tt*6+2*r,2)}, v{vRV+tt} offset:{r*2048}")
    a("s_nop 1")
    def sa(kt, i): return SA + (kt*3+i)*4
    def sb(kt, i): return SB + (kt*3+i)*4
    for T in range(2):
        for kt in range(3):
            for i in range(3):
                c = "0" if T == 0 else vr(sa(kt,i),4)
                a(f"v_mfma_f32_16x16x32_bf16 {vr(sa(kt,i),4)}, {vr(KF+(kt*2+T)*4,4)}, {vr(QF+(i*2+T)*4,4)}, {c}")
    a("s_nop 7")
    for j in range(9):
        a(f"ds_write_b128 v{vEx}, {vr(SA+4*j,4)} offset:{j*1024}")
    a("s_waitcnt lgkmcnt(0)")
    a("s_barrier")
    for j in range(9):
        a(f"ds_read_b128 {vr(SB+4*j,4)}, v{vT+5} offset:{j*1024}")
    import math
    c = (128 ** -0.5) * math.log2(math.e)
    import struct
    cbits = struct.unpack("<I", struct.pack("<f", c))[0]
    a(f"s_mov_b32 s{sC}, {cbits:#x}")
    a("s_waitcnt lgkmcnt(0)")
    for j in range(36):
        a(f"v_add_f32 v{SA+j}, v{SA+j}, v{SB+j}")
    M = SB; M2 = SB+4; L = SB+8; L2 = SB+12
    for i in range(3):
        vals = [sa(kt,i)+r for kt in range(3) for r in range(4)]
        a(f"v_max3_f32 v{M+i}, v{vals[0]}, v{vals[1]}, v{vals[2]}")
        for j in range(3, 11, 2):
            a(f"v_max3_f32 v{M+i}, v{M+i}, v{vals[j]}, v{vals[j+1]}")
        a(f"v_max_f32 v{M+i}, v{M+i}, v{vals[11]}")
    for sw in ("v_permlane32_swap_b32", "v_permlane16_swap_b32"):
        for i in range(3):
            a(f"v_mov_b32 v{M2+i}, v{M+i}")
        a("s_nop 1")
        for i in range(3):
            a(f"{sw} v{M+i}, v{M2+i}")
        a("s_nop 1")
        for i in range(3):
            a(f"v_max_f32 v{M+i}, v{M+i}, v{M2+i}")
    for i in range(3):
        a(f"v_mul_f32 v{M+i}, s{sC}, v{M+i}")
    for i in range(3):
        vals = [sa(kt,i)+r for kt in range(3) for r in range(4)]
        for v in vals:
            a(f"v_fma_f32 v{v}, v{v}, s{sC}, -v{M+i}")
        for v in vals:
            a(f"v_exp_f32 v{v}, v{v}")
    a("s_nop 0")
    for i in range(3):
        vals = [sa(kt,i)+r for kt in range(3) for r in range(4)]
        a(f"v_add_f32 v{L+i}, v{vals[0]}, v{vals[1]}")
        for v in vals[2:]:
            a(f"v_add_f32 v{L+i}, v{L+i}, v{v}")
    for sw in ("v_permlane32_swap_b32", "v_permlane16_swap_b32"):
        for i in range(3):
            a(f"v_mov_b32 v{L2+i}, v{L+i}")
        a("s_nop 1")
        for i in range(3):
            a(f"{sw} v{L+i}, v{L2+i}")
        a("s_nop 1")
        for i in range(3):
            a(f"v_add_f32 v{L+i}, v{L+i}, v{L2+i}")
    for i in range(3):
        a(f"v_rcp_f32 v{L+i}, v{L+i}")
    a("s_nop 0")
    for i in range(3):
        vals = [sa(kt,i)+r for kt in range(3) for r in range(4)]
        for v in vals:
            a(f"v_mul_f32 v{v}, v{v}, v{L+i}")
        for kt in range(3):
            s = sa(kt,i)
            a(f"v_cvt_pk_bf16_f32 v{PF+i*6+2*kt}, v{s}, v{s+1}")
            a(f"v_cvt_pk_bf16_f32 v{PF+i*6+2*kt+1}, v{s+2}, v{s+3}")
    a("s_nop 1")
    for tt in range(4):
        for i in range(3):
            a(f"v_mfma_f32_16x16x32_bf16 {vr(acc(tt,i),4)}, {vr(VF+tt*6,4)}, {vr(PF+i*6,4)}, 0")
    for tt in range(4):
        for i in range(3):
            a(f"v_mfma_f32_16x16x16_bf16 {vr(acc(tt,i),4)}, {vr(VF+tt*6+4,2)}, {vr(PF+i*6+4,2)}, {vr(acc(tt,i),4)}")
    a(f"""s_mul_i32 s{sT0}, s{sP}, 6
    s_mul_i32 s{sT1}, s{sB}, 3
    s_add_u32 s{sT0}, s{sT0}, s{sT1}
    s_lshl_b32 s{sT0}, s{sT0}, 7
    s_lshl_b32 s{sT1}, s{sH}, 2
    s_add_u32 s{sT0}, s{sT0}, s{sT1}
    s_lshl_b32 s{sT1}, s{sDH}, 1
    s_add_u32 s{sT0}, s{sT0}, s{sT1}
    s_lshl_b32 s{sT0}, s{sT0}, 10
    v_lshlrev_b32 v{vOo}, 4, v{vL}
    v_add_u32 v{vOo}, s{sT0}, v{vOo}
    s_nop 7""")
    for i in range(3):
        a(f"s_mov_b32 s{sT1}, {i*128*1024}")
        for T in range(2):
            d = QF + (i*2+T)*4
            for u in range(2):
                s = acc(2*T+u, i)
                a(f"v_cvt_pk_bf16_f32 v{d+2*u}, v{s}, v{s+1}")
                a(f"v_cvt_pk_bf16_f32 v{d+2*u+1}, v{s+2}, v{s+3}")
            a(f"buffer_store_dwordx4 {vr(d,4)}, v{vOo}, s[{sO}:{sO+3}], s{sT1} offen offset:{T*1024}")
    st()
    st.dump(0, sWv, 48, vT)
    a("L_k1_end:")
    a("s_endpgm")
    return VBASE + 4*6144

def gen_k2(a):
    NS = K2NS
    sW, sO, sY = 8, 12, 16
    sWv, sQP, sNT, sT0, sT1, sT2, sM0 = 20, 21, 22, 23, 24, 25, 26
    sWoff, sOoff = 27, 28
    vL, vG, vC = 1, 2, 3
    vWo, vOo = 4, 5
    vOo1 = 6; vWo1 = 20
    vRA = 8
    vT = 12
    ACC = 32
    AF = [64, 80]
    OF = 96
    def acc(tt, i): return ACC + (tt*2+i)*4
    a("s_cmp_ge_u32 s2, 240")
    a("s_cbranch_scc1 L_k2_end")
    st = Stamper(a); st()
    a(f"""s_load_dwordx4 s[40:43], s[0:1], 32
    s_load_dwordx2 s[48:49], s[0:1], 56
    v_and_b32 v{vL}, 63, v0
    v_lshrrev_b32 v{vT}, 6, v0
    v_lshrrev_b32 v{vG}, 4, v{vL}
    v_readfirstlane_b32 s{sWv}, v{vT}
    v_and_b32 v{vC}, 15, v{vL}
    s_and_b32 s{sT0}, s2, 7
    s_lshr_b32 s{sT1}, s2, 3
    s_mul_i32 s{sT2}, s{sT1}, 52
    s_lshr_b32 s{sT2}, s{sT2}, 8
    s_mul_i32 s{sNT}, s{sT2}, 5
    s_sub_u32 s{sNT}, s{sT1}, s{sNT}
    s_lshr_b32 s{sQP}, s{sT0}, 1
    s_mul_i32 s{sQP}, s{sQP}, 6
    s_add_u32 s{sQP}, s{sQP}, s{sT2}
    s_and_b32 s{sT0}, s{sT0}, 1
    s_mul_i32 s{sT0}, s{sT0}, 5
    s_add_u32 s{sNT}, s{sNT}, s{sT0}""")
    a(f"""v_lshrrev_b32 v{vT}, 3, v{vL}
    v_and_b32 v{vT+1}, 7, v{vL}
    v_and_b32 v{vT+2}, 6, v{vT}
    v_xor_b32 v{vT+1}, v{vT+1}, v{vT+2}
    v_lshlrev_b32 v{vT+1}, 4, v{vT+1}
    v_mul_u32_u24 v{vWo}, 1280, v{vT}
    v_add_u32 v{vWo}, v{vWo}, v{vT+1}
    s_mul_i32 s{sT0}, s{sWv}, {1024*1280}
    s_lshl_b32 s{sT1}, s{sNT}, 7
    s_add_u32 s{sT0}, s{sT0}, s{sT1}
    v_add_u32 v{vWo}, s{sT0}, v{vWo}""")
    a(f"""s_lshl_b32 s{sT0}, s{sQP}, 8
    s_lshl_b32 s{sT1}, s{sWv}, 5
    s_add_u32 s{sT0}, s{sT0}, s{sT1}
    s_lshl_b32 s{sT0}, s{sT0}, 10
    v_lshlrev_b32 v{vOo}, 4, v{vL}
    v_add_u32 v{vOo}, s{sT0}, v{vOo}
    s_mul_i32 s{sM0}, s{sWv}, {NS*4096}
    s_waitcnt lgkmcnt(0)""")
    srd(a, sW, 40, W_BYTES); srd(a, sY, 42, X_BYTES); srd(a, sO, 48, O_BYTES)
    sR = 29
    a(f"""s_lshr_b32 s{sT1}, s2, 3
    s_mul_i32 s{sT0}, s{sT2}, 5
    s_sub_u32 s{sT1}, s{sT1}, s{sT0}
    s_mul_i32 s{sT1}, s{sT1}, 13
    s_add_u32 s{sR}, s{sT0}, s{sT1}
    s_and_b32 s{sT1}, s2, 7
    s_mul_i32 s{sT1}, s{sT1}, {K2XR}
    s_add_u32 s{sR}, s{sR}, s{sT1}
    s_mul_i32 s{sR}, s{sR}, {K2ROT}
    s_and_b32 s{sR}, s{sR}, 31
    v_add_u32 v{vWo1}, {8*1280-1024}, v{vWo}
    v_add_u32 v{vWo1+1}, {16*1280-2048}, v{vWo}
    v_add_u32 v{vWo1+2}, {24*1280-3072}, v{vWo}
    v_add_u32 v{vOo1}, {128*1024}, v{vOo}""")
    def issue(ks):
        slot = ks % NS
        a(f"""s_add_u32 m0, s{sM0}, {slot*4096}
        s_mul_i32 s{sWoff}, s{sR}, {32*1280}
        s_lshl_b32 s{sOoff}, s{sR}, 10""")
        for j in range(4):
            a(f"buffer_load_dwordx4 v{vWo if j == 0 else vWo1+j-1}, s[{sW}:{sW+3}], s{sWoff} offen offset:{j*1024} WOFLAG lds")
        for i in range(2):
            a(f"buffer_load_dwordx4 {vr(OF+slot*8+4*i,4)}, v{vOo if i == 0 else vOo1}, s[{sO}:{sO+3}], s{sOoff} offen")
        a(f"""s_add_u32 s{sR}, s{sR}, 1
        s_and_b32 s{sR}, s{sR}, 31""")
    for ks in range(NS):
        issue(ks)
    a(f"""v_lshrrev_b32 v{vT}, 2, v{vC}
    v_lshl_add_u32 v{vT}, v{vG}, 2, v{vT}
    v_and_b32 v{vT+2}, 6, v{vT}
    v_lshlrev_b32 v{vT+1}, 7, v{vT}
    v_and_b32 v{vT+3}, 3, v{vC}
    v_lshlrev_b32 v{vT+3}, 3, v{vT+3}
    v_add_u32 v{vT+1}, v{vT+1}, v{vT+3}
    v_add_u32 v{vT+1}, s{sM0}, v{vT+1}""")
    for tt in range(4):
        a(f"""v_xor_b32 v{vT+4}, {2*tt}, v{vT+2}
        v_lshl_add_u32 v{vRA+tt}, v{vT+4}, 4, v{vT+1}""")
    for ks in range(32):
        slot = ks % NS
        n = (min(ks + NS - 1, 31) - ks) * 6
        if ks == 0: st()
        a(f"s_waitcnt vmcnt({n})")
        if ks % 4 == 0: st()
        F = AF[ks & 1]
        for tt in range(4):
            for r in range(2):
                a(f"ds_read_b64_tr_b16 {vr(F+4*tt+2*r,2)}, v{vRA+tt} offset:{slot*4096 + r*2048}")
        a("s_waitcnt lgkmcnt(0)")
        for tt in range(4):
            for i in range(2):
                c = "0" if ks == 0 else vr(acc(tt,i),4)
                a(f"v_mfma_f32_16x16x32_bf16 {vr(acc(tt,i),4)}, {vr(F+4*tt,4)}, {vr(OF+slot*8+4*i,4)}, {c}")
        if ks + NS <= 31:
            issue(ks + NS)
    a(f"""v_lshlrev_b32 v{vT}, 4, v{vL}
    v_add_u32 v{vT+1}, s{sM0}, v{vT}
    s_nop 7""")
    for j in range(8):
        a(f"ds_write_b128 v{vT+1}, {vr(ACC+4*j,4)} offset:{j*1024}")
    a("s_waitcnt lgkmcnt(0)")
    a("s_barrier")
    a(f"""s_lshl_b32 s{sT0}, s{sWv}, 11
    v_add_u32 v{vT}, s{sT0}, v{vT}
    v_add_u32 v{vT+1}, {2*NS*4096}, v{vT}""")
    R = 64
    for w in range(4):
        for i in range(2):
            base = vT if w < 2 else vT+1
            a(f"ds_read_b128 {vr(R+(w*2+i)*4,4)}, v{base} offset:{(w&1)*NS*4096 + i*1024}")
    a(f"""s_lshl_b32 s{sT0}, s{sQP}, 5
    s_mul_i32 s{sT0}, s{sT0}, 1280
    s_lshl_b32 s{sT1}, s{sNT}, 7
    s_add_u32 s{sT0}, s{sT0}, s{sT1}
    s_lshl_b32 s{sT1}, s{sWv}, 5
    s_add_u32 s{sT0}, s{sT0}, s{sT1}
    v_mul_u32_u24 v{vT+2}, 1280, v{vC}
    v_lshl_add_u32 v{vT+2}, v{vG}, 3, v{vT+2}
    v_add_u32 v{vT+2}, s{sT0}, v{vT+2}
    s_mov_b32 s{sT1}, {16*1280}
    s_waitcnt lgkmcnt(0)""")
    for i in range(2):
        for r in range(4):
            x = [R + (w*2+i)*4 + r for w in range(4)]
            a(f"v_add_f32 v{x[0]}, v{x[0]}, v{x[1]}")
            a(f"v_add_f32 v{x[2]}, v{x[2]}, v{x[3]}")
            a(f"v_add_f32 v{x[0]}, v{x[0]}, v{x[2]}")
        s = R + i*4
        a(f"v_cvt_pk_bf16_f32 v{ACC+2*i}, v{s}, v{s+1}")
        a(f"v_cvt_pk_bf16_f32 v{ACC+2*i+1}, v{s+2}, v{s+3}")
        a(f"buffer_store_dwordx2 {vr(ACC+2*i,2)}, v{vT+2}, s[{sY}:{sY+3}], {'0' if i == 0 else 's'+str(sT1)} offen")
    st()
    st.dump(1, sWv, 48, vT)
    a("L_k2_end:")
    a("s_endpgm")
    return 4*NS*4096

def main(out):
    a1 = Asm(); l1 = gen_k1(a1)
    a2 = Asm(); l2 = gen_k2(a2)
    t = HDR
    t += f"; @launch kernel=mha_qattn_kernel grid=(256,1,1) block=(256,1,1) lds={l1}\n"
    t += f"; @launch kernel=mha_oproj_kernel grid=(240,1,1) block=(256,1,1) lds={l2}\n"
    t += '.amdgcn_target "amdgcn-amd-amdhsa--gfx950"\n.text\n'
    for name, a in (("mha_qattn_kernel", a1), ("mha_oproj_kernel", a2)):
        t += f".globl {name}\n.p2align 8\n.type {name},@function\n{name}:\n" + a.text()
    t += '.section .rodata,"a"\n.p2align 6\n' + kd("mha_qattn_kernel", 256, 102 if STAMP else 64) + ".p2align 6\n" + kd("mha_oproj_kernel", 176, 102 if STAMP else 64)
    open(out, "w").write(t)

if __name__ == "__main__":
    if len(sys.argv) > 2 and sys.argv[2] == "stamp":
        STAMP = True
    main(sys.argv[1])
```

```python
import sys, math, struct

class Asm:
    def __init__(self):
        self.l = []
    def __call__(self, s):
        for ln in s.strip("\n").split("\n"):
            ln = ln.strip()
            if not ln: continue
            self.l.append(ln if ln.endswith(":") else "    " + ln)
    def text(self):
        return "\n".join(self.l) + "\n"

OPT = dict(stamp=False, ntx="nt", ntw="nt", ntkv="nt", ntwo="nt", kstep=1, vstep=3, pf=1)
STAMP_BASE = 0x4000000
class Stamper:
    def __init__(self, a, first_sgpr=60):
        self.a = a; self.n = 0; self.f = first_sgpr
    def __call__(self):
        if OPT["stamp"]:
            r = self.f + 2*self.n
            self.a(f"s_memrealtime s[{r}:{r+1}]")
            self.n += 1
    def dump(self, kidx, swave, wsptr, vt):
        if not OPT["stamp"]: return
        a = self.a
        a(f"""s_waitcnt vmcnt(0) lgkmcnt(0)
        s_memrealtime s[{self.f+2*self.n}:{self.f+2*self.n+1}]
        s_mov_b32 s96, s{wsptr}
        s_and_b32 s97, s{wsptr+1}, 0xffff
        s_mov_b32 s98, 0x10000000
        s_mov_b32 s99, 0x20000
        s_lshl_b32 s100, s2, 3
        s_add_u32 s100, s100, s{swave}
        s_lshl_b32 s100, s100, 6
        s_add_u32 s100, s100, {STAMP_BASE + kidx*0x40000}
        s_getreg_b32 s101, hwreg(HW_REG_XCC_ID)
        s_waitcnt lgkmcnt(0)
        v_mov_b32 v{vt+1}, 0""")
        self.n += 1
        for i in range(self.n):
            a(f"v_mov_b32 v{vt}, s{self.f+2*i}")
            a(f"buffer_store_dword v{vt}, v{vt+1}, s[96:99], s100 offen offset:{4*i}")
        a(f"v_mov_b32 v{vt}, s101")
        a(f"buffer_store_dword v{vt}, v{vt+1}, s[96:99], s100 offen offset:60")

def vr(b, n):
    return f"v[{b}:{b+n-1}]" if n > 1 else f"v{b}"

HDR = """; Kernarg layout for this problem (64 bytes, ptrs only, base s[0:1]):
"""
X_BYTES = 16*48*640*2
KV_BYTES = 16*32*48*128*2
W_BYTES = 640*4096*2
O_BYTES = 768*4096*2

def kd(name, nv, ns, acc=None):
    acc = acc or ((nv + 3)//4*4)
    return f""".amdhsa_kernel {name}
  .amdhsa_next_free_vgpr {nv}
  .amdhsa_next_free_sgpr {ns}
  .amdhsa_accum_offset {acc}
  .amdhsa_group_segment_fixed_size 0
  .amdhsa_kernarg_size 64
  .amdhsa_user_sgpr_count 2
  .amdhsa_user_sgpr_kernarg_segment_ptr 1
  .amdhsa_system_sgpr_workgroup_id_x 1
.end_amdhsa_kernel
"""

def srd(a, d, p, nbytes):
    a(f"""s_mov_b32 s{d}, s{p}
    s_and_b32 s{d+1}, s{p+1}, 0xffff
    s_mov_b32 s{d+2}, {nbytes}
    s_mov_b32 s{d+3}, 0x20000""")

SLOT = 28672
NSLOT = 4
KBASE = SLOT*NSLOT
VBASE = KBASE + 24576
LDS1 = VBASE + 24576

def gen_k1(a):
    sR, sK, sV, sO, sX, sW = 8, 12, 16, 20, 24, 28
    sH, sP, sWv, sB, sDQ = 32, 33, 34, 35, 36
    sT0, sT1, sT2 = 37, 38, 39
    sM0, sSK, sSI, sOff = 50, 51, 52, 53
    sC = 54; sKV = 55
    vL, vG, vC = 1, 2, 3
    vD0, vD1 = 4, 5
    vRB = 6
    vRA = 10
    vT = 14
    vQW = 22; vQR = 23; vKR = 24; vVR = 25; vOo = 26
    ACC = 32
    FA = [56, 76]
    def acc(tt, i): return ACC + (tt*3 + i)*4
    a("s_cmp_ge_u32 s2, 256")
    a("s_cbranch_scc1 L_k1_end")
    st = Stamper(a); st()
    a(f"""s_load_dwordx4 s[40:43], s[0:1], 0
    s_load_dwordx4 s[44:47], s[0:1], 16
    s_load_dwordx2 s[48:49], s[0:1], 56
    v_and_b32 v{vL}, 63, v0
    v_lshrrev_b32 v{vT}, 6, v0
    v_lshrrev_b32 v{vG}, 4, v{vL}
    v_readfirstlane_b32 s{sWv}, v{vT}
    v_and_b32 v{vC}, 15, v{vL}
    s_and_b32 s{sT0}, s2, 7
    s_lshl_b32 s{sT0}, s{sT0}, 2
    s_lshr_b32 s{sT1}, s2, 3
    s_and_b32 s{sT1}, s{sT1}, 3
    s_add_u32 s{sH}, s{sT0}, s{sT1}
    s_lshr_b32 s{sP}, s2, 5
    s_lshr_b32 s{sB}, s{sWv}, 2
    s_and_b32 s{sDQ}, s{sWv}, 3
    s_cmp_ge_u32 s{sWv}, 4
    s_cbranch_scc1 L_role_x""")
    a(f"""s_lshl_b32 s{sT0}, s{sWv}, 17
    s_lshl_b32 s{sT1}, s{sH}, 8
    s_add_u32 s{sT0}, s{sT0}, s{sT1}
    v_lshlrev_b32 v{vT}, 1, v{vG}
    v_xor_b32 v{vT}, v{vT}, v{vC}
    v_lshlrev_b32 v{vT}, 4, v{vT}
    v_lshl_add_u32 v{vD0}, v{vG}, 13, v{vT}
    v_add_u32 v{vD0}, s{sT0}, v{vD0}
    v_xor_b32 v{vD1}, 0x80, v{vD0}
    s_lshl_b32 s{sM0}, s{sWv}, 12
    s_add_u32 s{sM0}, s{sM0}, 12288
    s_mov_b32 s{sSK}, {64*8192 - 3*4*8192}
    s_mov_b32 s{sSI}, {4*8192}
    s_waitcnt lgkmcnt(0)""")
    srd(a, sR, 46, W_BYTES)
    a("s_branch L_role_done")
    a("L_role_x:")
    a(f"""s_mul_i32 s{sT0}, s{sP}, 96
    s_lshl_b32 s{sT1}, s{sDQ}, 5
    s_add_u32 s{sT0}, s{sT0}, s{sT1}
    s_mul_i32 s{sT0}, s{sT0}, 1280
    v_lshrrev_b32 v{vT}, 3, v{vL}
    v_and_b32 v{vT+1}, 7, v{vL}
    v_xor_b32 v{vT+1}, v{vT+1}, v{vT}
    v_lshlrev_b32 v{vT+1}, 4, v{vT+1}
    v_mul_u32_u24 v{vD0}, 1280, v{vT}
    v_add3_u32 v{vD0}, v{vD0}, v{vT+1}, s{sT0}
    v_mov_b32 v{vD1}, v{vD0}
    s_lshl_b32 s{sM0}, s{sDQ}, 12
    s_mov_b32 s{sSK}, {(128 - 3*8*1280) & 0xffffffff}
    s_mov_b32 s{sSI}, {8*1280}
    s_waitcnt lgkmcnt(0)""")
    srd(a, sR, 40, X_BYTES)
    a("L_role_done:")
    a(f"s_mov_b32 s{sOff}, 0")
    assert OPT["ntx"] == OPT["ntw"] or True
    def dma_step(kk, flag):
        slot = (kk % NSLOT) * SLOT
        for i in range(4):
            a(f"""s_add_u32 m0, s{sM0}, {slot + i*1024}
            s_nop 0
            buffer_load_dwordx4 v{vD0 if i < 2 else vD1}, s[{sR}:{sR+3}], s{sOff} offen {flag} lds
            s_add_u32 s{sOff}, s{sOff}, s{sSI if i < 3 else sSK}""")
    nlab = [0]
    def ring_issue(kks):
        n = nlab[0]; nlab[0] += 1
        a(f"s_cmp_eq_u32 s{sWv}, 7")
        a(f"s_cbranch_scc1 L_ri{n}_end")
        if OPT["ntx"] != OPT["ntw"]:
            a(f"s_cmp_ge_u32 s{sWv}, 4")
            a(f"s_cbranch_scc1 L_ri{n}_x")
            for kk in kks: dma_step(kk, OPT["ntw"])
            a(f"s_branch L_ri{n}_end")
            a(f"L_ri{n}_x:")
            for kk in kks: dma_step(kk, OPT["ntx"])
        else:
            for kk in kks: dma_step(kk, OPT["ntw"])
        a(f"L_ri{n}_end:")
    ring_issue(range(NSLOT))
    srd(a, sK, 42, KV_BYTES); srd(a, sV, 44, KV_BYTES); srd(a, sO, 48, O_BYTES); srd(a, sX, 40, X_BYTES); srd(a, sW, 46, W_BYTES)
    a(f"""s_lshl_b32 s{sKV}, s{sP}, 6
    s_add_u32 s{sKV}, s{sKV}, s{sH}
    s_mul_i32 s{sKV}, s{sKV}, 12288""")
    a(f"s_cmp_lg_u32 s{sWv}, 7")
    a("s_cbranch_scc1 L_w7a_end")
    if OPT["pf"]:
        a(f"""s_mul_i32 s{sT0}, s{sP}, 48
        s_add_u32 s{sT0}, s{sT0}, 256
        s_lshl_b32 s{sT0}, s{sT0}, 13
        s_lshl_b32 s{sT1}, s{sH}, 8
        s_add_u32 s{sT0}, s{sT0}, s{sT1}
        v_lshrrev_b32 v{vT}, 1, v{vL}
        v_and_b32 v{vT+1}, 1, v{vL}
        v_lshlrev_b32 v{vT+1}, 7, v{vT+1}
        v_lshl_add_u32 v{vT}, v{vT}, 13, v{vT+1}
        buffer_load_dword v{vT+4}, v{vT}, s[{sW}:{sW+3}], s{sT0} offen {OPT['ntw']}
        s_add_u32 s{sT0}, s{sT0}, {16*8192}
        buffer_load_dword v{vT+5}, v{vT}, s[{sW}:{sW+3}], s{sT0} offen {OPT['ntw']}""")
        a(f"""s_and_b32 s{sT0}, s{sH}, 3
        s_mul_i32 s{sT0}, s{sT0}, 24
        s_mul_i32 s{sT1}, s{sP}, 96
        s_add_u32 s{sT0}, s{sT0}, s{sT1}
        s_mul_i32 s{sT0}, s{sT0}, 1280
        s_add_u32 s{sT0}, s{sT0}, 256
        v_lshrrev_b32 v{vT}, 3, v{vL}
        v_and_b32 v{vT+1}, 7, v{vL}
        v_max_u32 v{vT+1}, 2, v{vT+1}
        v_lshlrev_b32 v{vT+1}, 7, v{vT+1}
        v_mul_u32_u24 v{vT}, 1280, v{vT}
        v_add_u32 v{vT}, v{vT}, v{vT+1}""")
        for u in range(3):
            a(f"""buffer_load_dword v{vT+6}, v{vT}, s[{sX}:{sX+3}], s{sT0} offen {OPT['ntx']}
            s_add_u32 s{sT0}, s{sT0}, {8*1280}""")
    a(f"""v_xor_b32 v{vT}, v{vC}, v{vG}
    v_lshlrev_b32 v{vT}, 4, v{vT}
    v_lshl_add_u32 v{vD0}, v{vG}, 8, v{vT}
    v_lshlrev_b32 v{vT}, 1, v{vG}
    v_xor_b32 v{vT}, v{vT}, v{vC}
    v_lshlrev_b32 v{vT}, 4, v{vT}
    v_lshl_add_u32 v{vD1}, v{vG}, 8, v{vT}""")
    a("L_w7a_end:")
    def kv_issue(which):
        n = nlab[0]; nlab[0] += 1
        a(f"s_cmp_lg_u32 s{sWv}, 7")
        a(f"s_cbranch_scc1 L_kv{n}_end")
        for b in range(2):
            for j in range(12):
                if which == "k":
                    a(f"v_xor_b32 v{vT+7}, {64*(j&3)}, v{vD0}")
                    base, s = KBASE, sK
                else:
                    a(f"v_xor_b32 v{vT+7}, {128*(j&1)}, v{vD1}")
                    base, s = VBASE, sV
                a(f"""s_mov_b32 m0, {base + b*12288 + j*1024}
                s_add_u32 s{sT0}, s{sKV}, {b*32*12288 + j*1024}
                buffer_load_dwordx4 v{vT+7}, s[{s}:{s+3}], s{sT0} offen {OPT['ntkv']} lds""")
        a(f"L_kv{n}_end:")
    a(f"""s_mul_i32 s{sT0}, s{sB}, {48*128}
    v_and_b32 v{vT}, 7, v{vC}
    v_xor_b32 v{vT}, v{vT}, v{vG}
    v_lshlrev_b32 v{vT}, 4, v{vT}
    v_lshl_add_u32 v{vT}, v{vC}, 7, v{vT}
    v_add_u32 v{vRB}, s{sT0}, v{vT}
    v_xor_b32 v{vRB+2}, 64, v{vRB}
    v_add_u32 v{vRB+1}, {2*SLOT}, v{vRB}
    v_add_u32 v{vRB+3}, {2*SLOT}, v{vRB+2}""")
    a(f"""v_lshrrev_b32 v{vT}, 2, v{vC}
    v_lshl_add_u32 v{vT+1}, v{vG}, 3, v{vT}
    v_lshlrev_b32 v{vT+1}, 8, v{vT+1}
    v_and_b32 v{vT+2}, 1, v{vG}
    v_lshlrev_b32 v{vT+2}, 3, v{vT+2}
    v_lshl_add_u32 v{vT+2}, v{vT}, 1, v{vT+2}
    v_and_b32 v{vT+3}, 3, v{vC}
    v_lshlrev_b32 v{vT+3}, 3, v{vT+3}
    v_add_u32 v{vT+1}, v{vT+1}, v{vT+3}
    v_add_u32 v{vT+1}, 12288, v{vT+1}
    s_lshl_b32 s{sT0}, s{sDQ}, 2
    v_xor_b32 v{vT+2}, s{sT0}, v{vT+2}
    v_lshl_add_u32 v{vRA}, v{vT+2}, 4, v{vT+1}
    v_xor_b32 v{vRA+2}, 32, v{vRA}
    v_add_u32 v{vRA+1}, {2*SLOT}, v{vRA}
    v_add_u32 v{vRA+3}, {2*SLOT}, v{vRA+2}""")
    QX = 2*SLOT
    a(f"""s_mul_i32 s{sT0}, s{sB}, 12288
    s_lshl_b32 s{sT1}, s{sDQ}, 10
    s_add_u32 s{sT0}, s{sT0}, s{sT1}
    s_add_u32 s{sT0}, s{sT0}, {QX}
    v_lshlrev_b32 v{vT}, 4, v{vL}
    v_add_u32 v{vQW}, s{sT0}, v{vT}
    s_lshl_b32 s{sT0}, s{sWv}, 12
    s_add_u32 s{sT0}, s{sT0}, {QX}
    v_add_u32 v{vQR}, s{sT0}, v{vT}""")
    a(f"""s_cmp_ge_u32 s{sWv}, 3
    s_cselect_b32 s{sT2}, 12288, 0
    v_lshrrev_b32 v{vT}, 1, v{vG}
    v_xor_b32 v{vT}, v{vT}, v{vC}
    v_lshlrev_b32 v{vT}, 4, v{vT}
    v_lshl_add_u32 v{vT}, v{vC}, 8, v{vT}
    v_and_b32 v{vT+1}, 1, v{vG}
    v_lshl_add_u32 v{vT}, v{vT+1}, 3, v{vT}
    s_add_u32 s{sT0}, s{sT2}, {KBASE}
    v_add_u32 v{vKR}, s{sT0}, v{vT}""")
    a(f"""v_lshrrev_b32 v{vT}, 2, v{vC}
    v_lshl_add_u32 v{vT}, v{vG}, 2, v{vT}
    v_and_b32 v{vT+1}, 7, v{vT}
    v_lshlrev_b32 v{vT+1}, 5, v{vT+1}
    v_lshl_add_u32 v{vT}, v{vT}, 8, v{vT+1}
    v_and_b32 v{vT+1}, 3, v{vC}
    v_lshl_add_u32 v{vT}, v{vT+1}, 3, v{vT}
    s_add_u32 s{sT0}, s{sT2}, {VBASE}
    v_add_u32 v{vVR}, s{sT0}, v{vT}""")
    a(f"""s_mul_i32 s{sT0}, s{sP}, 6
    s_add_u32 s{sT0}, s{sT0}, s{sWv}
    s_lshl_b32 s{sT0}, s{sT0}, 7
    s_lshl_b32 s{sT1}, s{sH}, 2
    s_add_u32 s{sT0}, s{sT0}, s{sT1}
    s_lshl_b32 s{sT0}, s{sT0}, 10
    v_lshlrev_b32 v{vOo}, 4, v{vL}
    v_add_u32 v{vOo}, s{sT0}, v{vOo}""")
    c = (128 ** -0.5) * math.log2(math.e)
    a(f"s_mov_b32 s{sC}, {struct.unpack('<I', struct.pack('<f', c))[0]:#x}")

    def reads(kk, sub, fs):
        slot = kk % NSLOT
        hi = slot >> 1
        so = (slot & 1) * SLOT
        F = FA[fs]
        for tt in range(2):
            for r in range(2):
                a(f"ds_read_b64_tr_b16 {vr(F+4*tt+2*r,2)}, v{vRA+2*tt+hi} offset:{so + (32*sub + 4*r)*256}")
        for i in range(3):
            a(f"ds_read_b128 {vr(F+8+4*i,4)}, v{vRB+2*sub+hi} offset:{so + i*2048}")
    def mfmas(fs, first):
        F = FA[fs]
        for i in range(3):
            for tt in range(2):
                cc = "0" if first else vr(acc(tt,i),4)
                a(f"v_mfma_f32_16x16x32_bf16 {vr(acc(tt,i),4)}, {vr(F+4*tt,4)}, {vr(F+8+4*i,4)}, {cc}")
    vm = [12,8,8,8,8,8,8,8,4,0]
    st()
    for kk in range(10):
        n = nlab[0]; nlab[0] += 1
        a(f"s_cmp_eq_u32 s{sWv}, 7")
        a(f"s_cbranch_scc1 L_w{n}")
        a(f"s_waitcnt vmcnt({vm[kk]})")
        a(f"L_w{n}:")
        a("s_waitcnt lgkmcnt(0)")
        a("s_barrier")
        if kk in (0, 1, 3, 5, 7, 9): st()
        reads(kk, 0, 0)
        if kk >= 1:
            mfmas(1, False)
        if kk >= 1 and kk + 3 <= 9:
            ring_issue([kk + 3])
        if kk == OPT["kstep"]: kv_issue("k")
        if kk == OPT["vstep"]: kv_issue("v")
        a("s_waitcnt lgkmcnt(0)")
        reads(kk, 1, 1)
        mfmas(0, kk == 0)
    a("s_waitcnt lgkmcnt(0)")
    mfmas(1, False)
    QF = 56
    a("s_nop 5")
    for i in range(3):
        for tt in range(2):
            s = acc(tt, i); d = QF + 4*i + 2*tt
            a(f"v_cvt_pk_bf16_f32 v{d}, v{s}, v{s+1}")
            a(f"v_cvt_pk_bf16_f32 v{d+1}, v{s+2}, v{s+3}")
        a(f"ds_write_b128 v{vQW}, {vr(QF+4*i,4)} offset:{i*4096}")
    a("s_waitcnt vmcnt(0) lgkmcnt(0)")
    a("s_barrier")
    st()
    a(f"s_cmp_ge_u32 s{sWv}, 6")
    a("s_cbranch_scc1 L_k1_attn_end")
    KF = 72
    VF = 120
    SA = 32
    PF = 44
    OA = 168
    for T in range(4):
        a(f"ds_read_b128 {vr(QF+4*T,4)}, v{vQR} offset:{T*1024}")
    for T in range(4):
        for hf in range(2):
            a(f"v_xor_b32 v{vT+hf}, {64*T + 32*hf}, v{vKR}")
            for kt in range(3):
                a(f"ds_read_b64 {vr(KF+(kt*4+T)*4+2*hf,2)}, v{vT+hf} offset:{kt*4096}")
    for T in range(4):
        if T == 0: a("s_waitcnt lgkmcnt(15)")
        if T == 1: a("s_waitcnt lgkmcnt(12)")
        if T == 2: a("s_waitcnt lgkmcnt(6)")
        if T == 3: a("s_waitcnt lgkmcnt(0)")
        for kt in range(3):
            cc = "0" if T == 0 else vr(SA+4*kt,4)
            a(f"v_mfma_f32_16x16x32_bf16 {vr(SA+4*kt,4)}, {vr(KF+(kt*4+T)*4,4)}, {vr(QF+4*T,4)}, {cc}")
    for t in range(8):
        a(f"v_xor_b32 v{vT+(t&1)}, {32*t}, v{vVR}")
        for r in range(3):
            a(f"ds_read_b64_tr_b16 {vr(VF+t*6+2*r,2)}, v{vT+(t&1)} offset:{r*4096}")
    M, M2, L, L2 = vT+2, vT+3, vT+4, vT+5
    v = [SA+j for j in range(12)]
    a(f"""v_max3_f32 v{M}, v{v[0]}, v{v[1]}, v{v[2]}
    v_max3_f32 v{M2}, v{v[3]}, v{v[4]}, v{v[5]}
    v_max3_f32 v{L}, v{v[6]}, v{v[7]}, v{v[8]}
    v_max3_f32 v{L2}, v{v[9]}, v{v[10]}, v{v[11]}
    v_max3_f32 v{M}, v{M}, v{M2}, v{L}
    v_max_f32 v{M}, v{M}, v{L2}""")
    for sw in ("v_permlane32_swap_b32", "v_permlane16_swap_b32"):
        a(f"""v_mov_b32 v{M2}, v{M}
        s_nop 1
        {sw} v{M}, v{M2}
        s_nop 1
        v_max_f32 v{M}, v{M}, v{M2}""")
    a(f"v_mul_f32 v{M}, s{sC}, v{M}")
    for x in v: a(f"v_fma_f32 v{x}, v{x}, s{sC}, -v{M}")
    for x in v: a(f"v_exp_f32 v{x}, v{x}")
    a(f"""s_nop 0
    v_add_f32 v{L}, v{v[0]}, v{v[1]}
    v_add_f32 v{L2}, v{v[2]}, v{v[3]}
    v_add_f32 v{M2}, v{v[4]}, v{v[5]}
    v_add_f32 v{L}, v{L}, v{v[6]}
    v_add_f32 v{L2}, v{L2}, v{v[7]}
    v_add_f32 v{M2}, v{M2}, v{v[8]}
    v_add_f32 v{L}, v{L}, v{v[9]}
    v_add_f32 v{L2}, v{L2}, v{v[10]}
    v_add_f32 v{M2}, v{M2}, v{v[11]}
    v_add_f32 v{L}, v{L}, v{L2}
    v_add_f32 v{L}, v{L}, v{M2}""")
    for sw in ("v_permlane32_swap_b32", "v_permlane16_swap_b32"):
        a(f"""v_mov_b32 v{L2}, v{L}
        s_nop 1
        {sw} v{L}, v{L2}
        s_nop 1
        v_add_f32 v{L}, v{L}, v{L2}""")
    a(f"v_rcp_f32 v{L}, v{L}")
    a("s_nop 0")
    for x in v: a(f"v_mul_f32 v{x}, v{x}, v{L}")
    for j in range(6):
        a(f"v_cvt_pk_bf16_f32 v{PF+j}, v{SA+2*j}, v{SA+2*j+1}")
    a("s_waitcnt lgkmcnt(0)")
    a("s_nop 0")
    for t in range(8):
        a(f"v_mfma_f32_16x16x32_bf16 {vr(OA+4*t,4)}, {vr(VF+t*6,4)}, {vr(PF,4)}, 0")
    for t in range(8):
        a(f"v_mfma_f32_16x16x16_bf16 {vr(OA+4*t,4)}, {vr(VF+t*6+4,2)}, {vr(PF+4,2)}, {vr(OA+4*t,4)}")
    a("s_nop 1")
    for T in range(4):
        d = QF + 4*T
        if T == 3: a("s_nop 1")
        for u in range(2):
            s = OA + 4*(2*T+u)
            a(f"v_cvt_pk_bf16_f32 v{d+2*u}, v{s}, v{s+1}")
            a(f"v_cvt_pk_bf16_f32 v{d+2*u+1}, v{s+2}, v{s+3}")
        a(f"buffer_store_dwordx4 {vr(d,4)}, v{vOo}, s[{sO}:{sO+3}], 0 offen offset:{T*1024}")
    a("L_k1_attn_end:")
    st()
    st.dump(0, sWv, 48, vT)
    a("L_k1_end:")
    a("s_endpgm")
    return LDS1

def main(out):
    import gen
    gen.STAMP = OPT["stamp"]
    a1 = Asm(); l1 = gen_k1(a1)
    a2 = gen.Asm(); l2 = gen.gen_k2(a2)
    t2 = a2.text()
    if OPT["ntwo"]:
        t2 = t2.replace("offen lds", f"offen {OPT['ntwo']} lds")
    t = HDR
    t += f"; @launch kernel=mha_qattn_kernel grid=(256,1,1) block=(512,1,1) lds={l1}\n"
    t += f"; @launch kernel=mha_oproj_kernel grid=(240,1,1) block=(256,1,1) lds={l2}\n"
    t += '.amdgcn_target "amdgcn-amd-amdhsa--gfx950"\n.text\n'
    for name, tx in (("mha_qattn_kernel", a1.text()), ("mha_oproj_kernel", t2)):
        t += f".globl {name}\n.p2align 8\n.type {name},@function\n{name}:\n" + tx
    ns = 102 if OPT["stamp"] else 64
    t += '.section .rodata,"a"\n.p2align 6\n' + kd("mha_qattn_kernel", 200, ns) + ".p2align 6\n" + kd("mha_oproj_kernel", 176, ns)
    open(out, "w").write(t)

if __name__ == "__main__":
    for kv in sys.argv[2:]:
        k, v = kv.split("=")
        OPT[k] = int(v) if v.lstrip("-").isdigit() else v
    main(sys.argv[1])
```

```python
import sys, math, struct
from gen2 import Asm, vr, HDR, kd, srd, X_BYTES, KV_BYTES, W_BYTES, O_BYTES
import gen2

OPT = gen2.OPT
OPT.update(dict(stamp=False, ntx="", ntw="nt", ntkv="nt", ntwo="", kv0=1, kv1=3, kv2=5, kv3=7, rot=1, xrot=1, xearly=0, la=2, k2rot=1, k2xr=0, k2ns=10))
Stamper = gen2.Stamper

SLOT = 28672
NSLOT = 4
KBASE = SLOT*NSLOT
VBASE = KBASE + 24576
LDS1 = VBASE + 24576
QX = 2*SLOT

def interleave(a, reads, mf, per=2):
    reads = list(reads); mf = list(mf)
    while reads or mf:
        for _ in range(per):
            if reads: a(reads.pop(0))
        if mf: a(mf.pop(0))

def gen_k1(a):
    sX, sK, sV, sW, sO = 8, 12, 16, 20, 24
    sH, sP, sWv, sB, sDH = 28, 29, 30, 31, 32
    sT0, sT1, sT2 = 33, 34, 35
    sOW, sOX, sKV, sCls, sC, sJ = 36, 37, 38, 39, 50, 51
    vL, vG, vC = 1, 2, 3
    vT = 4
    a("s_cmp_ge_u32 s2, 256")
    a("s_cbranch_scc1 L_k1_end")
    st = Stamper(a); st()
    a(f"""s_load_dwordx4 s[40:43], s[0:1], 0
    s_load_dwordx4 s[44:47], s[0:1], 16
    s_load_dwordx2 s[48:49], s[0:1], 56
    v_lshrrev_b32 v{vT}, 6, v0
    v_and_b32 v{vL}, 63, v0
    v_readfirstlane_b32 s{sWv}, v{vT}
    v_lshrrev_b32 v{vG}, 4, v{vL}
    v_and_b32 v{vC}, 15, v{vL}
    s_and_b32 s{sT0}, s2, 7
    s_lshl_b32 s{sT0}, s{sT0}, 2
    s_bfe_u32 s{sT1}, s2, 0x20003
    s_add_u32 s{sH}, s{sT0}, s{sT1}
    s_lshr_b32 s{sP}, s2, 5
    s_cmp_lg_u32 s{sWv}, 4
    s_cbranch_scc1 L_notprod""")
    vW, vX, vK, vV = 12, 16, 20, 24
    if OPT["rot"]:
        a(f"""s_mul_i32 s{sT0}, s{sT1}, 5
        s_add_u32 s{sT0}, s{sT0}, 1
        s_lshr_b32 s{sT0}, s{sT0}, 1
        s_add_u32 s{sT2}, s{sT0}, s{sP}""")
        if OPT["xrot"]:
            a(f"""s_and_b32 s{sT0}, s2, 7
            s_add_u32 s{sT2}, s{sT2}, s{sT0}
            s_cmp_ge_u32 s{sT2}, 10
            s_cselect_b32 s{sT0}, 10, 0
            s_sub_u32 s{sT2}, s{sT2}, s{sT0}""")
        a(f"""s_cmp_ge_u32 s{sT2}, 10
        s_cselect_b32 s{sT0}, 10, 0
        s_sub_u32 s{sT2}, s{sT2}, s{sT0}""")
    else:
        a(f"s_mov_b32 s{sT2}, 0")
    a(f"""s_lshl_b32 s{sOW}, s{sT2}, 19
    s_lshl_b32 s{sOX}, s{sT2}, 7
    s_lshl_b32 s{sT0}, s{sH}, 8
    v_lshlrev_b32 v{vT}, 1, v{vG}
    v_xor_b32 v{vT}, v{vT}, v{vC}
    v_lshlrev_b32 v{vT}, 4, v{vT}
    v_lshl_add_u32 v{vW}, v{vG}, 13, v{vT}
    v_add_u32 v{vW}, s{sT0}, v{vW}
    v_add_u32 v{vW+1}, {4*8192 - 1024}, v{vW}
    v_xor_b32 v{vW+2}, 0x80, v{vW}
    v_add_u32 v{vW+3}, {12*8192 - 3072}, v{vW+2}
    v_add_u32 v{vW+2}, {8*8192 - 2048}, v{vW+2}
    s_mul_i32 s{sT0}, s{sP}, {96*1280}
    v_lshrrev_b32 v{vT+1}, 3, v{vL}
    v_and_b32 v{vT+2}, 7, v{vL}
    v_xor_b32 v{vT+2}, v{vT+2}, v{vT+1}
    v_lshlrev_b32 v{vT+2}, 4, v{vT+2}
    v_mul_u32_u24 v{vX}, 1280, v{vT+1}
    v_add3_u32 v{vX}, v{vX}, v{vT+2}, s{sT0}
    v_add_u32 v{vX+1}, {8*1280 - 1024}, v{vX}
    v_add_u32 v{vX+2}, {16*1280 - 2048}, v{vX}
    v_add_u32 v{vX+3}, {24*1280 - 3072}, v{vX}
    s_waitcnt lgkmcnt(0)""")
    srd(a, sW, 46, W_BYTES); srd(a, sX, 40, X_BYTES)
    def issueW(t):
        slot = (t % NSLOT)*SLOT
        for jj in range(4):
            a(f"s_mov_b32 m0, {slot + 12288 + jj*4096}")
            a(f"s_add_u32 s{sT0}, s{sOW}, {jj*16*8192}")
            for i in range(4):
                a(f"buffer_load_dwordx4 v{vW+i}, s[{sW}:{sW+3}], s{sT0} offen offset:{i*1024} {OPT['ntw']} lds")
        a(f"""s_add_u32 s{sOW}, s{sOW}, {64*8192}
        s_cmp_ge_u32 s{sOW}, {640*8192}
        s_cselect_b32 s{sOW}, 0, s{sOW}""")
    def issueX(t):
        slot = (t % NSLOT)*SLOT
        for jj in range(3):
            a(f"s_mov_b32 m0, {slot + jj*4096}")
            a(f"s_add_u32 s{sT0}, s{sOX}, {jj*32*1280}")
            for i in range(4):
                a(f"buffer_load_dwordx4 v{vX+i}, s[{sX}:{sX+3}], s{sT0} offen offset:{i*1024} {OPT['ntx']} lds")
        a(f"""s_add_u32 s{sOX}, s{sOX}, 128
        s_cmp_ge_u32 s{sOX}, 1280
        s_cselect_b32 s{sOX}, 0, s{sOX}""")
    order = []
    def W(t): issueW(t); order.append(("W", t, 16))
    def X(t): issueX(t); order.append(("X", t, 12))
    def wait_for(t):
        last = max(i for i, o in enumerate(order) if o[1] <= t)
        n = sum(o[2] for o in order[last+1:])
        a(f"s_waitcnt vmcnt({min(n,63)})")
    W(0); X(0)
    xe = OPT["xearly"]
    for t in range(1, xe+1): X(t)
    srd(a, sK, 42, KV_BYTES); srd(a, sV, 44, KV_BYTES)
    kvs = [OPT["kv0"], OPT["kv1"], OPT["kv2"], OPT["kv3"]]
    a(f"""s_lshl_b32 s{sKV}, s{sP}, 6
    s_add_u32 s{sKV}, s{sKV}, s{sH}
    s_mul_i32 s{sKV}, s{sKV}, 12288
    v_xor_b32 v{vT+1}, v{vC}, v{vG}
    v_lshlrev_b32 v{vT+1}, 4, v{vT+1}
    v_lshl_add_u32 v{vK}, v{vG}, 8, v{vT+1}
    v_xor_b32 v{vK+1}, 64, v{vK}
    v_xor_b32 v{vK+2}, 128, v{vK}
    v_xor_b32 v{vK+3}, 192, v{vK}
    v_lshl_add_u32 v{vV}, v{vG}, 8, v{vT}
    v_xor_b32 v{vV+1}, 128, v{vV}
    s_and_b32 s{sT0}, s{sP}, 3
    s_lshl_b32 s{sT0}, s{sT0}, 3
    s_lshr_b32 s{sCls}, {sum((k+1) << (8*i) for i, k in enumerate(kvs))}, s{sT0}
    s_and_b32 s{sCls}, s{sCls}, 0xff""")
    nl = [0]
    def kv_call(kk):
        n = nl[0]; nl[0] += 1
        a(f"s_cmp_lg_u32 s{sCls}, {kk+1}")
        a(f"s_cbranch_scc1 L_kvc{n}")
        a(f"s_call_b64 s[4:5], L_kv_sub")
        a(f"L_kvc{n}:")
    if -1 in kvs: kv_call(-1)
    la = OPT["la"]
    nw, nx = 1, xe+1
    while nw < la: W(nw); nw += 1
    while nx < la: X(nx); nx += 1
    st()
    for kk in range(10):
        wait_for(kk)
        a("s_barrier")
        if kk in (0, 1, 3, 5, 7, 9): st()
        if kk in kvs: kv_call(kk)
        while nw <= min(kk + la, 9): W(nw); nw += 1
        while nx <= min(kk + la, 9): X(nx); nx += 1
    a("s_waitcnt vmcnt(0)")
    a("s_barrier")
    st()
    a("s_branch L_k1_attn_end")
    a("L_kv_sub:")
    for (base, s, vreg, nv) in ((KBASE, sK, vK, 4), (VBASE, sV, vV, 2)):
        for b in range(2):
            for jj in range(3):
                a(f"s_mov_b32 m0, {base + b*12288 + jj*4096}")
                a(f"s_add_u32 s{sT0}, s{sKV}, {b*32*12288 + jj*4096}")
                for i in range(4):
                    a(f"buffer_load_dwordx4 v{vreg + i % nv}, s[{s}:{s+3}], s{sT0} offen offset:{i*1024} {OPT['ntkv']} lds")
    a("s_setpc_b64 s[4:5]")
    a("L_notprod:")
    vRB = 12; vRA = 16
    vQW, vQR, vKR, vVR, vOo = 24, 25, 26, 27, 28
    ACC = 32; FA = [80, 108]
    def acc(tt, i): return ACC + (tt*3 + i)*4
    a(f"""s_cmp_gt_u32 s{sWv}, 4
    s_cselect_b32 s{sT0}, 1, 0
    s_sub_u32 s{sJ}, s{sWv}, s{sT0}
    s_lshl_b32 s{sT0}, s{sJ}, 12
    s_add_u32 s{sT0}, s{sT0}, {QX}
    v_lshlrev_b32 v{vOo}, 4, v{vL}
    v_add_u32 v{vQR}, s{sT0}, v{vOo}
    s_cmp_ge_u32 s{sJ}, 3
    s_cselect_b32 s{sT2}, 12288, 0
    v_lshrrev_b32 v{vT}, 1, v{vG}
    v_xor_b32 v{vT}, v{vT}, v{vC}
    v_lshlrev_b32 v{vT}, 4, v{vT}
    v_lshl_add_u32 v{vT}, v{vC}, 8, v{vT}
    v_and_b32 v{vT+1}, 1, v{vG}
    v_lshl_add_u32 v{vT}, v{vT+1}, 3, v{vT}
    s_add_u32 s{sT0}, s{sT2}, {KBASE}
    v_add_u32 v{vKR}, s{sT0}, v{vT}
    v_lshrrev_b32 v{vT}, 2, v{vC}
    v_lshl_add_u32 v{vT}, v{vG}, 2, v{vT}
    v_and_b32 v{vT+1}, 7, v{vT}
    v_lshlrev_b32 v{vT+1}, 5, v{vT+1}
    v_lshl_add_u32 v{vT}, v{vT}, 8, v{vT+1}
    v_and_b32 v{vT+1}, 3, v{vC}
    v_lshl_add_u32 v{vT}, v{vT+1}, 3, v{vT}
    s_add_u32 s{sT0}, s{sT2}, {VBASE}
    v_add_u32 v{vVR}, s{sT0}, v{vT}
    s_lshr_b32 s{sB}, s{sWv}, 1
    s_and_b32 s{sDH}, s{sWv}, 1
    s_mul_i32 s{sT0}, s{sB}, 12288
    s_lshl_b32 s{sT1}, s{sDH}, 11
    s_add_u32 s{sT0}, s{sT0}, s{sT1}
    s_add_u32 s{sT0}, s{sT0}, {QX}
    v_add_u32 v{vQW}, s{sT0}, v{vOo}
    s_mul_i32 s{sT0}, s{sP}, 6
    s_add_u32 s{sT0}, s{sT0}, s{sJ}
    s_lshl_b32 s{sT0}, s{sT0}, 7
    s_lshl_b32 s{sT1}, s{sH}, 2
    s_add_u32 s{sT0}, s{sT0}, s{sT1}
    s_lshl_b32 s{sT0}, s{sT0}, 10
    v_add_u32 v{vOo}, s{sT0}, v{vOo}
    s_waitcnt lgkmcnt(0)""")
    srd(a, sO, 48, O_BYTES)
    c = (128 ** -0.5) * math.log2(math.e)
    a(f"s_mov_b32 s{sC}, {struct.unpack('<I', struct.pack('<f', c))[0]:#x}")
    a(f"s_cmp_lt_u32 s{sWv}, 4")
    a("s_cbranch_scc1 L_cons")
    st.n = 1
    st()
    for kk in range(10):
        a("s_barrier")
        if kk in (0, 1, 3, 5, 7, 9): st()
    a("s_branch L_qx")
    a("L_cons:")
    a(f"""s_mul_i32 s{sT0}, s{sB}, {48*128}
    v_and_b32 v{vT}, 7, v{vC}
    v_xor_b32 v{vT}, v{vT}, v{vG}
    v_lshlrev_b32 v{vT}, 4, v{vT}
    v_lshl_add_u32 v{vT}, v{vC}, 7, v{vT}
    v_add_u32 v{vRB}, s{sT0}, v{vT}
    v_xor_b32 v{vRB+2}, 64, v{vRB}
    v_add_u32 v{vRB+1}, {2*SLOT}, v{vRB}
    v_add_u32 v{vRB+3}, {2*SLOT}, v{vRB+2}
    v_lshrrev_b32 v{vT}, 2, v{vC}
    v_lshl_add_u32 v{vT+1}, v{vG}, 3, v{vT}
    v_lshlrev_b32 v{vT+1}, 8, v{vT+1}
    v_and_b32 v{vT+2}, 1, v{vG}
    v_lshlrev_b32 v{vT+2}, 3, v{vT+2}
    v_lshl_add_u32 v{vT+2}, v{vT}, 1, v{vT+2}
    v_and_b32 v{vT+3}, 3, v{vC}
    v_lshlrev_b32 v{vT+3}, 3, v{vT+3}
    v_add_u32 v{vT+1}, v{vT+1}, v{vT+3}
    v_add_u32 v{vT+1}, 12288, v{vT+1}
    s_lshl_b32 s{sT0}, s{sDH}, 3
    v_xor_b32 v{vT+2}, s{sT0}, v{vT+2}
    v_lshl_add_u32 v{vRA}, v{vT+2}, 4, v{vT+1}""")
    for tt in range(1, 4):
        a(f"v_xor_b32 v{vRA+2*tt}, {32*tt}, v{vRA}")
    for tt in range(4):
        a(f"v_add_u32 v{vRA+2*tt+1}, {2*SLOT}, v{vRA+2*tt}")
    def reads(kk, sub, fs):
        slot = kk % NSLOT; hi = slot >> 1; so = (slot & 1)*SLOT; F = FA[fs]
        r = []
        r.append(f"ds_read_b128 {vr(F+16,4)}, v{vRB+2*sub+hi} offset:{so}")
        for tt in range(4):
            for q in range(2):
                r.append(f"ds_read_b64_tr_b16 {vr(F+4*tt+2*q,2)}, v{vRA+2*tt+hi} offset:{so + (32*sub + 4*q)*256}")
        for i in range(1, 3):
            r.append(f"ds_read_b128 {vr(F+16+4*i,4)}, v{vRB+2*sub+hi} offset:{so + i*2048}")
        return r
    def mfmas(fs, first):
        F = FA[fs]; r = []
        for i in range(3):
            for tt in range(4):
                cc = "0" if first else vr(acc(tt,i),4)
                r.append(f"v_mfma_f32_16x16x32_bf16 {vr(acc(tt,i),4)}, {vr(F+4*tt,4)}, {vr(F+16+4*i,4)}, {cc}")
        return r
    st.n = 1
    st()
    for kk in range(10):
        a("s_barrier")
        if kk in (0, 1, 3, 5, 7, 9): st()
        interleave(a, reads(kk, 0, 0), mfmas(1, False) if kk else [])
        a("s_waitcnt lgkmcnt(0)")
        interleave(a, reads(kk, 1, 1), mfmas(0, kk == 0))
        a("s_waitcnt lgkmcnt(0)")
    for m in mfmas(1, False): a(m)
    QF = 80
    for i in range(3):
        if i == 2: a("s_nop 3")
        for T in range(2):
            d = QF + (i*2+T)*4
            for u in range(2):
                s = acc(2*T+u, i)
                a(f"v_cvt_pk_bf16_f32 v{d+2*u}, v{s}, v{s+1}")
                a(f"v_cvt_pk_bf16_f32 v{d+2*u+1}, v{s+2}, v{s+3}")
            a(f"ds_write_b128 v{vQW}, {vr(d,4)} offset:{i*4096 + T*1024}")
    a("s_waitcnt lgkmcnt(0)")
    a("L_qx:")
    a("s_barrier")
    st()
    a(f"s_cmp_ge_u32 s{sJ}, 6")
    a("s_cbranch_scc1 L_k1_attn_end")
    QF = 56; KF = 72; VF = 120; SA = 32; PF = 44; OA = 168
    for T in range(4):
        a(f"ds_read_b128 {vr(QF+4*T,4)}, v{vQR} offset:{T*1024}")
    for T in range(4):
        for hf in range(2):
            a(f"v_xor_b32 v{vT+hf}, {64*T + 32*hf}, v{vKR}")
            for kt in range(3):
                a(f"ds_read_b64 {vr(KF+(kt*4+T)*4+2*hf,2)}, v{vT+hf} offset:{kt*4096}")
    for T in range(4):
        a(f"s_waitcnt lgkmcnt({[15,12,6,0][T]})")
        for kt in range(3):
            cc = "0" if T == 0 else vr(SA+4*kt,4)
            a(f"v_mfma_f32_16x16x32_bf16 {vr(SA+4*kt,4)}, {vr(KF+(kt*4+T)*4,4)}, {vr(QF+4*T,4)}, {cc}")
    for t in range(8):
        a(f"v_xor_b32 v{vT+(t&1)}, {32*t}, v{vVR}")
        for r in range(3):
            a(f"ds_read_b64_tr_b16 {vr(VF+t*6+2*r,2)}, v{vT+(t&1)} offset:{r*4096}")
    M, M2, L, L2 = vT+2, vT+3, vT+4, vT+5
    v = [SA+j for j in range(12)]
    a(f"""v_max3_f32 v{M}, v{v[0]}, v{v[1]}, v{v[2]}
    v_max3_f32 v{M2}, v{v[3]}, v{v[4]}, v{v[5]}
    v_max3_f32 v{L}, v{v[6]}, v{v[7]}, v{v[8]}
    v_max3_f32 v{L2}, v{v[9]}, v{v[10]}, v{v[11]}
    v_max3_f32 v{M}, v{M}, v{M2}, v{L}
    v_max_f32 v{M}, v{M}, v{L2}""")
    for sw in ("v_permlane32_swap_b32", "v_permlane16_swap_b32"):
        a(f"""v_mov_b32 v{M2}, v{M}
        s_nop 1
        {sw} v{M}, v{M2}
        s_nop 1
        v_max_f32 v{M}, v{M}, v{M2}""")
    a(f"v_mul_f32 v{M}, s{sC}, v{M}")
    for x in v: a(f"v_fma_f32 v{x}, v{x}, s{sC}, -v{M}")
    for x in v: a(f"v_exp_f32 v{x}, v{x}")
    a(f"""s_nop 0
    v_add_f32 v{L}, v{v[0]}, v{v[1]}
    v_add_f32 v{L2}, v{v[2]}, v{v[3]}
    v_add_f32 v{M2}, v{v[4]}, v{v[5]}
    v_add_f32 v{L}, v{L}, v{v[6]}
    v_add_f32 v{L2}, v{L2}, v{v[7]}
    v_add_f32 v{M2}, v{M2}, v{v[8]}
    v_add_f32 v{L}, v{L}, v{v[9]}
    v_add_f32 v{L2}, v{L2}, v{v[10]}
    v_add_f32 v{M2}, v{M2}, v{v[11]}
    v_add_f32 v{L}, v{L}, v{L2}
    v_add_f32 v{L}, v{L}, v{M2}""")
    for sw in ("v_permlane32_swap_b32", "v_permlane16_swap_b32"):
        a(f"""v_mov_b32 v{L2}, v{L}
        s_nop 1
        {sw} v{L}, v{L2}
        s_nop 1
        v_add_f32 v{L}, v{L}, v{L2}""")
    a(f"v_rcp_f32 v{L}, v{L}")
    a("s_nop 0")
    for x in v: a(f"v_mul_f32 v{x}, v{x}, v{L}")
    for j in range(6):
        a(f"v_cvt_pk_bf16_f32 v{PF+j}, v{SA+2*j}, v{SA+2*j+1}")
    a("s_waitcnt lgkmcnt(0)")
    a("s_nop 0")
    for t in range(8):
        a(f"v_mfma_f32_16x16x32_bf16 {vr(OA+4*t,4)}, {vr(VF+t*6,4)}, {vr(PF,4)}, 0")
    for t in range(8):
        a(f"v_mfma_f32_16x16x16_bf16 {vr(OA+4*t,4)}, {vr(VF+t*6+4,2)}, {vr(PF+4,2)}, {vr(OA+4*t,4)}")
    a("s_nop 1")
    for T in range(4):
        d = QF + 4*T
        for u in range(2):
            s = OA + 4*(2*T+u)
            a(f"v_cvt_pk_bf16_f32 v{d+2*u}, v{s}, v{s+1}")
            a(f"v_cvt_pk_bf16_f32 v{d+2*u+1}, v{s+2}, v{s+3}")
        a(f"buffer_store_dwordx4 {vr(d,4)}, v{vOo}, s[{sO}:{sO+3}], 0 offen offset:{T*1024}")
    a("L_k1_attn_end:")
    st()
    st.dump(0, sWv, 48, vT)
    a("L_k1_end:")
    a("s_endpgm")
    return LDS1

def main(out):
    import gen
    gen.STAMP = OPT["stamp"]; gen.K2ROT = OPT["k2rot"]; gen.K2XR = OPT["k2xr"]; gen.K2NS = OPT["k2ns"]
    a1 = Asm(); l1 = gen_k1(a1)
    a2 = gen.Asm(); l2 = gen.gen_k2(a2)
    t2 = a2.text()
    t2 = t2.replace("WOFLAG", OPT['ntwo'])
    t = HDR
    t += f"; @launch kernel=mha_qattn_kernel grid=(256,1,1) block=(512,1,1) lds={l1}\n"
    t += f"; @launch kernel=mha_oproj_kernel grid=(240,1,1) block=(256,1,1) lds={l2}\n"
    t += '.amdgcn_target "amdgcn-amd-amdhsa--gfx950"\n.text\n'
    for name, tx in (("mha_qattn_kernel", a1.text()), ("mha_oproj_kernel", t2)):
        t += f".globl {name}\n.p2align 8\n.type {name},@function\n{name}:\n" + tx
    ns = 102 if OPT["stamp"] else 64
    t += '.section .rodata,"a"\n.p2align 6\n' + kd("mha_qattn_kernel", 200, ns) + ".p2align 6\n" + kd("mha_oproj_kernel", 176, ns)
    open(out, "w").write(t)

if __name__ == "__main__":
    for kv in sys.argv[2:]:
        k, v = kv.split("=")
        OPT[k] = int(v) if v.lstrip("-").isdigit() else v
    main(sys.argv[1])
```

```python
import sys, math, struct
from gen2 import Asm, vr, HDR, kd, srd, X_BYTES, KV_BYTES, W_BYTES, O_BYTES
import gen2, gen4
from gen4 import interleave
OPT = gen2.OPT
OPT.update(dict(ntwo="nt", rot2=1, la2=3))
Stamper = gen2.Stamper
P_OFF = 0x800000
P_BYTES = 30*8*8*4096

def decode_tile(a, sJ, sA, sB, sT):
    a(f"""s_and_b32 s{sJ}, s2, 7
    s_lshr_b32 s{sT}, s2, 3
    s_mul_i32 s{sA}, s{sT}, 52
    s_lshr_b32 s{sA}, s{sA}, 8
    s_mul_i32 s{sB}, s{sA}, 5
    s_sub_u32 s{sB}, s{sT}, s{sB}""")

def gen_k2(a):
    OBASE = 131072
    sW, sO, sP = 8, 12, 16
    sWv, sJ, sA, sB, sT0, sT1, sT2, sR = 20, 21, 22, 23, 24, 25, 26, 27
    vL, vG, vC, vT = 1, 2, 3, 4
    a("s_cmp_ge_u32 s2, 240")
    a("s_cbranch_scc1 L_k2_end")
    st = Stamper(a); st()
    a(f"""s_load_dwordx2 s[40:41], s[0:1], 32
    s_load_dwordx2 s[48:49], s[0:1], 56
    v_lshrrev_b32 v{vT}, 6, v0
    v_and_b32 v{vL}, 63, v0
    v_readfirstlane_b32 s{sWv}, v{vT}
    v_lshrrev_b32 v{vG}, 4, v{vL}
    v_and_b32 v{vC}, 15, v{vL}""")
    decode_tile(a, sJ, sA, sB, sT0)
    if OPT["rot2"]:
        a(f"""s_mul_i32 s{sT0}, s{sA}, 11
        s_lshr_b32 s{sT0}, s{sT0}, 2
        s_mul_i32 s{sT1}, s{sB}, 13
        s_lshr_b32 s{sT1}, s{sT1}, 2
        s_add_u32 s{sR}, s{sT0}, s{sT1}
        s_and_b32 s{sR}, s{sR}, 15""")
    else:
        a(f"s_mov_b32 s{sR}, 0")
    a(f"""s_cmp_lg_u32 s{sWv}, 4
    s_cbranch_scc1 L_k2_cons""")
    vW, vO = 12, 16
    a(f"""s_mul_i32 s{sT0}, s{sJ}, {512*1280}
    s_lshl_b32 s{sT1}, s{sB}, 8
    s_add_u32 s{sT0}, s{sT0}, s{sT1}
    v_lshlrev_b32 v{vT}, 1, v{vG}
    v_xor_b32 v{vT}, v{vT}, v{vC}
    v_lshlrev_b32 v{vT}, 4, v{vT}
    v_mul_u32_u24 v{vW}, 1280, v{vG}
    v_add3_u32 v{vW}, v{vW}, v{vT}, s{sT0}
    v_xor_b32 v{vW+1}, 0x80, v{vW}
    v_add_u32 v{vW+2}, {8*1280 - 2048}, v{vW}
    v_add_u32 v{vW+3}, {12*1280 - 3072}, v{vW+1}
    v_add_u32 v{vW+1}, {4*1280 - 1024}, v{vW+1}
    s_lshl_b32 s{sT0}, s{sA}, 10
    s_lshl_b32 s{sT1}, s{sJ}, 4
    s_add_u32 s{sT0}, s{sT0}, s{sT1}
    s_lshl_b32 s{sT0}, s{sT0}, 10
    v_lshlrev_b32 v{vO}, 4, v{vL}
    v_add_u32 v{vO}, s{sT0}, v{vO}
    v_add_u32 v{vO+1}, {131072 - 1024}, v{vO}
    v_add_u32 v{vO+2}, {2*131072 - 2048}, v{vO}
    v_add_u32 v{vO+3}, {3*131072 - 3072}, v{vO}
    s_waitcnt lgkmcnt(0)""")
    srd(a, sW, 40, W_BYTES); srd(a, sO, 48, O_BYTES)
    def issue(t):
        a(f"s_mul_i32 s{sT1}, s{sR}, {32*1280}")
        for jj in range(2):
            a(f"s_mov_b32 m0, {t*8192 + jj*4096}")
            a(f"s_add_u32 s{sT0}, s{sT1}, {jj*16*1280}")
            for i in range(4):
                a(f"buffer_load_dwordx4 v{vW+i}, s[{sW}:{sW+3}], s{sT0} offen offset:{i*1024} {OPT['ntwo']} lds")
        a(f"s_lshl_b32 s{sT1}, s{sR}, 10")
        for jj in range(2):
            a(f"s_mov_b32 m0, {OBASE + (t%4)*8192 + jj*4096}")
            a(f"s_add_u32 s{sT0}, s{sT1}, {jj*4*131072}")
            for i in range(4):
                a(f"buffer_load_dwordx4 v{vO+i}, s[{sO}:{sO+3}], s{sT0} offen offset:{i*1024} lds")
        a(f"""s_add_u32 s{sR}, s{sR}, 1
        s_and_b32 s{sR}, s{sR}, 15""")
    la = OPT["la2"]
    nxt = 0
    while nxt < la: issue(nxt); nxt += 1
    st()
    for t in range(16):
        a(f"s_waitcnt vmcnt({(nxt - 1 - t)*16})")
        a("s_barrier")
        if t % 3 == 0: st()
        while nxt <= min(t + la, 15): issue(nxt); nxt += 1
    a("s_branch L_k2_done")
    a("L_k2_cons:")
    vRA, vRB, vPo = 12, 24, 25
    ACC = 32; FA = [96, 128]
    def acc(tt, i): return ACC + (tt*4 + i)*4
    a(f"""s_lshr_b32 s{sT1}, s{sWv}, 1
    s_and_b32 s{sT2}, s{sWv}, 1
    v_lshrrev_b32 v{vT}, 2, v{vC}
    v_lshl_add_u32 v{vT}, v{vG}, 2, v{vT}
    v_and_b32 v{vT+1}, 7, v{vT}
    v_lshlrev_b32 v{vT+1}, 5, v{vT+1}
    v_lshl_add_u32 v{vT}, v{vT}, 8, v{vT+1}
    v_and_b32 v{vT+1}, 3, v{vC}
    v_lshl_add_u32 v{vT}, v{vT+1}, 3, v{vT}
    s_lshl_b32 s{sT0}, s{sT2}, 7
    v_xor_b32 v{vRA}, s{sT0}, v{vT}""")
    for tt in range(1, 4):
        a(f"v_xor_b32 v{vRA+2*tt}, {32*tt}, v{vRA}")
    for tt in range(4):
        a(f"v_add_u32 v{vRA+2*tt+1}, 0x10000, v{vRA+2*tt}")
    a(f"""s_lshl_b32 s{sT0}, s{sT1}, 12
    s_add_u32 s{sT0}, s{sT0}, {OBASE}
    v_lshlrev_b32 v{vPo}, 4, v{vL}
    v_add_u32 v{vRB}, s{sT0}, v{vPo}""")
    a(f"""s_lshr_b32 s{sT0}, s2, 3
    s_lshl_b32 s{sT0}, s{sT0}, 3
    s_lshl_b32 s{sT1}, s{sT1}, 2
    s_add_u32 s{sT0}, s{sT0}, s{sT1}
    s_lshl_b32 s{sT0}, s{sT0}, 3
    s_add_u32 s{sT0}, s{sT0}, s{sJ}
    s_lshl_b32 s{sT0}, s{sT0}, 12
    s_lshl_b32 s{sT2}, s{sT2}, 11
    s_add_u32 s{sT0}, s{sT0}, s{sT2}
    v_add_u32 v{vPo}, s{sT0}, v{vPo}
    s_waitcnt lgkmcnt(0)
    s_add_u32 s48, s48, {P_OFF}
    s_addc_u32 s49, s49, 0""")
    srd(a, sP, 48, P_BYTES)
    a(f"""s_sub_u32 s48, s48, {P_OFF}
    s_subb_u32 s49, s49, 0""")
    def reads(t, fs):
        F = FA[fs]; r = []
        hi = (t*8192) >> 16; lo = (t*8192) & 0xffff
        r.append(f"ds_read_b128 {vr(F+16,4)}, v{vRB} offset:{(t%4)*8192}")
        for tt in range(4):
            for q in range(2):
                r.append(f"ds_read_b64_tr_b16 {vr(F+4*tt+2*q,2)}, v{vRA+2*tt+hi} offset:{lo + q*4096}")
        for i in range(1, 4):
            r.append(f"ds_read_b128 {vr(F+16+4*i,4)}, v{vRB} offset:{(t%4)*8192 + i*1024}")
        return r
    def mfmas(fs, first):
        F = FA[fs]; r = []
        for i in range(4):
            for tt in range(4):
                cc = "0" if first else vr(acc(tt,i),4)
                r.append(f"v_mfma_f32_16x16x32_bf16 {vr(acc(tt,i),4)}, {vr(F+4*tt,4)}, {vr(F+16+4*i,4)}, {cc}")
        return r
    st.n = 1; st()
    for t in range(16):
        a("s_barrier")
        if t % 3 == 0: st()
        interleave(a, reads(t, t & 1), mfmas((t-1) & 1, t == 1) if t else [])
        a("s_waitcnt lgkmcnt(0)")
    for m in mfmas(1, False): a(m)
    D = 96
    for i in range(4):
        a(f"s_mov_b32 s{sT0}, {i*8*4096}")
        for tp in range(2):
            d = D + (i*2+tp)*4
            for u in range(2):
                s = acc(2*tp+u, i)
                a(f"v_cvt_pk_bf16_f32 v{d+2*u}, v{s}, v{s+1}")
                a(f"v_cvt_pk_bf16_f32 v{d+2*u+1}, v{s+2}, v{s+3}")
            a(f"buffer_store_dwordx4 {vr(d,4)}, v{vPo}, s[{sP}:{sP+3}], s{sT0} offen offset:{tp*1024}")
    a("L_k2_done:")
    st()
    st.dump(1, sWv, 48, vT)
    a("L_k2_end:")
    a("s_endpgm")
    return 163840

def gen_k3(a):
    sP, sY = 8, 12
    sWv, sJ, sA, sB, sT0, sT1 = 20, 21, 22, 23, 24, 25
    vL, vG, vC, vT = 1, 2, 3, 4
    a("s_cmp_ge_u32 s2, 240")
    a("s_cbranch_scc1 L_k3_end")
    a(f"""s_load_dwordx2 s[40:41], s[0:1], 40
    s_load_dwordx2 s[48:49], s[0:1], 56
    v_lshlrev_b32 v{vT}, 4, v0
    s_lshl_b32 s{sT0}, s2, 15
    v_add_u32 v{vT}, s{sT0}, v{vT}
    v_add_u32 v{vT+1}, 4096, v{vT}
    v_lshrrev_b32 v{vT+2}, 6, v0
    v_and_b32 v{vL}, 63, v0
    v_lshrrev_b32 v{vG}, 4, v{vL}
    v_and_b32 v{vC}, 15, v{vL}
    s_waitcnt lgkmcnt(0)
    s_add_u32 s48, s48, {P_OFF}
    s_addc_u32 s49, s49, 0""")
    srd(a, sP, 48, P_BYTES)
    for j in range(8):
        a(f"s_mov_b32 s{sT0}, {j*4096}")
        a(f"buffer_load_dwordx4 {vr(16+4*j,4)}, v{vT}, s[{sP}:{sP+3}], s{sT0} offen")
    srd(a, sY, 40, X_BYTES)
    decode_tile(a, sJ, sA, sB, sT0)
    a(f"""s_lshl_b32 s{sT0}, s{sA}, 3
    s_add_u32 s{sT0}, s{sT0}, s{sJ}
    s_mul_i32 s{sT0}, s{sT0}, {16*1280}
    s_lshl_b32 s{sT1}, s{sB}, 8
    s_add_u32 s{sT0}, s{sT0}, s{sT1}
    v_mul_u32_u24 v{vT+3}, 1280, v{vC}
    v_lshl_add_u32 v{vT+3}, v{vG}, 3, v{vT+3}
    v_lshl_add_u32 v{vT+3}, v{vT+2}, 6, v{vT+3}
    v_add_u32 v{vT+3}, s{sT0}, v{vT+3}
    s_mov_b32 s{sT1}, 0xffff0000""")
    S = 48
    for j in range(8):
        a(f"s_waitcnt vmcnt({7-j})")
        for d in range(4):
            x = 16 + 4*j + d
            if j == 0:
                a(f"v_lshlrev_b32 v{S+2*d}, 16, v{x}")
                a(f"v_and_b32 v{S+2*d+1}, s{sT1}, v{x}")
            else:
                a(f"v_lshlrev_b32 v{vT+4}, 16, v{x}")
                a(f"v_and_b32 v{x}, s{sT1}, v{x}")
                a(f"v_add_f32 v{S+2*d}, v{S+2*d}, v{vT+4}")
                a(f"v_add_f32 v{S+2*d+1}, v{S+2*d+1}, v{x}")
    for d in range(4):
        a(f"v_cvt_pk_bf16_f32 v{16+d}, v{S+2*d}, v{S+2*d+1}")
    a(f"buffer_store_dwordx2 v[16:17], v{vT+3}, s[{sY}:{sY+3}], 0 offen")
    a(f"buffer_store_dwordx2 v[18:19], v{vT+3}, s[{sY}:{sY+3}], 0 offen offset:32")
    a("L_k3_end:")
    a("s_endpgm")

def main(out):
    a1 = Asm(); l1 = gen4.gen_k1(a1)
    a2 = Asm(); l2 = gen_k2(a2)
    a3 = Asm(); gen_k3(a3)
    t = HDR
    t += f"; @launch kernel=mha_qattn_kernel grid=(256,1,1) block=(512,1,1) lds={l1}\n"
    t += f"; @launch kernel=mha_oproj_kernel grid=(240,1,1) block=(320,1,1) lds={l2}\n"
    t += f"; @launch kernel=mha_reduce_kernel grid=(240,1,1) block=(256,1,1) lds=0\n"
    t += '.amdgcn_target "amdgcn-amd-amdhsa--gfx950"\n.text\n'
    for name, tx in (("mha_qattn_kernel", a1.text()), ("mha_oproj_kernel", a2.text()), ("mha_reduce_kernel", a3.text())):
        t += f".globl {name}\n.p2align 8\n.type {name},@function\n{name}:\n" + tx
    ns = 102 if OPT["stamp"] else 64
    t += '.section .rodata,"a"\n.p2align 6\n' + kd("mha_qattn_kernel", 200, ns) + ".p2align 6\n" + kd("mha_oproj_kernel", 160, ns) + ".p2align 6\n" + kd("mha_reduce_kernel", 64, 64)
    open(out, "w").write(t)

if __name__ == "__main__":
    for kv in sys.argv[2:]:
        k, v = kv.split("=")
        OPT[k] = int(v) if v.lstrip("-").isdigit() else v
    main(sys.argv[1])
```

```python
import sys, math, struct
from gen2 import Asm, vr, HDR, kd, srd, X_BYTES, KV_BYTES, W_BYTES, O_BYTES
import gen2
OPT = gen2.OPT
OPT.update(dict(stamp=False, ntx="", ntw="", ntkv="", ntwo="", kv0=0, kv1=2, kv2=4, kv3=6, rot=1, xrot=1, la=2, rot2=1, la2=3, spin=400000, pollf='sc1', flagf='sc1', psleep=0, fs=7, fullflag=0))
Stamper = gen2.Stamper
KN = "standalone__mha_block_cached__near_ridge_kernel"

SLOT = 28672; NSLOT = 4
KBASE = SLOT*NSLOT; VBASE = KBASE + 24576
QX = 11*8192
WOBLK = [7,8,9,10, 0,1,2, 3,4,5,6, 11,12,13,14,15]
OBASE = 16*8192
P_OFF = 0x800000; P_BYTES = 30*8*8*4096
F1_OFF = 0x1000000
F2_OFF = 0x1040000
E_OFF  = 0x1080000
WS_USED = 0x1080100

def interleave(a, reads, mf, per=2):
    reads = list(reads); mf = list(mf)
    while reads or mf:
        for _ in range(per):
            if reads: a(reads.pop(0))
        if mf: a(mf.pop(0))

def gen(a):
    FS = OPT['fs']
    sX, sK, sV, sW, sS, sD, sY = 8, 12, 16, 20, 24, 52, 56
    sH, sP, sWv, sB, sDH = 28, 29, 30, 31, 32
    sT0, sT1, sT2 = 33, 34, 35
    sOW, sOX, sKV, sCls, sC, sJ = 36, 37, 38, 39, 50, 51
    sN, sTA, sTB, sR, sCnt = 3, 6, 7, 36, 37
    vL, vG, vC, vT = 1, 2, 3, 4
    lab = [0]
    def L():
        lab[0] += 1; return f"L{lab[0]}"
    a("s_cmp_ge_u32 s2, 256")
    a("s_cbranch_scc1 L_end")
    st = Stamper(a, 62); st()
    a(f"""s_load_dwordx8 s[40:47], s[0:1], 0
    s_load_dwordx4 s[4:7], s[0:1], 32
    s_load_dwordx2 s[60:61], s[0:1], 48
    s_load_dwordx2 s[48:49], s[0:1], 56
    v_lshrrev_b32 v{vT}, 6, v0
    v_and_b32 v{vL}, 63, v0
    v_readfirstlane_b32 s{sWv}, v{vT}
    v_lshrrev_b32 v{vG}, 4, v{vL}
    v_and_b32 v{vC}, 15, v{vL}
    s_and_b32 s{sT0}, s2, 7
    s_lshl_b32 s{sT0}, s{sT0}, 2
    s_bfe_u32 s{sT1}, s2, 0x20003
    s_add_u32 s{sH}, s{sT0}, s{sT1}
    s_lshr_b32 s{sP}, s2, 5
    s_cmp_lg_u32 s{sWv}, 4
    s_cbranch_scc1 L_notprod""")

    def get_nonce(vreg):
        l0, l1 = L(), L()
        a(f"s_waitcnt vmcnt(0) lgkmcnt(0)")
        a(f"s_mov_b32 s{sCnt}, 0")
        a(f"{l0}:")
        a(f"""s_cmp_lg_u32 s{sN}, 0
        s_cbranch_scc1 {l1}
        s_cmp_gt_u32 s{sCnt}, {OPT['spin']}
        s_cbranch_scc1 {l1}
        buffer_load_dword v{vreg}, off, s[{sD}:{sD+3}], 0 sc1
        s_add_u32 s{sCnt}, s{sCnt}, 1
        s_waitcnt vmcnt(0)
        v_readfirstlane_b32 s{sN}, v{vreg}
        s_nop 0
        s_branch {l0}""")
        a(f"{l1}:")
    def poll(voff, vreg, soff_imm):
        l0, l1 = L(), L()
        a(f"s_mov_b32 s{sCnt}, 0")
        a(f"s_mov_b32 s{sT0}, {soff_imm}")
        a(f"{l0}:")
        a(f"""buffer_load_dword v{vreg}, v{voff}, s[{sS}:{sS+3}], s{sT0} offen {OPT['pollf']}
        s_add_u32 s{sCnt}, s{sCnt}, 1
        s_waitcnt vmcnt(0)
        v_cmp_ne_u32 vcc, s{sN}, v{vreg}
        s_cmp_gt_u32 s{sCnt}, {OPT['spin']}
        s_cbranch_scc1 {l1}""")
        if OPT["psleep"]:
            a(f"""s_cbranch_vccz {l1}
            s_sleep {OPT['psleep']}
            s_branch {l0}""")
        else:
            a(f"s_cbranch_vccnz {l0}")
        a(f"{l1}:")
    def decode_tile():
        a(f"""s_lshr_b32 s{sT0}, s2, 3
        s_mul_i32 s{sTA}, s{sT0}, 52
        s_lshr_b32 s{sTA}, s{sTA}, 8
        s_mul_i32 s{sTB}, s{sTA}, 5
        s_sub_u32 s{sTB}, s{sT0}, s{sTB}""")

    vW, vX, vK, vV = 12, 16, 20, 24
    if OPT["rot"]:
        a(f"""s_mul_i32 s{sT0}, s{sT1}, 5
        s_add_u32 s{sT0}, s{sT0}, 1
        s_lshr_b32 s{sT0}, s{sT0}, 1
        s_add_u32 s{sT2}, s{sT0}, s{sP}""")
        if OPT["xrot"]:
            a(f"""s_and_b32 s{sT0}, s2, 7
            s_add_u32 s{sT2}, s{sT2}, s{sT0}
            s_cmp_ge_u32 s{sT2}, 10
            s_cselect_b32 s{sT0}, 10, 0
            s_sub_u32 s{sT2}, s{sT2}, s{sT0}""")
        a(f"""s_cmp_ge_u32 s{sT2}, 10
        s_cselect_b32 s{sT0}, 10, 0
        s_sub_u32 s{sT2}, s{sT2}, s{sT0}""")
    else:
        a(f"s_mov_b32 s{sT2}, 0")
    a(f"""s_lshl_b32 s{sOW}, s{sT2}, 19
    s_lshl_b32 s{sOX}, s{sT2}, 7
    s_lshl_b32 s{sT0}, s{sH}, 8
    v_lshlrev_b32 v{vT}, 1, v{vG}
    v_xor_b32 v{vT}, v{vT}, v{vC}
    v_lshlrev_b32 v{vT}, 4, v{vT}
    v_lshl_add_u32 v{vW}, v{vG}, 13, v{vT}
    v_add_u32 v{vW}, s{sT0}, v{vW}
    v_add_u32 v{vW+1}, {4*8192 - 1024}, v{vW}
    v_xor_b32 v{vW+2}, 0x80, v{vW}
    v_add_u32 v{vW+3}, {12*8192 - 3072}, v{vW+2}
    v_add_u32 v{vW+2}, {8*8192 - 2048}, v{vW+2}
    s_mul_i32 s{sT0}, s{sP}, {96*1280}
    v_lshrrev_b32 v{vT+1}, 3, v{vL}
    v_and_b32 v{vT+2}, 7, v{vL}
    v_xor_b32 v{vT+2}, v{vT+2}, v{vT+1}
    v_lshlrev_b32 v{vT+2}, 4, v{vT+2}
    v_mul_u32_u24 v{vX}, 1280, v{vT+1}
    v_add3_u32 v{vX}, v{vX}, v{vT+2}, s{sT0}
    v_add_u32 v{vX+1}, {8*1280 - 1024}, v{vX}
    v_add_u32 v{vX+2}, {16*1280 - 2048}, v{vX}
    v_add_u32 v{vX+3}, {24*1280 - 3072}, v{vX}
    s_waitcnt lgkmcnt(0)""")
    srd(a, sW, 46, W_BYTES); srd(a, sX, 40, X_BYTES)
    def issueW(t):
        slot = (t % NSLOT)*SLOT
        for jj in range(4):
            a(f"s_mov_b32 m0, {slot + 12288 + jj*4096}")
            a(f"s_add_u32 s{sT0}, s{sOW}, {jj*16*8192}")
            for i in range(4):
                a(f"buffer_load_dwordx4 v{vW+i}, s[{sW}:{sW+3}], s{sT0} offen offset:{i*1024} {OPT['ntw']} lds")
        a(f"""s_add_u32 s{sOW}, s{sOW}, {64*8192}
        s_cmp_ge_u32 s{sOW}, {640*8192}
        s_cselect_b32 s{sOW}, 0, s{sOW}""")
    def issueX(t):
        slot = (t % NSLOT)*SLOT
        for jj in range(3):
            a(f"s_mov_b32 m0, {slot + jj*4096}")
            a(f"s_add_u32 s{sT0}, s{sOX}, {jj*32*1280}")
            for i in range(4):
                a(f"buffer_load_dwordx4 v{vX+i}, s[{sX}:{sX+3}], s{sT0} offen offset:{i*1024} {OPT['ntx']} lds")
        a(f"""s_add_u32 s{sOX}, s{sOX}, 128
        s_cmp_ge_u32 s{sOX}, 1280
        s_cselect_b32 s{sOX}, 0, s{sOX}""")
    la = OPT["la"]
    issueW(0); issueX(0)
    srd(a, sK, 42, KV_BYTES); srd(a, sV, 44, KV_BYTES)
    kvs = [OPT["kv0"], OPT["kv1"], OPT["kv2"], OPT["kv3"]]
    a(f"""s_lshl_b32 s{sKV}, s{sP}, 6
    s_add_u32 s{sKV}, s{sKV}, s{sH}
    s_mul_i32 s{sKV}, s{sKV}, 12288
    v_xor_b32 v{vT+1}, v{vC}, v{vG}
    v_lshlrev_b32 v{vT+1}, 4, v{vT+1}
    v_lshl_add_u32 v{vK}, v{vG}, 8, v{vT+1}
    v_xor_b32 v{vK+1}, 64, v{vK}
    v_xor_b32 v{vK+2}, 128, v{vK}
    v_xor_b32 v{vK+3}, 192, v{vK}
    v_lshl_add_u32 v{vV}, v{vG}, 8, v{vT}
    v_xor_b32 v{vV+1}, 128, v{vV}
    s_and_b32 s{sT0}, s{sP}, 3
    s_lshl_b32 s{sT0}, s{sT0}, 3
    s_lshr_b32 s{sCls}, {sum((k+1) << (8*i) for i, k in enumerate(kvs))}, s{sT0}
    s_and_b32 s{sCls}, s{sCls}, 0xff""")
    for t in range(1, la): issueW(t); issueX(t)
    sWo = 56
    vW2, vO, vF = 28, 32, 36
    srd(a, sWo, 4, W_BYTES); srd(a, sS, 48, WS_USED); srd(a, sD, 60, 256)
    decode_tile()
    a(f"""s_and_b32 s{sJ}, s2, 7
    s_mul_i32 s{sT0}, s{sJ}, {512*1280}
    s_lshl_b32 s{sT1}, s{sTB}, 8
    s_add_u32 s{sT0}, s{sT0}, s{sT1}
    v_mul_u32_u24 v{vW2}, 1280, v{vG}
    v_add3_u32 v{vW2}, v{vW2}, v{vT}, s{sT0}
    v_xor_b32 v{vW2+1}, 0x80, v{vW2}
    v_add_u32 v{vW2+2}, {8*1280 - 2048}, v{vW2}
    v_add_u32 v{vW2+3}, {12*1280 - 3072}, v{vW2+1}
    v_add_u32 v{vW2+1}, {4*1280 - 1024}, v{vW2+1}
    s_lshl_b32 s{sT0}, s{sTA}, 10
    s_lshl_b32 s{sT1}, s{sJ}, 4
    s_add_u32 s{sT0}, s{sT0}, s{sT1}
    s_lshl_b32 s{sT0}, s{sT0}, 10
    v_lshlrev_b32 v{vO}, 4, v{vL}
    v_add_u32 v{vO}, s{sT0}, v{vO}
    v_add_u32 v{vO+1}, {131072 - 1024}, v{vO}
    v_add_u32 v{vO+2}, {2*131072 - 2048}, v{vO}
    v_add_u32 v{vO+3}, {3*131072 - 3072}, v{vO}
    s_mul_i32 s{sT0}, s{sJ}, 192
    s_lshl_b32 s{sT1}, s{sTA}, 5
    s_add_u32 s{sT0}, s{sT0}, s{sT1}
    v_and_b32 v{vF}, 31, v{vL}
    v_add_u32 v{vF}, s{sT0}, v{vF}
    v_lshlrev_b32 v{vF}, {FS}, v{vF}""")
    sR2 = 50
    if OPT["rot2"]:
        a(f"""s_mul_i32 s{sT0}, s{sTA}, 11
        s_lshr_b32 s{sT0}, s{sT0}, 2
        s_mul_i32 s{sT1}, s{sTB}, 13
        s_lshr_b32 s{sT1}, s{sT1}, 2
        s_add_u32 s{sR2}, s{sT0}, s{sT1}
        s_and_b32 s{sR2}, s{sR2}, 15""")
    else:
        a(f"s_mov_b32 s{sR2}, 0")
    def issueWo(t):
        a(f"s_mul_i32 s{sT1}, s{sR2}, {32*1280}")
        for jj in range(2):
            a(f"s_mov_b32 m0, {WOBLK[t]*8192 + jj*4096}")
            a(f"s_add_u32 s{sT0}, s{sT1}, {jj*16*1280}")
            for i in range(4):
                a(f"buffer_load_dwordx4 v{vW2+i}, s[{sWo}:{sWo+3}], s{sT0} offen offset:{i*1024} {OPT['ntwo']} lds")
        a(f"""s_add_u32 s{sR2}, s{sR2}, 1
        s_and_b32 s{sR2}, s{sR2}, 15""")
    def issueO(t):
        a(f"s_lshl_b32 s{sT1}, s{sR2}, 10")
        for jj in range(2):
            a(f"s_mov_b32 m0, {OBASE + (t%4)*8192 + jj*4096}")
            a(f"s_add_u32 s{sT0}, s{sT1}, {jj*4*131072}")
            for i in range(4):
                a(f"buffer_load_dwordx4 v{vO+i}, s[{sS}:{sS+3}], s{sT0} offen offset:{i*1024} sc1 lds")
        a(f"""s_add_u32 s{sR2}, s{sR2}, 1
        s_and_b32 s{sR2}, s{sR2}, 15""")
    def kv_call(kk):
        l = L()
        a(f"s_cmp_lg_u32 s{sCls}, {kk+1}")
        a(f"s_cbranch_scc1 {l}")
        a(f"s_call_b64 s[4:5], L_kv_sub")
        a(f"{l}:")
    st()
    nxt = la
    for kk in range(9):
        a(f"s_waitcnt vmcnt({(nxt - 1 - kk)*28})")
        a("s_barrier")
        if kk in (0, 3, 7): st()
        if kk in kvs: kv_call(kk)
        while nxt <= min(kk + la, 9): issueW(nxt); issueX(nxt); nxt += 1
    a("s_cmp_ge_u32 s2, 240")
    a("s_cbranch_scc1 L_prod_notile")
    for t in range(0, 4): issueWo(t)
    a("s_waitcnt vmcnt(32)")
    a("s_barrier")
    st()
    a("s_barrier")
    st()
    a(f"s_load_dword s{sN}, s[60:61], 0")
    a("s_barrier")
    n0 = st.n; st.n = 11; st()
    for t in range(4, 16):
        issueWo(t)
        if t in (9, 15): st()
    st.n = n0
    get_nonce(vF+1)
    st()
    poll(vF, vF+1, F1_OFF)
    st()
    la2 = OPT["la2"]
    nxt = 0
    while nxt < la2: issueO(nxt); nxt += 1
    for t in range(16):
        a(f"s_waitcnt vmcnt({(nxt - 1 - t)*8})")
        a("s_barrier")
        if t in (0, 8): st()
        while nxt <= min(t + la2, 15): issueO(nxt); nxt += 1
    nprod = st.n
    a("s_branch L_done")
    a("L_prod_notile:")
    a("""s_waitcnt vmcnt(0)
    s_barrier
    s_branch L_done""")
    a("L_kv_sub:")
    for (base, s, vreg, nv) in ((KBASE, sK, vK, 4), (VBASE, sV, vV, 2)):
        for b in range(2):
            for jj in range(3):
                a(f"s_mov_b32 m0, {base + b*12288 + jj*4096}")
                a(f"s_add_u32 s{sT0}, s{sKV}, {b*32*12288 + jj*4096}")
                for i in range(4):
                    a(f"buffer_load_dwordx4 v{vreg + i % nv}, s[{s}:{s+3}], s{sT0} offen offset:{i*1024} {OPT['ntkv']} lds")
    a("s_setpc_b64 s[4:5]")

    a("L_notprod:")
    vRB = 12; vRA = 16
    vQW, vQR, vKR, vVR, vOo, vNo = 24, 25, 26, 27, 28, 29
    ACC = 32; FA = [80, 108]
    def acc(tt, i): return ACC + (tt*3 + i)*4
    a("s_waitcnt lgkmcnt(0)")
    srd(a, sS, 48, WS_USED); srd(a, sD, 60, 256); srd(a, sY, 6, X_BYTES)
    a(f"""s_lshl_b32 s{sT0}, s2, 3
    s_add_u32 s{sT0}, s{sT0}, s{sWv}
    s_cmp_lg_u32 s{sT0}, 5
    s_cbranch_scc1 L_nononce
    s_mov_b32 s{sT0}, {E_OFF}
    buffer_load_dword v{vT}, off, s[{sS}:{sS+3}], s{sT0} sc1
    s_mov_b32 s{sT1}, 0x9e3779b1
    s_waitcnt vmcnt(0)
    v_mul_lo_u32 v{vT}, v{vT}, s{sT1}
    v_add_u32 v{vT}, 0x7f4a7c15, v{vT}
    v_max_u32 v{vT}, 1, v{vT}
    s_mov_b64 exec, 1
    buffer_store_dword v{vT}, off, s[{sD}:{sD+3}], 0 sc1
    buffer_store_dword v{vT}, off, s[{sS}:{sS+3}], s{sT0} sc1
    s_mov_b64 exec, -1
    L_nononce:""")
    a(f"""s_cmp_gt_u32 s{sWv}, 4
    s_cselect_b32 s{sT0}, 1, 0
    s_sub_u32 s{sJ}, s{sWv}, s{sT0}
    s_lshl_b32 s{sT0}, s{sJ}, 12
    s_add_u32 s{sT0}, s{sT0}, {QX}
    v_lshlrev_b32 v{vOo}, 4, v{vL}
    v_add_u32 v{vQR}, s{sT0}, v{vOo}
    s_cmp_ge_u32 s{sJ}, 3
    s_cselect_b32 s{sT2}, 12288, 0
    v_lshrrev_b32 v{vT}, 1, v{vG}
    v_xor_b32 v{vT}, v{vT}, v{vC}
    v_lshlrev_b32 v{vT}, 4, v{vT}
    v_lshl_add_u32 v{vT}, v{vC}, 8, v{vT}
    v_and_b32 v{vT+1}, 1, v{vG}
    v_lshl_add_u32 v{vT}, v{vT+1}, 3, v{vT}
    s_add_u32 s{sT0}, s{sT2}, {KBASE}
    v_add_u32 v{vKR}, s{sT0}, v{vT}
    v_lshrrev_b32 v{vT}, 2, v{vC}
    v_lshl_add_u32 v{vT}, v{vG}, 2, v{vT}
    v_and_b32 v{vT+1}, 7, v{vT}
    v_lshlrev_b32 v{vT+1}, 5, v{vT+1}
    v_lshl_add_u32 v{vT}, v{vT}, 8, v{vT+1}
    v_and_b32 v{vT+1}, 3, v{vC}
    v_lshl_add_u32 v30, v{vT+1}, 3, v{vT}
    s_add_u32 s{sT0}, s{sT2}, {VBASE}
    v_add_u32 v{vVR}, s{sT0}, v30
    s_lshr_b32 s{sB}, s{sWv}, 1
    s_and_b32 s{sDH}, s{sWv}, 1
    s_mul_i32 s{sT0}, s{sB}, 12288
    s_lshl_b32 s{sT1}, s{sDH}, 11
    s_add_u32 s{sT0}, s{sT0}, s{sT1}
    s_add_u32 s{sT0}, s{sT0}, {QX}
    v_add_u32 v{vQW}, s{sT0}, v{vOo}
    s_mul_i32 s{sT0}, s{sP}, 6
    s_add_u32 s{sKV}, s{sT0}, s{sJ}
    s_lshl_b32 s{sT0}, s{sKV}, 7
    s_lshl_b32 s{sT1}, s{sH}, 2
    s_add_u32 s{sT0}, s{sT0}, s{sT1}
    s_lshl_b32 s{sT0}, s{sT0}, 10
    v_add_u32 v{vOo}, s{sT0}, v{vOo}""")
    a(f"""s_lshr_b32 s{sT0}, s{sH}, 2
    s_mul_i32 s{sT0}, s{sT0}, 48
    s_add_u32 s{sT0}, s{sT0}, s{sKV}
    s_lshl_b32 s{sT0}, s{sT0}, 2
    s_and_b32 s{sT1}, s{sH}, 3
    s_add_u32 s{sT0}, s{sT0}, s{sT1}
    s_lshl_b32 s{sT0}, s{sT0}, {FS}
    s_add_u32 s{sCls}, s{sT0}, {F1_OFF}""")
    c = (128 ** -0.5) * math.log2(math.e)
    a(f"s_mov_b32 s{sC}, {struct.unpack('<I', struct.pack('<f', c))[0]:#x}")
    a(f"s_cmp_lt_u32 s{sWv}, 4")
    a("s_cbranch_scc1 L_cons")
    st.n = 1; st()
    for kk in range(10):
        a("s_barrier")
        if kk in (0, 3, 7, 9): st()
    a("s_branch L_qx")
    a("L_cons:")
    a(f"""s_mul_i32 s{sT0}, s{sB}, {48*128}
    v_and_b32 v{vT}, 7, v{vC}
    v_xor_b32 v{vT}, v{vT}, v{vG}
    v_lshlrev_b32 v{vT}, 4, v{vT}
    v_lshl_add_u32 v{vT}, v{vC}, 7, v{vT}
    v_add_u32 v{vRB}, s{sT0}, v{vT}
    v_xor_b32 v{vRB+2}, 64, v{vRB}
    v_add_u32 v{vRB+1}, {2*SLOT}, v{vRB}
    v_add_u32 v{vRB+3}, {2*SLOT}, v{vRB+2}
    v_lshrrev_b32 v{vT}, 2, v{vC}
    v_lshl_add_u32 v{vT+1}, v{vG}, 3, v{vT}
    v_lshlrev_b32 v{vT+1}, 8, v{vT+1}
    v_and_b32 v{vT+2}, 1, v{vG}
    v_lshlrev_b32 v{vT+2}, 3, v{vT+2}
    v_lshl_add_u32 v{vT+2}, v{vT}, 1, v{vT+2}
    v_and_b32 v{vT+3}, 3, v{vC}
    v_lshlrev_b32 v{vT+3}, 3, v{vT+3}
    v_add_u32 v{vT+1}, v{vT+1}, v{vT+3}
    v_add_u32 v{vT+1}, 12288, v{vT+1}
    s_lshl_b32 s{sT0}, s{sDH}, 3
    v_xor_b32 v{vT+2}, s{sT0}, v{vT+2}
    v_lshl_add_u32 v{vRA}, v{vT+2}, 4, v{vT+1}""")
    for tt in range(1, 4):
        a(f"v_xor_b32 v{vRA+2*tt}, {32*tt}, v{vRA}")
    for tt in range(4):
        a(f"v_add_u32 v{vRA+2*tt+1}, {2*SLOT}, v{vRA+2*tt}")
    def reads(kk, sub, fs):
        slot = kk % NSLOT; hi = slot >> 1; so = (slot & 1)*SLOT; F = FA[fs]
        r = [f"ds_read_b128 {vr(F+16,4)}, v{vRB+2*sub+hi} offset:{so}"]
        for tt in range(4):
            for q in range(2):
                r.append(f"ds_read_b64_tr_b16 {vr(F+4*tt+2*q,2)}, v{vRA+2*tt+hi} offset:{so + (32*sub + 4*q)*256}")
        for i in range(1, 3):
            r.append(f"ds_read_b128 {vr(F+16+4*i,4)}, v{vRB+2*sub+hi} offset:{so + i*2048}")
        return r
    def mfmas(fs, first):
        F = FA[fs]; r = []
        for i in range(3):
            for tt in range(4):
                cc = "0" if first else vr(acc(tt,i),4)
                r.append(f"v_mfma_f32_16x16x32_bf16 {vr(acc(tt,i),4)}, {vr(F+4*tt,4)}, {vr(F+16+4*i,4)}, {cc}")
        return r
    st.n = 1; st()
    for kk in range(10):
        a("s_barrier")
        if kk in (0, 3, 7, 9): st()
        interleave(a, reads(kk, 0, 0), mfmas(1, False) if kk else [])
        a("s_waitcnt lgkmcnt(0)")
        interleave(a, reads(kk, 1, 1), mfmas(0, kk == 0))
        a("s_waitcnt lgkmcnt(0)")
    for m in mfmas(1, False): a(m)
    QF = 80
    for i in range(3):
        for T in range(2):
            d = QF + (i*2+T)*4
            for u in range(2):
                s = acc(2*T+u, i)
                a(f"v_cvt_pk_bf16_f32 v{d+2*u}, v{s}, v{s+1}")
                a(f"v_cvt_pk_bf16_f32 v{d+2*u+1}, v{s+2}, v{s+3}")
            a(f"ds_write_b128 v{vQW}, {vr(d,4)} offset:{i*4096 + T*1024}")
    a("s_waitcnt lgkmcnt(0)")
    a("L_qx:")
    a("s_barrier")
    st()
    a(f"s_load_dword s{sN}, s[60:61], 0")
    QF = 56; KF = 72; VF = 120; SA = 32; PF = 44; OA = 168
    for T in range(4):
        a(f"ds_read_b128 {vr(QF+4*T,4)}, v{vQR} offset:{T*1024}")
    for T in range(4):
        for hf in range(2):
            a(f"v_xor_b32 v{vT+hf}, {64*T + 32*hf}, v{vKR}")
            for kt in range(3):
                a(f"ds_read_b64 {vr(KF+(kt*4+T)*4+2*hf,2)}, v{vT+hf} offset:{kt*4096}")
    for T in range(4):
        a(f"s_waitcnt lgkmcnt({[15,12,6,0][T]})")
        for kt in range(3):
            cc = "0" if T == 0 else vr(SA+4*kt,4)
            a(f"v_mfma_f32_16x16x32_bf16 {vr(SA+4*kt,4)}, {vr(KF+(kt*4+T)*4,4)}, {vr(QF+4*T,4)}, {cc}")
    for t in range(8):
        a(f"v_xor_b32 v{vT+(t&1)}, {32*t}, v{vVR}")
        for r in range(3):
            a(f"ds_read_b64_tr_b16 {vr(VF+t*6+2*r,2)}, v{vT+(t&1)} offset:{r*4096}")
    M, M2, Ls, L2 = vT+2, vT+3, vT+4, vT+5
    v = [SA+j for j in range(12)]
    a(f"""v_max3_f32 v{M}, v{v[0]}, v{v[1]}, v{v[2]}
    v_max3_f32 v{M2}, v{v[3]}, v{v[4]}, v{v[5]}
    v_max3_f32 v{Ls}, v{v[6]}, v{v[7]}, v{v[8]}
    v_max3_f32 v{L2}, v{v[9]}, v{v[10]}, v{v[11]}
    v_max3_f32 v{M}, v{M}, v{M2}, v{Ls}
    v_max_f32 v{M}, v{M}, v{L2}""")
    for sw in ("v_permlane32_swap_b32", "v_permlane16_swap_b32"):
        a(f"""v_mov_b32 v{M2}, v{M}
        s_nop 1
        {sw} v{M}, v{M2}
        s_nop 1
        v_max_f32 v{M}, v{M}, v{M2}""")
    a(f"v_mul_f32 v{M}, s{sC}, v{M}")
    for x in v: a(f"v_fma_f32 v{x}, v{x}, s{sC}, -v{M}")
    a("s_waitcnt lgkmcnt(0)")
    a("s_barrier")
    for x in v: a(f"v_exp_f32 v{x}, v{x}")
    a(f"""s_nop 0
    v_add_f32 v{Ls}, v{v[0]}, v{v[1]}
    v_add_f32 v{L2}, v{v[2]}, v{v[3]}
    v_add_f32 v{M2}, v{v[4]}, v{v[5]}
    v_add_f32 v{Ls}, v{Ls}, v{v[6]}
    v_add_f32 v{L2}, v{L2}, v{v[7]}
    v_add_f32 v{M2}, v{M2}, v{v[8]}
    v_add_f32 v{Ls}, v{Ls}, v{v[9]}
    v_add_f32 v{L2}, v{L2}, v{v[10]}
    v_add_f32 v{M2}, v{M2}, v{v[11]}
    v_add_f32 v{Ls}, v{Ls}, v{L2}
    v_add_f32 v{Ls}, v{Ls}, v{M2}""")
    for sw in ("v_permlane32_swap_b32", "v_permlane16_swap_b32"):
        a(f"""v_mov_b32 v{L2}, v{Ls}
        s_nop 1
        {sw} v{Ls}, v{L2}
        s_nop 1
        v_add_f32 v{Ls}, v{Ls}, v{L2}""")
    a(f"v_rcp_f32 v{Ls}, v{Ls}")
    a("s_nop 0")
    for x in v: a(f"v_mul_f32 v{x}, v{x}, v{Ls}")
    for j in range(6):
        a(f"v_cvt_pk_bf16_f32 v{PF+j}, v{SA+2*j}, v{SA+2*j+1}")
    a("s_nop 1")
    for t in range(8):
        a(f"v_mfma_f32_16x16x32_bf16 {vr(OA+4*t,4)}, {vr(VF+t*6,4)}, {vr(PF,4)}, 0")
    for t in range(8):
        a(f"v_mfma_f32_16x16x16_bf16 {vr(OA+4*t,4)}, {vr(VF+t*6+4,2)}, {vr(PF+4,2)}, {vr(OA+4*t,4)}")
    a("s_nop 1")
    for T in range(4):
        d = QF + 4*T
        for u in range(2):
            s = OA + 4*(2*T+u)
            a(f"v_cvt_pk_bf16_f32 v{d+2*u}, v{s}, v{s+1}")
            a(f"v_cvt_pk_bf16_f32 v{d+2*u+1}, v{s+2}, v{s+3}")
        a(f"buffer_store_dwordx4 {vr(d,4)}, v{vOo}, s[{sS}:{sS+3}], 0 offen offset:{T*1024} sc1")
    st()
    if OPT["fullflag"]:
        a(f"v_lshlrev_b32 v31, 2, v{vL}")
        flagstore = f"""s_mov_b32 exec_lo, {hex((1 << (1 << (FS-2))) - 1)}
        s_mov_b32 exec_hi, 0
        buffer_store_dword v{vNo}, v31, s[{sS}:{sS+3}], s{sCls} offen {OPT['flagf']}
        s_mov_b64 exec, -1"""
    else:
        flagstore = f"""s_mov_b64 exec, 1
        buffer_store_dword v{vNo}, off, s[{sS}:{sS+3}], s{sCls} {OPT['flagf']}
        s_mov_b64 exec, -1"""
    get_nonce(vNo)
    st()
    a(f"""v_mov_b32 v{vNo}, s{sN}
{flagstore}
    s_cmp_ge_u32 s{sWv}, 4
    s_cbranch_scc1 L_done
    s_cmp_ge_u32 s2, 240
    s_cbranch_scc1 L_done""")
    vRA2, vRB2, vPo, vF2 = 12, 24, 25, 26
    ACC = 32; FB = [96, 128]
    def acc2(tt, i): return ACC + (tt*4 + i)*4
    decode_tile()
    a(f"""s_lshl_b32 s{sT0}, s{sDH}, 7
    v_xor_b32 v{vRA2}, s{sT0}, v30""")
    for tt in range(1, 4):
        a(f"v_xor_b32 v{vRA2+2*tt}, {32*tt}, v{vRA2}")
    for tt in range(4):
        a(f"v_add_u32 v{vRA2+2*tt+1}, 0x10000, v{vRA2+2*tt}")
    a(f"""s_lshl_b32 s{sT0}, s{sB}, 12
    s_add_u32 s{sT0}, s{sT0}, {OBASE}
    v_lshlrev_b32 v{vPo}, 4, v{vL}
    v_add_u32 v{vRB2}, s{sT0}, v{vPo}
    s_and_b32 s{sJ}, s2, 7
    s_andn2_b32 s{sT0}, s2, 7
    s_lshl_b32 s{sT1}, s{sB}, 2
    s_add_u32 s{sT0}, s{sT0}, s{sT1}
    s_lshl_b32 s{sT0}, s{sT0}, 3
    s_add_u32 s{sT0}, s{sT0}, s{sJ}
    s_lshl_b32 s{sT0}, s{sT0}, 12
    s_lshl_b32 s{sT1}, s{sDH}, 11
    s_add_u32 s{sT0}, s{sT0}, s{sT1}
    s_add_u32 s{sT0}, s{sT0}, {P_OFF}
    v_add_u32 v27, s{sT0}, v{vPo}""")
    vPw = 27
    a(f"""s_lshl_b32 s{sT0}, s2, 15
    s_lshl_b32 s{sT1}, s{sWv}, 10
    s_add_u32 s{sT0}, s{sT0}, s{sT1}
    s_add_u32 s{sT0}, s{sT0}, {P_OFF}
    v_add_u32 v{vPo}, s{sT0}, v{vPo}""")
    a(f"""s_lshl_b32 s{sT0}, s2, 2
    s_add_u32 s{sT0}, s{sT0}, s{sWv}
    s_lshl_b32 s{sT0}, s{sT0}, {FS}
    s_add_u32 s{sCls}, s{sT0}, {F2_OFF}
    s_andn2_b32 s{sT0}, s2, 7
    s_lshl_b32 s{sT0}, s{sT0}, 2
    s_lshr_b32 s{sT1}, s{sJ}, 2
    s_lshl_b32 s{sT1}, s{sT1}, 1
    s_add_u32 s{sT1}, s{sT1}, s{sB}
    s_add_u32 s{sT0}, s{sT0}, s{sT1}
    v_and_b32 v{vF2}, 7, v{vL}
    v_lshlrev_b32 v{vF2}, 2, v{vF2}
    v_add_u32 v{vF2}, s{sT0}, v{vF2}
    v_lshlrev_b32 v{vF2}, {FS}, v{vF2}""")
    a(f"""s_lshl_b32 s{sT0}, s{sTA}, 3
    s_add_u32 s{sT0}, s{sT0}, s{sJ}
    s_mul_i32 s{sT0}, s{sT0}, {16*1280}
    s_lshl_b32 s{sT1}, s{sTB}, 8
    s_add_u32 s{sT0}, s{sT0}, s{sT1}
    s_lshl_b32 s{sT1}, s{sWv}, 6
    s_add_u32 s{sT0}, s{sT0}, s{sT1}
    v_mul_u32_u24 v28, 1280, v{vC}
    v_lshl_add_u32 v28, v{vG}, 3, v28
    v_add_u32 v28, s{sT0}, v28""")
    def reads2(t, fs):
        F = FB[fs]
        ad = WOBLK[t]*8192; hi = ad >> 16; lo = ad & 0xffff
        r = [f"ds_read_b128 {vr(F+16,4)}, v{vRB2} offset:{(t%4)*8192}"]
        for tt in range(4):
            for q in range(2):
                r.append(f"ds_read_b64_tr_b16 {vr(F+4*tt+2*q,2)}, v{vRA2+2*tt+hi} offset:{lo + q*4096}")
        for i in range(1, 4):
            r.append(f"ds_read_b128 {vr(F+16+4*i,4)}, v{vRB2} offset:{(t%4)*8192 + i*1024}")
        return r
    def mfmas2(fs, first):
        F = FB[fs]; r = []
        for i in range(4):
            for tt in range(4):
                cc = "0" if first else vr(acc2(tt,i),4)
                r.append(f"v_mfma_f32_16x16x32_bf16 {vr(acc2(tt,i),4)}, {vr(F+4*tt,4)}, {vr(F+16+4*i,4)}, {cc}")
        return r
    for t in range(16):
        a("s_barrier")
        if t in (0, 8): st()
        interleave(a, reads2(t, t & 1), mfmas2((t-1) & 1, t == 1) if t else [])
        a("s_waitcnt lgkmcnt(0)")
    for m in mfmas2(1, False): a(m)
    D = 96
    for i in range(4):
        a(f"s_mov_b32 s{sT0}, {i*8*4096}")
        for tp in range(2):
            d = D + (i*2+tp)*4
            for u in range(2):
                s = acc2(2*tp+u, i)
                a(f"v_cvt_pk_bf16_f32 v{d+2*u}, v{s}, v{s+1}")
                a(f"v_cvt_pk_bf16_f32 v{d+2*u+1}, v{s+2}, v{s+3}")
            a(f"buffer_store_dwordx4 {vr(d,4)}, v{vPw}, s[{sS}:{sS+3}], s{sT0} offen offset:{tp*1024} sc1")
    st()
    a(f"""s_waitcnt vmcnt(0)
{flagstore}""")
    st()
    poll(vF2, vT, F2_OFF)
    st()
    for j in range(8):
        a(f"s_mov_b32 s{sT0}, {j*4096}")
        a(f"buffer_load_dwordx4 {vr(32+4*j,4)}, v{vPo}, s[{sS}:{sS+3}], s{sT0} offen sc1")
    a(f"s_mov_b32 s{sT1}, 0xffff0000")
    S = 64
    for j in range(8):
        a(f"s_waitcnt vmcnt({7-j})")
        for d in range(4):
            x = 32 + 4*j + d
            if j == 0:
                a(f"v_lshlrev_b32 v{S+2*d}, 16, v{x}")
                a(f"v_and_b32 v{S+2*d+1}, s{sT1}, v{x}")
            else:
                a(f"v_lshlrev_b32 v{vT+4}, 16, v{x}")
                a(f"v_and_b32 v{x}, s{sT1}, v{x}")
                a(f"v_add_f32 v{S+2*d}, v{S+2*d}, v{vT+4}")
                a(f"v_add_f32 v{S+2*d+1}, v{S+2*d+1}, v{x}")
    for d in range(4):
        a(f"v_cvt_pk_bf16_f32 v{32+d}, v{S+2*d}, v{S+2*d+1}")
    a(f"buffer_store_dwordx2 v[32:33], v28, s[{sY}:{sY+3}], 0 offen")
    a(f"buffer_store_dwordx2 v[34:35], v28, s[{sY}:{sY+3}], 0 offen offset:32")
    a("L_done:")
    st.dump(0, sWv, 48, vT)
    a("L_end:")
    a("s_endpgm")

def main(out):
    a = Asm(); gen(a)
    t = HDR
    t += f"; @launch grid=(256,1,1) block=(448,1,1) lds=163840\n"
    t += '.amdgcn_target "amdgcn-amd-amdhsa--gfx950"\n.text\n'
    t += f".globl {KN}\n.p2align 8\n.type {KN},@function\n{KN}:\n" + a.text()
    t += '.section .rodata,"a"\n.p2align 6\n' + kd(KN, 200, 102 if OPT["stamp"] else 64)
    open(out, "w").write(t)

if __name__ == "__main__":
    for kv in sys.argv[2:]:
        k, v = kv.split("=")
        OPT[k] = int(v) if v.lstrip("-").isdigit() else v.replace("_", " ")
    main(sys.argv[1])
```

```python
import sys, math, struct
from gen2 import Asm, vr, HDR, kd, srd, X_BYTES, KV_BYTES, W_BYTES, O_BYTES
import gen2
OPT = gen2.OPT
OPT.update(dict(stamp=False, ntx="", ntw="", ntkv="", ntwo="", kv0=1, kv1=3, kv2=5, kv3=7, rot=2, xrot=1, la=2,
                spin=400000, cpf=1, woq=9, kvspread=0, kvend=5, pre8=1, fast=0, old='sc1', wbl=0))
Stamper = gen2.Stamper
KN = "standalone__mha_block_cached__near_ridge_kernel"

SLOT = 28672; NSLOT = 4
KBASE = SLOT*NSLOT; VBASE = KBASE + 24576
QX = 11*8192
WOBLK = [7,8,9,10, 0,1,2,3,4,5,6,14,15, 11,12,13]
def OREG(u): return 131072 + u*16384 if u < 2 else (u-2)*16384
P_OFF = 0x800000
F1_OFF = 0x1000000; F2_OFF = 0x1040000; E_OFF = 0x1080000; WS_USED = 0x1080100
FS = 7
CNT = 131072

def mix(a, main, side, per=2, lead=True):
    main = list(main); side = list(side)
    while main or side:
        if not lead and main: a(main.pop(0))
        for _ in range(per):
            if side: a(side.pop(0))
        if lead and main: a(main.pop(0))

def gen(a):
    sX, sK, sV, sW, sS, sD, sY = 8, 12, 16, 20, 24, 52, 56
    sH, sP, sWv, sB, sDH = 28, 29, 30, 31, 32
    sT0, sT1, sT2 = 33, 34, 35
    sOW, sOX, sKV, sCls, sC, sJ = 36, 37, 38, 39, 50, 51
    sN, sTA, sTB, sCnt = 3, 6, 7, 37
    vL, vG, vC, vT = 1, 2, 3, 4
    lab = [0]
    def L():
        lab[0] += 1; return f"L{lab[0]}"
    a("s_cmp_ge_u32 s2, 256")
    a("s_cbranch_scc1 L_end")
    st = Stamper(a, 62); st()
    a(f"""s_load_dwordx8 s[40:47], s[0:1], 0
    s_load_dwordx4 s[4:7], s[0:1], 32
    s_load_dwordx2 s[60:61], s[0:1], 48
    s_load_dwordx2 s[48:49], s[0:1], 56
    v_lshrrev_b32 v{vT}, 6, v0
    v_and_b32 v{vL}, 63, v0
    v_readfirstlane_b32 s{sWv}, v{vT}
    v_lshrrev_b32 v{vG}, 4, v{vL}
    v_and_b32 v{vC}, 15, v{vL}
    s_and_b32 s{sT0}, s2, 7
    s_lshl_b32 s{sT0}, s{sT0}, 2
    s_bfe_u32 s{sT1}, s2, 0x20003
    s_add_u32 s{sH}, s{sT0}, s{sT1}
    s_lshr_b32 s{sP}, s2, 5
    s_cmp_lg_u32 s{sWv}, 4
    s_cbranch_scc1 L_notprod""")

    def get_nonce(vreg):
        l0, l1 = L(), L()
        a(f"s_waitcnt lgkmcnt(0)")
        a(f"s_mov_b32 s{sCnt}, 0")
        a(f"{l0}:")
        a(f"""s_cmp_lg_u32 s{sN}, 0
        s_cbranch_scc1 {l1}
        s_cmp_gt_u32 s{sCnt}, {OPT['spin']}
        s_cbranch_scc1 {l1}
        buffer_load_dword v{vreg}, off, s[{sD}:{sD+3}], 0 sc1
        s_add_u32 s{sCnt}, s{sCnt}, 1
        s_waitcnt vmcnt(0)
        v_readfirstlane_b32 s{sN}, v{vreg}
        s_nop 0
        s_branch {l0}""")
        a(f"{l1}:")
    def decode_tile():
        a(f"""s_lshr_b32 s{sT0}, s2, 3
        s_mul_i32 s{sTA}, s{sT0}, 52
        s_lshr_b32 s{sTA}, s{sTA}, 8
        s_mul_i32 s{sTB}, s{sTA}, 5
        s_sub_u32 s{sTB}, s{sT0}, s{sTB}
        s_and_b32 s{sJ}, s2, 7""")

    vW, vX, vK, vV = 12, 16, 20, 24
    if OPT["rot"] == 1:
        a(f"""s_mul_i32 s{sT0}, s{sT1}, 5
        s_add_u32 s{sT0}, s{sT0}, 1
        s_lshr_b32 s{sT0}, s{sT0}, 1
        s_add_u32 s{sT2}, s{sT0}, s{sP}""")
    elif OPT["rot"] >= 2:
        R = OPT["rot"]
        tab = [round(10*i/R) % 10 for i in range(R)]
        lut = sum(tab[(x % R)] << (4*x) for x in range(11))
        a(f"""s_add_u32 s{sT0}, s{sT1}, s{sP}
        s_lshl_b32 s{sT0}, s{sT0}, 2
        s_mov_b32 s36, {lut & 0xffffffff}
        s_mov_b32 s37, {lut >> 32}
        s_lshr_b64 s[36:37], s[36:37], s{sT0}
        s_and_b32 s{sT2}, s36, 15""")
    else:
        a(f"s_mov_b32 s{sT2}, 0")
    if OPT["xrot"]:
        a(f"""s_and_b32 s{sT0}, s2, 7
        s_add_u32 s{sT2}, s{sT2}, s{sT0}
        s_cmp_ge_u32 s{sT2}, 10
        s_cselect_b32 s{sT0}, 10, 0
        s_sub_u32 s{sT2}, s{sT2}, s{sT0}""")
    if OPT["rot"] == 1:
        a(f"""s_cmp_ge_u32 s{sT2}, 10
        s_cselect_b32 s{sT0}, 10, 0
        s_sub_u32 s{sT2}, s{sT2}, s{sT0}""")
    a(f"""s_lshl_b32 s{sOW}, s{sT2}, 19
    s_lshl_b32 s{sOX}, s{sT2}, 7
    s_lshl_b32 s{sT0}, s{sH}, 8
    v_lshlrev_b32 v{vT}, 1, v{vG}
    v_xor_b32 v{vT}, v{vT}, v{vC}
    v_lshlrev_b32 v{vT}, 4, v{vT}
    v_lshl_add_u32 v{vW}, v{vG}, 13, v{vT}
    v_add_u32 v{vW}, s{sT0}, v{vW}
    v_add_u32 v{vW+1}, {4*8192 - 1024}, v{vW}
    v_xor_b32 v{vW+2}, 0x80, v{vW}
    v_add_u32 v{vW+3}, {12*8192 - 3072}, v{vW+2}
    v_add_u32 v{vW+2}, {8*8192 - 2048}, v{vW+2}
    s_mul_i32 s{sT0}, s{sP}, {96*1280}
    v_lshrrev_b32 v{vT+1}, 3, v{vL}
    v_and_b32 v{vT+2}, 7, v{vL}
    v_xor_b32 v{vT+2}, v{vT+2}, v{vT+1}
    v_lshlrev_b32 v{vT+2}, 4, v{vT+2}
    v_mul_u32_u24 v{vX}, 1280, v{vT+1}
    v_add3_u32 v{vX}, v{vX}, v{vT+2}, s{sT0}
    v_add_u32 v{vX+1}, {8*1280 - 1024}, v{vX}
    v_add_u32 v{vX+2}, {16*1280 - 2048}, v{vX}
    v_add_u32 v{vX+3}, {24*1280 - 3072}, v{vX}
    s_waitcnt lgkmcnt(0)""")
    srd(a, sW, 46, W_BYTES); srd(a, sX, 40, X_BYTES)
    def issueW(t):
        slot = (t % NSLOT)*SLOT
        for jj in range(4):
            a(f"s_mov_b32 m0, {slot + 12288 + jj*4096}")
            a(f"s_add_u32 s{sT0}, s{sOW}, {jj*16*8192}")
            for i in range(4):
                a(f"buffer_load_dwordx4 v{vW+i}, s[{sW}:{sW+3}], s{sT0} offen offset:{i*1024} {OPT['ntw']} lds")
        a(f"""s_add_u32 s{sOW}, s{sOW}, {64*8192}
        s_cmp_ge_u32 s{sOW}, {640*8192}
        s_cselect_b32 s{sOW}, 0, s{sOW}""")
    def issueX(t):
        slot = (t % NSLOT)*SLOT
        for jj in range(3):
            a(f"s_mov_b32 m0, {slot + jj*4096}")
            a(f"s_add_u32 s{sT0}, s{sOX}, {jj*32*1280}")
            for i in range(4):
                a(f"buffer_load_dwordx4 v{vX+i}, s[{sX}:{sX+3}], s{sT0} offen offset:{i*1024} {OPT['ntx']} lds")
        a(f"""s_add_u32 s{sOX}, s{sOX}, 128
        s_cmp_ge_u32 s{sOX}, 1280
        s_cselect_b32 s{sOX}, 0, s{sOX}""")
    la = OPT["la"]
    issueW(0); issueX(0)
    srd(a, sK, 42, KV_BYTES); srd(a, sV, 44, KV_BYTES)
    kvs = [OPT["kv0"], OPT["kv1"], OPT["kv2"], OPT["kv3"]]
    a(f"""s_lshl_b32 s{sKV}, s{sP}, 6
    s_add_u32 s{sKV}, s{sKV}, s{sH}
    s_mul_i32 s{sKV}, s{sKV}, 12288
    v_xor_b32 v{vT+1}, v{vC}, v{vG}
    v_lshlrev_b32 v{vT+1}, 4, v{vT+1}
    v_lshl_add_u32 v{vK}, v{vG}, 8, v{vT+1}
    v_xor_b32 v{vK+1}, 64, v{vK}
    v_xor_b32 v{vK+2}, 128, v{vK}
    v_xor_b32 v{vK+3}, 192, v{vK}
    v_lshl_add_u32 v{vV}, v{vG}, 8, v{vT}
    v_xor_b32 v{vV+1}, 128, v{vV}
    s_and_b32 s{sT0}, s{sP}, 3
    s_lshl_b32 s{sT0}, s{sT0}, 3
    s_lshr_b32 s{sCls}, {sum((k+1) << (8*i) for i, k in enumerate(kvs))}, s{sT0}
    s_and_b32 s{sCls}, s{sCls}, 0xff""")
    for t in range(1, la): issueW(t); issueX(t)
    sWo = 56
    vW2, vO, vF = 28, 32, 36
    sR2, sRho, sSig, sSplit, sRdy = 50, 40, 41, 42, 44
    srd(a, sWo, 4, W_BYTES); srd(a, sS, 48, WS_USED); srd(a, sD, 60, 256)
    decode_tile()
    a(f"""s_mul_i32 s{sT0}, s{sJ}, {512*1280}
    s_lshl_b32 s{sT1}, s{sTB}, 8
    s_add_u32 s{sT0}, s{sT0}, s{sT1}
    v_mul_u32_u24 v{vW2}, 1280, v{vG}
    v_add3_u32 v{vW2}, v{vW2}, v{vT}, s{sT0}
    v_xor_b32 v{vW2+1}, 0x80, v{vW2}
    v_add_u32 v{vW2+2}, {8*1280 - 2048}, v{vW2}
    v_add_u32 v{vW2+3}, {12*1280 - 3072}, v{vW2+1}
    v_add_u32 v{vW2+1}, {4*1280 - 1024}, v{vW2+1}
    s_lshl_b32 s{sT0}, s{sTA}, 10
    s_lshl_b32 s{sT1}, s{sJ}, 4
    s_add_u32 s{sT0}, s{sT0}, s{sT1}
    s_lshl_b32 s{sT0}, s{sT0}, 10
    v_lshlrev_b32 v{vO}, 4, v{vL}
    v_add_u32 v{vO}, s{sT0}, v{vO}
    s_mul_i32 s{sT0}, s{sTA}, 43
    s_lshr_b32 s{sT0}, s{sT0}, 5
    s_mul_i32 s{sSplit}, s{sT0}, 6
    s_add_u32 s{sSplit}, s{sSplit}, 6
    s_lshl_b32 s{sT1}, s{sTA}, 3
    s_sub_u32 s{sSplit}, s{sSplit}, s{sT1}
    s_lshl_b32 s{sT0}, s{sT0}, 5
    s_add_u32 s{sT0}, s{sT0}, s{sJ}
    v_and_b32 v{vF}, 7, v{vL}
    v_lshl_add_u32 v{vF}, v{vF}, 3, s{sT0}
    v_lshlrev_b32 v{vF}, {FS}, v{vF}
    v_lshlrev_b32 v{vF+2}, 2, v{vL}
    s_and_b32 s{sRho}, s{sTA}, 3
    s_lshl_b32 s{sR2}, s{sRho}, 2
    s_lshl_b32 s{sRho}, s{sRho}, 12
    s_mul_i32 s{sSig}, s{sTB}, 13
    s_lshr_b32 s{sSig}, s{sSig}, 3
    s_mov_b32 s{sRdy}, 0""")
    def issueWo(t):
        a(f"s_mul_i32 s{sT1}, s{sR2}, {32*1280}")
        for jj in range(2):
            a(f"s_mov_b32 m0, {WOBLK[t]*8192 + jj*4096}")
            a(f"s_add_u32 s{sT0}, s{sT1}, {jj*16*1280}")
            for i in range(4):
                a(f"buffer_load_dwordx4 v{vW2+i}, s[{sWo}:{sWo+3}], s{sT0} offen offset:{i*1024} {OPT['ntwo']} lds")
        a(f"""s_add_u32 s{sR2}, s{sR2}, 1
        s_and_b32 s{sR2}, s{sR2}, 15""")
    def issueO(u):
        l1 = L()
        a(f"""s_cmp_lt_u32 s{sSig}, s{sSplit}
        s_cselect_b32 s{sT2}, 0xf, 0xf0
        s_andn2_b32 s{sT1}, s{sT2}, s{sRdy}
        s_cbranch_scc0 {l1}
        s_call_b64 s[4:5], L_poll1""")
        a(f"{l1}:")
        a(f"s_lshl_b32 s{sT1}, s{sSig}, 17")
        for G in range(4):
            a(f"s_mov_b32 m0, {OREG(u) + G*4096}")
            a(f"s_add_u32 s{sT0}, s{sT1}, s{sRho}")
            for i in range(4):
                a(f"buffer_load_dwordx4 v{vO}, s[{sS}:{sS+3}], s{sT0} offen offset:{i*1024} {OPT['old']} lds")
            a(f"""s_add_u32 s{sRho}, s{sRho}, 4096
            s_and_b32 s{sRho}, s{sRho}, 0x3fff""")
        a(f"""s_add_u32 s{sSig}, s{sSig}, 1
        s_and_b32 s{sSig}, s{sSig}, 7""")
    def kv_call(kk):
        l = L()
        a(f"s_cmp_lg_u32 s{sCls}, {kk+1}")
        a(f"s_cbranch_scc1 {l}")
        a(f"s_call_b64 s[4:5], L_kv_sub")
        a(f"{l}:")
    kvgroups = [(base, s_, vreg, nv, b, jj) for (base, s_, vreg, nv) in ((KBASE, sK, vK, 4), (VBASE, sV, vV, 2)) for b in range(2) for jj in range(3)]
    def kvgroup(gi):
        base, s_, vreg, nv, b, jj = kvgroups[gi]
        a(f"s_mov_b32 m0, {base + b*12288 + jj*4096}")
        a(f"s_add_u32 s{sT0}, s{sKV}, {b*32*12288 + jj*4096}")
        for i in range(4):
            a(f"buffer_load_dwordx4 v{vreg + i % nv}, s[{s_}:{s_+3}], s{sT0} offen offset:{i*1024} {OPT['ntkv']} lds")
    def pubflag():
        a(f"""s_barrier
        s_lshl_b32 s{sT0}, s2, {FS}
        s_add_u32 s{sT0}, s{sT0}, {F1_OFF}
        v_mov_b32 v{vF+1}, s{sN}
        s_mov_b32 exec_hi, 0
        buffer_store_dword v{vF+1}, v{vF+2}, s[{sS}:{sS+3}], s{sT0} offen sc1
        s_mov_b64 exec, -1""")
    st()
    nxt = la
    q1 = [(t, 28) for t in range(la)]
    ks = OPT["kvspread"]; ke = OPT["kvend"]
    for kk in range(9):
        last = max(i for i, c in enumerate(q1) if c[0] <= kk)
        a(f"s_waitcnt vmcnt({min(63, sum(c[1] for c in q1[last+1:]))})")
        a("s_barrier")
        if kk in (0, 3, 7): st()
        if ks:
            n = ke + 1 - (ks - 1)
            if ks - 1 <= kk <= ke:
                i0 = (kk - (ks-1))*12//n; i1 = (kk - (ks-1) + 1)*12//n
                for gi in range(i0, i1): kvgroup(gi); q1.append((99, 4))
        elif kk in kvs: kv_call(kk)
        while nxt <= min(kk + la, 9): issueW(nxt); issueX(nxt); q1.append((nxt, 28)); nxt += 1
    a(f"s_load_dword s{sN}, s[60:61], 0")
    if OPT["fast"]:
        a(f"""s_mul_i32 s{sT0}, s{sP}, 6
        s_lshl_b32 s{sT0}, s{sT0}, 7
        s_lshl_b32 s{sT1}, s{sH}, 2
        s_add_u32 s{sT0}, s{sT0}, s{sT1}
        s_lshl_b32 s{sT0}, s{sT0}, 10
        v_lshrrev_b32 v40, 5, v{vL}
        v_lshlrev_b32 v40, 17, v40
        v_and_b32 v41, 31, v{vL}
        v_lshl_add_u32 v40, v41, 7, v40
        buffer_load_dword v42, v40, s[{sS}:{sS+3}], s{sT0} offen
        s_add_u32 s{sT0}, s{sT0}, 0x40000
        buffer_load_dword v42, v40, s[{sS}:{sS+3}], s{sT0} offen
        s_add_u32 s{sT0}, s{sT0}, 0x40000
        buffer_load_dword v42, v40, s[{sS}:{sS+3}], s{sT0} offen
        s_lshl_b32 s{sT0}, s2, {FS}
        s_add_u32 s{sT0}, s{sT0}, {F1_OFF}
        buffer_load_dword v42, off, s[{sS}:{sS+3}], s{sT0}""")
    a("s_cmp_ge_u32 s2, 240")
    a("s_cbranch_scc1 L_prod_notile")
    for t in range(0, 4): issueWo(t)
    a(f"s_waitcnt vmcnt({36 if OPT['fast'] else 32})")
    a("s_barrier")
    st()
    get_nonce(vF+1)
    a("s_barrier")
    st()
    for t in range(4, OPT["woq"]): issueWo(t)
    st()
    a("s_barrier")
    st()
    for t in range(OPT["woq"], 16): issueWo(t)
    a("s_waitcnt vmcnt(0)")
    a("s_barrier")
    st()
    a(f"""s_mov_b32 s{sT0}, {F1_OFF}
    buffer_load_dword v{vF+3}, v{vF}, s[{sS}:{sS+3}], s{sT0} offen sc1
    s_barrier""")
    a(f"""s_waitcnt vmcnt(0)
    v_cmp_eq_u32 s[{sRdy}:{sRdy+1}], s{sN}, v{vF+3}
    s_nop 1""")
    issueO(0)
    n0 = st.n; st.n = 12; st(); st.n = n0
    issueO(1); issueO(2)
    a("s_waitcnt vmcnt(32)")
    a("s_barrier")
    st()
    issueO(3); issueO(4)
    a("s_waitcnt vmcnt(48)")
    a("s_barrier")
    issueO(5); issueO(6)
    a("s_waitcnt vmcnt(48)")
    a("s_barrier")
    issueO(7)
    a("s_waitcnt vmcnt(0)")
    a("s_barrier")
    st()
    if OPT["wbl"]:
        a(f"""s_cmp_ge_u32 s2, {OPT['wbl']}
        s_cbranch_scc1 L_done
        buffer_wbl2 sc1""")
    a("s_branch L_done")
    a("L_prod_notile:")
    a(f"""s_waitcnt vmcnt({4 if OPT['fast'] else 0})
    s_barrier
    s_branch L_done""")
    a("L_poll1:")
    a(f"""s_mov_b32 s{sCnt}, 0
    s_mov_b32 s{sT0}, {F1_OFF}
    L_poll1_loop:
    buffer_load_dword v{vF+3}, v{vF}, s[{sS}:{sS+3}], s{sT0} offen sc1
    s_add_u32 s{sCnt}, s{sCnt}, 1
    s_waitcnt vmcnt(0)
    v_cmp_eq_u32 s[{sRdy}:{sRdy+1}], s{sN}, v{vF+3}
    s_cmp_gt_u32 s{sCnt}, {OPT['spin']}
    s_cbranch_scc1 L_poll1_end
    s_andn2_b32 s{sT1}, s{sT2}, s{sRdy}
    s_cbranch_scc1 L_poll1_loop
    L_poll1_end:
    s_setpc_b64 s[4:5]""")
    if not ks:
        a("L_kv_sub:")
        for gi in range(12): kvgroup(gi)
        a("s_setpc_b64 s[4:5]")

    a("L_notprod:")
    vRB = 12; vRA = 16
    vQW, vQR, vKR, vVR, vOo, vNo, vTR = 24, 25, 26, 27, 28, 29, 30
    ACC = 32; FA = [80, 108]
    def acc(tt, i): return ACC + (tt*3 + i)*4
    if OPT["cpf"]:
        a(f"""s_cmp_lg_u32 s{sWv}, 6
        s_cbranch_scc1 L_nocpf
        s_getpc_b64 s[{sY}:{sY+1}]
        L_pcref:
        s_sub_u32 s{sY}, s{sY}, L_pcref-{KN}
        s_subb_u32 s{sY+1}, s{sY+1}, 0
        s_bfe_u32 s{sT0}, s2, 0x30003
        s_mul_i32 s{sT0}, s{sT0}, 24
        v_min_u32 v{vT}, 23, v{vL}
        v_add_u32 v{vT}, s{sT0}, v{vT}
        v_lshlrev_b32 v{vT}, 7, v{vT}
        v_min_u32 v{vT}, L_codeend-{KN}-4, v{vT}
        global_load_dword v250, v{vT}, s[{sY}:{sY+1}]
        L_nocpf:""")
    a("s_waitcnt lgkmcnt(0)")
    srd(a, sS, 48, WS_USED); srd(a, sD, 60, 256); srd(a, sY, 6, X_BYTES)
    a(f"""s_lshl_b32 s{sT0}, s2, 3
    s_add_u32 s{sT0}, s{sT0}, s{sWv}
    s_cmp_lg_u32 s{sT0}, 5
    s_cbranch_scc1 L_nononce
    s_mov_b32 s{sT0}, {E_OFF}
    buffer_load_dword v{vT}, off, s[{sS}:{sS+3}], s{sT0} sc1
    s_mov_b32 s{sT1}, 0x9e3779b1
    s_waitcnt vmcnt(0)
    v_mul_lo_u32 v{vT}, v{vT}, s{sT1}
    v_add_u32 v{vT}, 0x7f4a7c15, v{vT}
    v_max_u32 v{vT}, 1, v{vT}
    s_mov_b64 exec, 1
    buffer_store_dword v{vT}, off, s[{sD}:{sD+3}], 0 sc1
    buffer_store_dword v{vT}, off, s[{sS}:{sS+3}], s{sT0} sc1
    s_mov_b64 exec, -1
    L_nononce:""")
    a(f"""s_cmp_gt_u32 s{sWv}, 4
    s_cselect_b32 s{sT0}, 1, 0
    s_sub_u32 s{sJ}, s{sWv}, s{sT0}
    s_lshl_b32 s{sT0}, s{sJ}, 12
    s_add_u32 s{sT0}, s{sT0}, {QX}
    v_lshlrev_b32 v{vOo}, 4, v{vL}
    v_add_u32 v{vQR}, s{sT0}, v{vOo}
    s_cmp_ge_u32 s{sJ}, 3
    s_cselect_b32 s{sT2}, 12288, 0
    v_lshrrev_b32 v{vT}, 1, v{vG}
    v_xor_b32 v{vT}, v{vT}, v{vC}
    v_lshlrev_b32 v{vT}, 4, v{vT}
    v_lshl_add_u32 v{vT}, v{vC}, 8, v{vT}
    v_and_b32 v{vT+1}, 1, v{vG}
    v_lshl_add_u32 v{vT}, v{vT+1}, 3, v{vT}
    s_add_u32 s{sT0}, s{sT2}, {KBASE}
    v_add_u32 v{vKR}, s{sT0}, v{vT}
    v_lshrrev_b32 v{vT}, 2, v{vC}
    v_lshl_add_u32 v{vT}, v{vG}, 2, v{vT}
    v_and_b32 v{vT+1}, 7, v{vT}
    v_lshlrev_b32 v{vT+1}, 5, v{vT+1}
    v_lshl_add_u32 v{vT}, v{vT}, 8, v{vT+1}
    v_and_b32 v{vT+1}, 3, v{vC}
    v_lshl_add_u32 v{vTR}, v{vT+1}, 3, v{vT}
    s_add_u32 s{sT0}, s{sT2}, {VBASE}
    v_add_u32 v{vVR}, s{sT0}, v{vTR}
    s_lshr_b32 s{sB}, s{sWv}, 1
    s_and_b32 s{sDH}, s{sWv}, 1
    s_mul_i32 s{sT0}, s{sB}, 12288
    s_lshl_b32 s{sT1}, s{sDH}, 11
    s_add_u32 s{sT0}, s{sT0}, s{sT1}
    s_add_u32 s{sT0}, s{sT0}, {QX}
    v_add_u32 v{vQW}, s{sT0}, v{vOo}
    s_mul_i32 s{sT0}, s{sP}, 6
    s_add_u32 s{sT0}, s{sT0}, s{sJ}
    s_lshl_b32 s{sT0}, s{sT0}, 7
    s_lshl_b32 s{sT1}, s{sH}, 2
    s_add_u32 s{sT0}, s{sT0}, s{sT1}
    s_lshl_b32 s{sT0}, s{sT0}, 10
    v_add_u32 v{vOo}, s{sT0}, v{vOo}""")
    c = (128 ** -0.5) * math.log2(math.e)
    cb = struct.unpack('<I', struct.pack('<f', c))[0]
    a(f"s_mov_b32 s{sC}, {cb:#x}")
    a(f"s_mov_b32 s{sC+1}, {cb:#x}")
    a(f"s_cmp_lt_u32 s{sWv}, 4")
    a("s_cbranch_scc1 L_cons")
    KF, VF = 136, 184
    def k_reads():
        r = []
        for T in range(4):
            for hf in range(2):
                tmp = vT + ((2*T+hf) & 3)
                r.append(f"v_xor_b32 v{tmp}, {64*T + 32*hf}, v{vKR}")
                for kt in range(3):
                    r.append(f"ds_read_b64 {vr(KF+(kt*4+T)*4+2*hf,2)}, v{tmp} offset:{kt*4096}")
        return r
    def v_reads():
        r = []
        for t in range(8):
            tmp = vT + 4 + (t & 3)
            r.append(f"v_xor_b32 v{tmp}, {32*t}, v{vVR}")
            for q in range(3):
                r.append(f"ds_read_b64_tr_b16 {vr(VF+t*6+2*q,2)}, v{tmp} offset:{q*4096}")
        return r
    st.n = 1; st()
    for kk in range(10):
        a("s_barrier")
        if kk in (0, 3, 7, 9): st()
        if kk == 6: a(f"s_load_dword s{sN}, s[60:61], 0")
    for x in k_reads(): a(x)
    a("s_branch L_qx")
    a("L_cons:")
    a(f"""s_mul_i32 s{sT0}, s{sB}, {48*128}
    v_and_b32 v{vT}, 7, v{vC}
    v_xor_b32 v{vT}, v{vT}, v{vG}
    v_lshlrev_b32 v{vT}, 4, v{vT}
    v_lshl_add_u32 v{vT}, v{vC}, 7, v{vT}
    v_add_u32 v{vRB}, s{sT0}, v{vT}
    v_xor_b32 v{vRB+2}, 64, v{vRB}
    v_add_u32 v{vRB+1}, {2*SLOT}, v{vRB}
    v_add_u32 v{vRB+3}, {2*SLOT}, v{vRB+2}
    v_lshrrev_b32 v{vT}, 2, v{vC}
    v_lshl_add_u32 v{vT+1}, v{vG}, 3, v{vT}
    v_lshlrev_b32 v{vT+1}, 8, v{vT+1}
    v_and_b32 v{vT+2}, 1, v{vG}
    v_lshlrev_b32 v{vT+2}, 3, v{vT+2}
    v_lshl_add_u32 v{vT+2}, v{vT}, 1, v{vT+2}
    v_and_b32 v{vT+3}, 3, v{vC}
    v_lshlrev_b32 v{vT+3}, 3, v{vT+3}
    v_add_u32 v{vT+1}, v{vT+1}, v{vT+3}
    v_add_u32 v{vT+1}, 12288, v{vT+1}
    s_lshl_b32 s{sT0}, s{sDH}, 3
    v_xor_b32 v{vT+2}, s{sT0}, v{vT+2}
    v_lshl_add_u32 v{vRA}, v{vT+2}, 4, v{vT+1}""")
    for tt in range(1, 4):
        a(f"v_xor_b32 v{vRA+2*tt}, {32*tt}, v{vRA}")
    for tt in range(4):
        a(f"v_add_u32 v{vRA+2*tt+1}, {2*SLOT}, v{vRA+2*tt}")
    def reads(kk, sub, fs):
        slot = kk % NSLOT; hi = slot >> 1; so = (slot & 1)*SLOT; F = FA[fs]
        r = [f"ds_read_b128 {vr(F+16,4)}, v{vRB+2*sub+hi} offset:{so}"]
        for tt in range(4):
            for q in range(2):
                r.append(f"ds_read_b64_tr_b16 {vr(F+4*tt+2*q,2)}, v{vRA+2*tt+hi} offset:{so + (32*sub + 4*q)*256}")
        for i in range(1, 3):
            r.append(f"ds_read_b128 {vr(F+16+4*i,4)}, v{vRB+2*sub+hi} offset:{so + i*2048}")
        return r
    def mfmas(fs, first):
        F = FA[fs]; r = []
        for i in range(3):
            for tt in range(4):
                cc = "0" if first else vr(acc(tt,i),4)
                r.append(f"v_mfma_f32_16x16x32_bf16 {vr(acc(tt,i),4)}, {vr(F+4*tt,4)}, {vr(F+16+4*i,4)}, {cc}")
        return r
    st.n = 1; st()
    for kk in range(9):
        a("s_barrier")
        if kk in (0, 3, 7): st()
        if kk == 6: a(f"s_load_dword s{sN}, s[60:61], 0")
        mix(a, mfmas(1, False) if kk else [], reads(kk, 0, 0))
        a("s_waitcnt lgkmcnt(0)")
        mix(a, mfmas(0, kk == 0), reads(kk, 1, 1))
        a("s_waitcnt lgkmcnt(0)")
    QW = 232
    def qcvt(i):
        r = []
        for T in range(2):
            d = QW + (i*2+T)*4
            for u in range(2):
                s_ = acc(2*T+u, i)
                r.append(f"v_cvt_pk_bf16_f32 v{d+2*u}, v{s_}, v{s_+1}")
                r.append(f"v_cvt_pk_bf16_f32 v{d+2*u+1}, v{s_+2}, v{s_+3}")
            r.append(f"ds_write_b128 v{vQW}, {vr(d,4)} offset:{i*4096 + T*1024}")
        return r
    kr = k_reads()
    m0_, m1_ = mfmas(0, False), mfmas(1, False)
    if OPT["pre8"]:
        for m in m1_: a(m)
        a("s_barrier")
        st()
        for x in reads(9, 0, 0): a(x)
        r1 = reads(9, 1, 1)
        for x in r1[:2]: a(x)
        a("s_waitcnt lgkmcnt(4)")
        mix(a, m0_[:4], r1[2:], per=3, lead=False)
        a("s_waitcnt lgkmcnt(11)")
        mix(a, m0_[4:], kr[:16], lead=False)
        a("s_waitcnt lgkmcnt(12)")
    else:
        a("s_barrier")
        st()
        mix(a, m1_, reads(9, 0, 0))
        a("s_waitcnt lgkmcnt(0)")
        mix(a, m0_, reads(9, 1, 1) + kr[:16], per=3)
        a("s_waitcnt lgkmcnt(12)")
    mix(a, m1_[:8], kr[16:], lead=False)
    mix(a, m1_[8:], qcvt(0), per=3, lead=False)
    for x in qcvt(1): a(x)
    for x in qcvt(2): a(x)
    a("L_qx:")
    a("s_waitcnt lgkmcnt(0)")
    a("s_barrier")
    st()
    QF = 56; SA = 32; PF = 44; OA = 80
    a(f"""v_mov_b32 v{vNo}, 0
    v_mov_b32 v{vQW}, {CNT}
    ds_write_b32 v{vQW}, v{vNo}""")
    for T in range(4):
        a(f"ds_read_b128 {vr(QF+4*T,4)}, v{vQR} offset:{T*1024}")
    vrd = v_reads()
    for x in vrd[:12]: a(x)
    a("s_waitcnt lgkmcnt(9)")
    sm_ = []
    for T in range(4):
        for kt in range(3):
            cc = "0" if T == 0 else vr(SA+4*kt,4)
            sm_.append(f"v_mfma_f32_16x16x32_bf16 {vr(SA+4*kt,4)}, {vr(KF+(kt*4+T)*4,4)}, {vr(QF+4*T,4)}, {cc}")
    mix(a, sm_, vrd[12:], lead=False)
    M, M2, Ls, L2 = 4, 5, 6, 7
    v = [SA+j for j in range(12)]
    a(f"""s_nop 5
    v_max3_f32 v{M}, v{v[0]}, v{v[1]}, v{v[2]}
    v_max3_f32 v{M2}, v{v[3]}, v{v[4]}, v{v[5]}
    v_max3_f32 v{Ls}, v{v[6]}, v{v[7]}, v{v[8]}
    v_max3_f32 v{L2}, v{v[9]}, v{v[10]}, v{v[11]}
    v_max3_f32 v{M}, v{M}, v{M2}, v{Ls}
    v_max_f32 v{M}, v{M}, v{L2}""")
    for sw in ("v_permlane32_swap_b32", "v_permlane16_swap_b32"):
        a(f"""v_mov_b32 v{M2}, v{M}
        s_nop 1
        {sw} v{M}, v{M2}
        v_max_f32 v{M}, v{M}, v{M2}""")
    a(f"v_mul_f32 v{M}, s{sC}, v{M}")
    for j in range(6):
        a(f"v_pk_fma_f32 {vr(SA+2*j,2)}, {vr(SA+2*j,2)}, s[{sC}:{sC+1}], {vr(M,2)} op_sel_hi:[1,1,0] neg_lo:[0,0,1] neg_hi:[0,0,1]")
    for x in v: a(f"v_exp_f32 v{x}, v{x}")
    a("s_waitcnt lgkmcnt(0)")
    for j in range(6):
        a(f"v_cvt_pk_bf16_f32 v{PF+j}, v{SA+2*j}, v{SA+2*j+1}")
    a(f"v_pk_add_f32 {vr(Ls,2)}, {vr(SA,2)}, {vr(SA+2,2)}")
    pv = [f"v_mfma_f32_16x16x32_bf16 {vr(OA+4*t,4)}, {vr(VF+t*6,4)}, {vr(PF,4)}, 0" for t in range(8)]
    pv += [f"v_mfma_f32_16x16x16_bf16 {vr(OA+4*t,4)}, {vr(VF+t*6+4,2)}, {vr(PF+4,2)}, {vr(OA+4*t,4)}" for t in range(8)]
    sm = [f"v_pk_add_f32 {vr(M,2)}, {vr(SA+4,2)}, {vr(SA+6,2)}",
          f"v_pk_add_f32 {vr(Ls,2)}, {vr(Ls,2)}, {vr(SA+8,2)}",
          f"v_pk_add_f32 {vr(M,2)}, {vr(M,2)}, {vr(SA+10,2)}",
          f"v_pk_add_f32 {vr(Ls,2)}, {vr(Ls,2)}, {vr(M,2)}",
          f"v_add_f32 v{Ls}, v{Ls}, v{L2}",
          f"v_mov_b32 v{L2}, v{Ls}", "s_nop 0",
          f"v_permlane32_swap_b32 v{Ls}, v{L2}",
          f"v_add_f32 v{Ls}, v{Ls}, v{L2}",
          f"v_mov_b32 v{L2}, v{Ls}", "s_nop 0",
          f"v_permlane16_swap_b32 v{Ls}, v{L2}",
          f"v_add_f32 v{Ls}, v{Ls}, v{L2}",
          f"v_rcp_f32 v{Ls}, v{Ls}"]
    mix(a, pv, sm, per=1)
    a("s_nop 0")
    for T in range(4):
        d = QF + 4*T
        for u in range(2):
            s_ = OA + 4*(2*T+u)
            a(f"v_pk_mul_f32 {vr(s_,2)}, {vr(s_,2)}, {vr(Ls,2)} op_sel_hi:[1,0]")
            a(f"v_pk_mul_f32 {vr(s_+2,2)}, {vr(s_+2,2)}, {vr(Ls,2)} op_sel_hi:[1,0]")
        for u in range(2):
            s_ = OA + 4*(2*T+u)
            a(f"v_cvt_pk_bf16_f32 v{d+2*u}, v{s_}, v{s_+1}")
            a(f"v_cvt_pk_bf16_f32 v{d+2*u+1}, v{s_+2}, v{s_+3}")
        a(f"buffer_store_dwordx4 {vr(d,4)}, v{vOo}, s[{sS}:{sS+3}], 0 offen offset:{T*1024} {'' if OPT['fast'] else 'sc1'}")
    st()
    a("s_barrier")
    get_nonce(vNo)
    a(f"""v_mov_b32 v{vT}, 1
    v_mov_b32 v{vNo}, s{sN}
    v_lshlrev_b32 v31, 2, v{vL}
    s_lshl_b32 s{sT0}, s2, {FS}
    s_add_u32 s{sT0}, s{sT0}, {F1_OFF}
    s_mov_b64 exec, 1
    s_waitcnt vmcnt(0)
    ds_add_rtn_u32 v{vT+1}, v{vQW}, v{vT}
    s_waitcnt lgkmcnt(0)
    v_readfirstlane_b32 s{sT1}, v{vT+1}
    s_mov_b32 exec_lo, -1
    s_cmp_lg_u32 s{sT1}, 5
    s_cbranch_scc1 L_noflag
    buffer_store_dword v{vNo}, v31, s[{sS}:{sS+3}], s{sT0} offen {'' if OPT['fast'] else 'sc1'}
    L_noflag:
    s_mov_b64 exec, -1
    s_cmp_ge_u32 s2, 240
    s_cbranch_scc1 L_done
    s_cmp_lt_u32 s{sWv}, 4
    s_cbranch_scc1 L_ph2
    s_barrier
    s_barrier
    s_endpgm
    L_ph2:""")
    st()
    vRA2, vB0, vB1, vB2, vPo, vF2, vPw, vOut = 12, 16, 17, 18, 25, 26, 27, 28
    sSig = 40
    AR = 32; BS = [160, 192]; AC = [224, 232]; ST = [240, 244]
    decode_tile()
    a(f"""s_lshl_b32 s{sT0}, s{sWv}, 6
    v_xor_b32 v{vRA2}, s{sT0}, v{vTR}
    v_xor_b32 v{vRA2+2}, 32, v{vRA2}
    v_add_u32 v{vRA2+1}, 0x10000, v{vRA2}
    v_add_u32 v{vRA2+3}, 0x10000, v{vRA2+2}
    v_lshlrev_b32 v{vB0}, 4, v{vL}
    v_add_u32 v{vB1}, 0x10000, v{vB0}
    v_add_u32 v{vB2}, 0x20000, v{vB0}
    s_mul_i32 s{sSig}, s{sTB}, 13
    s_lshr_b32 s{sSig}, s{sSig}, 3
    s_lshl_b32 s{sSig}, s{sSig}, 15
    s_andn2_b32 s{sT0}, s2, 7
    s_lshl_b32 s{sT0}, s{sT0}, 3
    s_add_u32 s{sT0}, s{sT0}, s{sJ}
    s_lshl_b32 s{sT0}, s{sT0}, 12
    s_lshl_b32 s{sT1}, s{sWv}, 10
    s_add_u32 s{sT0}, s{sT0}, s{sT1}
    s_add_u32 s{sT0}, s{sT0}, {P_OFF}
    v_add_u32 v{vPw}, s{sT0}, v{vB0}
    s_lshl_b32 s{sT0}, s2, 15
    s_add_u32 s{sT0}, s{sT0}, s{sT1}
    s_add_u32 s{sT0}, s{sT0}, {P_OFF}
    v_add_u32 v{vPo}, s{sT0}, v{vB0}
    s_lshl_b32 s{sT0}, s2, {FS}
    s_add_u32 s{sCls}, s{sT0}, {F2_OFF}
    s_andn2_b32 s{sT0}, s2, 7
    v_and_b32 v{vF2}, 7, v{vL}
    v_add_u32 v{vF2}, s{sT0}, v{vF2}
    v_lshlrev_b32 v{vF2}, {FS}, v{vF2}
    s_lshl_b32 s{sT0}, s{sTA}, 3
    s_add_u32 s{sT0}, s{sT0}, s{sJ}
    s_mul_i32 s{sT0}, s{sT0}, {16*1280}
    s_lshl_b32 s{sT1}, s{sTB}, 8
    s_add_u32 s{sT0}, s{sT0}, s{sT1}
    s_lshl_b32 s{sT1}, s{sWv}, 6
    s_add_u32 s{sT0}, s{sT0}, s{sT1}
    v_mul_u32_u24 v{vOut}, 1280, v{vC}
    v_lshl_add_u32 v{vOut}, v{vG}, 3, v{vOut}
    v_add_u32 v{vOut}, s{sT0}, v{vOut}
    s_barrier""")
    st()
    for t in range(16):
        ad = WOBLK[t]*8192; hi = ad >> 16; lo = ad & 0xffff
        for tt in range(2):
            for q in range(2):
                a(f"ds_read_b64_tr_b16 {vr(AR+(t*2+tt)*4+2*q,2)}, v{vRA2+2*tt+hi} offset:{lo + q*4096}")
    a("s_waitcnt lgkmcnt(0)")
    a("s_barrier")
    def breads(hp):
        u, hf = hp >> 1, hp & 1
        ad = OREG(u) + hf*8192
        base = [vB0, vB1, vB2][ad >> 16]
        return [f"ds_read_b128 {vr(BS[hf]+4*k,4)}, v{base} offset:{(ad & 0xffff) + k*1024}" for k in range(8)]
    def mf2(hp):
        u, hf = hp >> 1, hp & 1
        r = []
        for k in range(8):
            for tt in range(2):
                d = AC[u & 1] + 4*tt
                cc = "0" if (hf == 0 and k == 0) else vr(d,4)
                r.append(f"v_mfma_f32_16x16x32_bf16 {vr(d,4)}, {vr(AR+((hf*8+k)*2+tt)*4,4)}, {vr(BS[hf]+4*k,4)}, {cc}")
        return r
    def pstore(u):
        s_ = AC[u & 1]; d = ST[u & 1]
        return [f"v_cvt_pk_bf16_f32 v{d+j}, v{s_+2*j}, v{s_+2*j+1}" for j in range(4)] + \
               [f"buffer_store_dwordx4 {vr(d,4)}, v{vPw}, s[{sS}:{sS+3}], s{sSig} offen sc1",
                f"s_add_u32 s{sSig}, s{sSig}, 0x8000", f"s_and_b32 s{sSig}, s{sSig}, 0x3ffff"]
    for hp in range(17):
        u = hp >> 1
        if hp < 16 and (hp & 1) == 0 and u in (0, 1, 2, 4):
            a("s_barrier")
            if u in (0, 4): st()
        side = breads(hp) if hp < 16 else []
        mf = mf2(hp - 1) if hp >= 1 else []
        extra = pstore(u - 1) if (hp & 1) == 1 and u >= 1 else []
        mix(a, mf[:8], side, per=1)
        mix(a, mf[8:], extra, per=1)
        a("s_waitcnt lgkmcnt(0)")
    a("s_nop 6")
    for x in pstore(7): a(x)
    st()
    a(f"""s_waitcnt vmcnt(0)
    s_barrier
    s_cmp_lg_u32 s{sWv}, 0
    s_cbranch_scc1 L_p2wait
    s_mov_b32 exec_hi, 0
    buffer_store_dword v{vNo}, v31, s[{sS}:{sS+3}], s{sCls} offen sc1
    s_mov_b64 exec, -1
    s_mov_b32 s{sCnt}, 0
    s_mov_b32 s{sT0}, {F2_OFF}
    L_poll2:
    buffer_load_dword v{vT}, v{vF2}, s[{sS}:{sS+3}], s{sT0} offen sc1
    s_add_u32 s{sCnt}, s{sCnt}, 1
    s_waitcnt vmcnt(0)
    v_cmp_ne_u32 vcc, s{sN}, v{vT}
    s_cmp_gt_u32 s{sCnt}, {OPT['spin']}
    s_cbranch_scc1 L_p2wait
    s_cbranch_vccnz L_poll2
    L_p2wait:
    s_barrier""")
    st()
    for j in range(8):
        a(f"s_mov_b32 s{sT0}, {j*4096}")
        a(f"buffer_load_dwordx4 {vr(32+4*j,4)}, v{vPo}, s[{sS}:{sS+3}], s{sT0} offen sc1")
    a(f"s_mov_b32 s{sT1}, 0xffff0000")
    S = 64
    for j in range(8):
        a(f"s_waitcnt vmcnt({7-j})")
        for d in range(4):
            x = 32 + 4*j + d
            if j == 0:
                a(f"v_lshlrev_b32 v{S+2*d}, 16, v{x}")
                a(f"v_and_b32 v{S+2*d+1}, s{sT1}, v{x}")
            else:
                a(f"v_lshlrev_b32 v{vT+2*(d&1)}, 16, v{x}")
                a(f"v_and_b32 v{vT+2*(d&1)+1}, s{sT1}, v{x}")
                a(f"v_pk_add_f32 {vr(S+2*d,2)}, {vr(S+2*d,2)}, {vr(vT+2*(d&1),2)}")
    for d in range(4):
        a(f"v_cvt_pk_bf16_f32 v{32+d}, v{S+2*d}, v{S+2*d+1}")
    a(f"buffer_store_dwordx2 v[32:33], v{vOut}, s[{sY}:{sY+3}], 0 offen")
    a(f"buffer_store_dwordx2 v[34:35], v{vOut}, s[{sY}:{sY+3}], 0 offen offset:32")
    a("L_done:")
    st.dump(0, sWv, 48, vT)
    a("L_end:")
    a("s_endpgm")
    a("L_codeend:")

def main(out):
    a = Asm(); gen(a)
    t = HDR
    t += f"; @launch grid=(256,1,1) block=(448,1,1) lds=163840\n"
    t += '.amdgcn_target "amdgcn-amd-amdhsa--gfx950"\n.text\n'
    t += f".globl {KN}\n.p2align 8\n.type {KN},@function\n{KN}:\n" + a.text()
    t += '.section .rodata,"a"\n.p2align 6\n' + kd(KN, 256, 102 if OPT["stamp"] else 64)
    open(out, "w").write(t)

if __name__ == "__main__":
    for kv in sys.argv[2:]:
        k, v = kv.split("=")
        OPT[k] = int(v) if v.lstrip("-").isdigit() else v.replace("_", " ")
    main(sys.argv[1])
```

```python
import sys, re
src = open(sys.argv[1]).read()
wave, idx, agg, mult = int(sys.argv[3]), int(sys.argv[4]), sys.argv[5], int(sys.argv[6])
KN = "standalone__mha_block_cached__near_ridge_kernel"
op = dict(max="s_max_i32 s16, s16, s8", min="s_min_i32 s16, s16, s8", avg="s_add_i32 s16, s16, s8")[agg]
init = dict(max="0x80000000", min="0x7fffffff", avg="0")[agg]
fin = "s_mul_i32 s16, s16, 273\n s_ashr_i32 s16, s16, 16" if agg == "avg" else ""
k = f""".globl diag_kernel
.p2align 8
.type diag_kernel,@function
diag_kernel:
 s_cmp_lg_u32 s2, 0
 s_cbranch_scc1 L_diag_end
 s_load_dwordx2 s[4:5], s[0:1], 56
 s_waitcnt lgkmcnt(0)
 s_add_u32 s6, s4, {0x4000000 + wave*64}
 s_addc_u32 s7, s5, 0
 s_load_dword s18, s[6:7], 0
 s_mov_b32 s16, {init}
 s_mov_b32 s17, 0x7fffffff
 s_mov_b32 s19, 0
L_diag_loop:
 s_load_dword s8, s[6:7], {idx*4}
 s_load_dword s9, s[6:7], 0
 s_waitcnt lgkmcnt(0)
 s_sub_i32 s8, s8, s18
 s_sub_i32 s9, s9, s18
 {op}
 s_min_i32 s17, s17, s9
 s_add_u32 s6, s6, 512
 s_addc_u32 s7, s7, 0
 s_add_u32 s19, s19, 1
 s_cmp_lt_u32 s19, 240
 s_cbranch_scc1 L_diag_loop
 {fin}
 s_sub_i32 s10, s16, s17
 s_min_u32 s10, s10, 5000
 s_mul_i32 s10, s10, {mult}
 s_memrealtime s[12:13]
 s_waitcnt lgkmcnt(0)
L_diag_spin:
 s_memrealtime s[14:15]
 s_waitcnt lgkmcnt(0)
 s_sub_u32 s11, s14, s12
 s_cmp_lt_u32 s11, s10
 s_cbranch_scc1 L_diag_spin
L_diag_end:
 s_endpgm
"""
src = re.sub(r"; @launch (grid=\S+ block=\S+ lds=\d+)", lambda m: f"; @launch kernel={KN} {m.group(1)}\n; @launch kernel=diag_kernel grid=(1,1,1) block=(64,1,1) lds=0", src)
t = src.replace('.section .rodata,"a"', k + '.section .rodata,"a"', 1)
t += """.p2align 6
.amdhsa_kernel diag_kernel
  .amdhsa_next_free_vgpr 8
  .amdhsa_next_free_sgpr 32
  .amdhsa_accum_offset 8
  .amdhsa_group_segment_fixed_size 0
  .amdhsa_kernarg_size 64
  .amdhsa_user_sgpr_count 2
  .amdhsa_user_sgpr_kernarg_segment_ptr 1
  .amdhsa_system_sgpr_workgroup_id_x 1
.end_amdhsa_kernel
"""
open(sys.argv[2], "w").write(t)
```

```python
import sys, math, struct
from gen2 import Asm, vr, HDR, kd, srd, X_BYTES, KV_BYTES, W_BYTES, O_BYTES
import gen2
OPT = gen2.OPT
OPT.update(dict(stamp=False, ntx="", ntw="", ntkv="", ntwo="", kvc='x24682468', rot=1, xrot=1, la=2,
                spin=400000, cpf=1, woq=9, kvspread=0, kvend=5, pre8=1, sigm=0, bset='x01234567', osched='x345678', fsplit=5, fblk=16, rper=2, imaj=1, prio=0, outf='', psl=0, f1full=1, fast=0, old='sc1', wbl=0))
Stamper = gen2.Stamper
KN = "standalone__mha_block_cached__near_ridge_kernel"

SLOT = 28672; NSLOT = 4
KBASE = SLOT*NSLOT; VBASE = KBASE + 24576
QX = 11*8192
WOBLK = [7,8,9,10, 0,1,2,3,4,5,6,14,15, 11,12,13]
def OREG(u): return 131072 + u*16384 if u < 2 else (u-2)*16384
P_OFF = 0x800000
F1_OFF = 0x1000000; E_OFF = 0x1080000; F2_OFF = 0x1100000; WS_USED = 0x1200000
FS = 7
CNT = 131072

def mix(a, main, side, per=2, lead=True):
    main = list(main); side = list(side)
    while main or side:
        if not lead and main: a(main.pop(0))
        for _ in range(per):
            if side: a(side.pop(0))
        if lead and main: a(main.pop(0))

def gen(a):
    sX, sK, sV, sW, sS, sD, sY = 8, 12, 16, 20, 24, 52, 56
    sH, sP, sWv, sB, sDH = 28, 29, 30, 31, 32
    sT0, sT1, sT2 = 33, 34, 35
    sOW, sOX, sKV, sCls, sC, sJ = 36, 37, 38, 39, 50, 51
    sN, sTA, sTB, sCnt = 3, 6, 7, 37
    vL, vG, vC, vT = 1, 2, 3, 4
    lab = [0]
    def L():
        lab[0] += 1; return f"L{lab[0]}"
    a("s_cmp_ge_u32 s2, 256")
    a("s_cbranch_scc1 L_end")
    st = Stamper(a, 62); st()
    a(f"""s_load_dwordx8 s[40:47], s[0:1], 0
    s_load_dwordx4 s[4:7], s[0:1], 32
    s_load_dwordx2 s[60:61], s[0:1], 48
    s_load_dwordx2 s[48:49], s[0:1], 56
    v_lshrrev_b32 v{vT}, 6, v0
    v_and_b32 v{vL}, 63, v0
    v_readfirstlane_b32 s{sWv}, v{vT}
    v_lshrrev_b32 v{vG}, 4, v{vL}
    v_and_b32 v{vC}, 15, v{vL}
    s_and_b32 s{sT0}, s2, 7
    s_lshl_b32 s{sT0}, s{sT0}, 2
    s_bfe_u32 s{sT1}, s2, 0x20003
    s_add_u32 s{sH}, s{sT0}, s{sT1}
    s_lshr_b32 s{sP}, s2, 5
    s_cmp_lg_u32 s{sWv}, 4
    s_cbranch_scc1 L_notprod""")
    kvs = [int(c) for c in str(OPT["kvc"])[1:]]
    def set_cls():
        a(f"""s_lshl_b32 s{sT0}, s{sP}, 2
        s_lshr_b32 s{sCls}, {sum(k << (4*i) for i, k in enumerate(kvs))}, s{sT0}
        s_and_b32 s{sCls}, s{sCls}, 0xf""")

    def get_nonce(vreg):
        l0, l1 = L(), L()
        a(f"s_waitcnt lgkmcnt(0)")
        a(f"s_mov_b32 s{sCnt}, 0")
        a(f"{l0}:")
        a(f"""s_cmp_lg_u32 s{sN}, 0
        s_cbranch_scc1 {l1}
        s_cmp_gt_u32 s{sCnt}, {OPT['spin']}
        s_cbranch_scc1 {l1}
        buffer_load_dword v{vreg}, off, s[{sD}:{sD+3}], 0 sc1
        s_add_u32 s{sCnt}, s{sCnt}, 1
        s_waitcnt vmcnt(0)
        v_readfirstlane_b32 s{sN}, v{vreg}
        s_nop 0
        s_branch {l0}""")
        a(f"{l1}:")
    def decode_tile():
        a(f"""s_lshr_b32 s{sT0}, s2, 3
        s_mul_i32 s{sTA}, s{sT0}, 52
        s_lshr_b32 s{sTA}, s{sTA}, 8
        s_mul_i32 s{sTB}, s{sTA}, 5
        s_sub_u32 s{sTB}, s{sT0}, s{sTB}
        s_and_b32 s{sJ}, s2, 7""")

    vW, vX, vK, vV = 12, 16, 20, 24
    if OPT["rot"] == 1:
        a(f"""s_mul_i32 s{sT0}, s{sT1}, 5
        s_add_u32 s{sT0}, s{sT0}, 1
        s_lshr_b32 s{sT0}, s{sT0}, 1
        s_add_u32 s{sT2}, s{sT0}, s{sP}""")
    elif OPT["rot"] >= 2:
        R = OPT["rot"]
        tab = [round(10*i/R) % 10 for i in range(R)]
        lut = sum(tab[(x % R)] << (4*x) for x in range(11))
        a(f"""s_add_u32 s{sT0}, s{sT1}, s{sP}
        s_lshl_b32 s{sT0}, s{sT0}, 2
        s_mov_b32 s36, {lut & 0xffffffff}
        s_mov_b32 s37, {lut >> 32}
        s_lshr_b64 s[36:37], s[36:37], s{sT0}
        s_and_b32 s{sT2}, s36, 15""")
    else:
        a(f"s_mov_b32 s{sT2}, 0")
    if OPT["xrot"]:
        a(f"""s_and_b32 s{sT0}, s2, 7
        s_add_u32 s{sT2}, s{sT2}, s{sT0}
        s_cmp_ge_u32 s{sT2}, 10
        s_cselect_b32 s{sT0}, 10, 0
        s_sub_u32 s{sT2}, s{sT2}, s{sT0}""")
    if OPT["rot"] == 1:
        a(f"""s_cmp_ge_u32 s{sT2}, 10
        s_cselect_b32 s{sT0}, 10, 0
        s_sub_u32 s{sT2}, s{sT2}, s{sT0}""")
    a(f"""s_lshl_b32 s{sOW}, s{sT2}, 19
    s_lshl_b32 s{sOX}, s{sT2}, 7
    s_lshl_b32 s{sT0}, s{sH}, 8
    v_lshlrev_b32 v{vT}, 1, v{vG}
    v_xor_b32 v{vT}, v{vT}, v{vC}
    v_lshlrev_b32 v{vT}, 4, v{vT}
    v_lshl_add_u32 v{vW}, v{vG}, 13, v{vT}
    v_add_u32 v{vW}, s{sT0}, v{vW}
    v_add_u32 v{vW+1}, {4*8192 - 1024}, v{vW}
    v_xor_b32 v{vW+2}, 0x80, v{vW}
    v_add_u32 v{vW+3}, {12*8192 - 3072}, v{vW+2}
    v_add_u32 v{vW+2}, {8*8192 - 2048}, v{vW+2}
    s_mul_i32 s{sT0}, s{sP}, {96*1280}
    v_lshrrev_b32 v{vT+1}, 3, v{vL}
    v_and_b32 v{vT+2}, 7, v{vL}
    v_xor_b32 v{vT+2}, v{vT+2}, v{vT+1}
    v_lshlrev_b32 v{vT+2}, 4, v{vT+2}
    v_mul_u32_u24 v{vX}, 1280, v{vT+1}
    v_add3_u32 v{vX}, v{vX}, v{vT+2}, s{sT0}
    v_add_u32 v{vX+1}, {8*1280 - 1024}, v{vX}
    v_add_u32 v{vX+2}, {16*1280 - 2048}, v{vX}
    v_add_u32 v{vX+3}, {24*1280 - 3072}, v{vX}
    s_waitcnt lgkmcnt(0)""")
    srd(a, sW, 46, W_BYTES); srd(a, sX, 40, X_BYTES)
    sSlot, sI = 31, 32
    def issueG():
        for jj in range(4):
            a(f"s_add_u32 m0, s{sSlot}, {12288 + jj*4096}")
            a(f"s_add_u32 s{sT0}, s{sOW}, {jj*16*8192}")
            for i in range(4):
                a(f"buffer_load_dwordx4 v{vW+i}, s[{sW}:{sW+3}], s{sT0} offen offset:{i*1024} {OPT['ntw']} lds")
        for jj in range(3):
            a(f"s_add_u32 m0, s{sSlot}, {jj*4096}")
            a(f"s_add_u32 s{sT0}, s{sOX}, {jj*32*1280}")
            for i in range(4):
                a(f"buffer_load_dwordx4 v{vX+i}, s[{sX}:{sX+3}], s{sT0} offen offset:{i*1024} {OPT['ntx']} lds")
        a(f"""s_add_u32 s{sOW}, s{sOW}, {64*8192}
        s_add_u32 s{sOX}, s{sOX}, 128
        s_cmp_ge_u32 s{sOX}, 1280
        s_cselect_b32 s{sOW}, 0, s{sOW}
        s_cselect_b32 s{sOX}, 0, s{sOX}
        s_add_u32 s{sSlot}, s{sSlot}, {SLOT}
        s_cmp_ge_u32 s{sSlot}, {NSLOT*SLOT}
        s_cselect_b32 s{sSlot}, 0, s{sSlot}""")
    a(f"""s_mov_b32 s{sSlot}, 0
    s_mov_b32 s{sI}, 1""")
    issueG()
    srd(a, sK, 42, KV_BYTES); srd(a, sV, 44, KV_BYTES)
    a(f"""s_lshl_b32 s{sKV}, s{sP}, 6
    s_add_u32 s{sKV}, s{sKV}, s{sH}
    s_mul_i32 s{sKV}, s{sKV}, 12288
    v_xor_b32 v{vT+1}, v{vC}, v{vG}
    v_lshlrev_b32 v{vT+1}, 4, v{vT+1}
    v_lshl_add_u32 v{vK}, v{vG}, 8, v{vT+1}
    v_xor_b32 v{vK+1}, 64, v{vK}
    v_xor_b32 v{vK+2}, 128, v{vK}
    v_xor_b32 v{vK+3}, 192, v{vK}
    v_lshl_add_u32 v{vV}, v{vG}, 8, v{vT}
    v_xor_b32 v{vV+1}, 128, v{vV}""")
    set_cls()
    sWo = 56
    vW2, vO, vF = 28, 32, 36
    sR2, sRho, sSig, sSplit, sRdy = 50, 40, 41, 42, 44
    srd(a, sWo, 4, W_BYTES); srd(a, sS, 48, WS_USED); srd(a, sD, 60, 256)
    decode_tile()
    a(f"""s_mul_i32 s{sT0}, s{sJ}, {512*1280}
    s_lshl_b32 s{sT1}, s{sTB}, 8
    s_add_u32 s{sT0}, s{sT0}, s{sT1}
    v_mul_u32_u24 v{vW2}, 1280, v{vG}
    v_add3_u32 v{vW2}, v{vW2}, v{vT}, s{sT0}
    v_xor_b32 v{vW2+1}, 0x80, v{vW2}
    v_add_u32 v{vW2+2}, {8*1280 - 2048}, v{vW2}
    v_add_u32 v{vW2+3}, {12*1280 - 3072}, v{vW2+1}
    v_add_u32 v{vW2+1}, {4*1280 - 1024}, v{vW2+1}
    s_lshl_b32 s{sT0}, s{sTA}, 10
    s_lshl_b32 s{sT1}, s{sJ}, 4
    s_add_u32 s{sT0}, s{sT0}, s{sT1}
    s_lshl_b32 s{sT0}, s{sT0}, 10
    v_lshlrev_b32 v{vO}, 4, v{vL}
    v_add_u32 v{vO}, s{sT0}, v{vO}
    s_mul_i32 s{sT0}, s{sTA}, 43
    s_lshr_b32 s{sT0}, s{sT0}, 5
    s_mul_i32 s{sSplit}, s{sT0}, 6
    s_add_u32 s{sSplit}, s{sSplit}, 6
    s_lshl_b32 s{sT1}, s{sTA}, 3
    s_sub_u32 s{sSplit}, s{sSplit}, s{sT1}
    s_lshl_b32 s{sT0}, s{sT0}, 5
    s_add_u32 s{sT0}, s{sT0}, s{sJ}
    v_and_b32 v{vF}, 7, v{vL}
    v_lshl_add_u32 v{vF}, v{vF}, 3, s{sT0}
    v_lshlrev_b32 v{vF}, {FS}, v{vF}
    v_lshlrev_b32 v{vF+2}, 2, v{vL}
    s_and_b32 s{sRho}, s{sTA}, 3
    s_lshl_b32 s{sR2}, s{sRho}, 2
    s_lshl_b32 s{sRho}, s{sRho}, 12
    s_add_u32 s{sSig}, s{sJ}, 1
    s_and_b32 s{sSig}, s{sSig}, 7
    s_mov_b32 s{sRdy}, 0""")
    def issueWo(t):
        a(f"s_mul_i32 s{sT1}, s{sR2}, {32*1280}")
        for jj in range(2):
            a(f"s_mov_b32 m0, {WOBLK[t]*8192 + jj*4096}")
            a(f"s_add_u32 s{sT0}, s{sT1}, {jj*16*1280}")
            for i in range(4):
                a(f"buffer_load_dwordx4 v{vW2+i}, s[{sWo}:{sWo+3}], s{sT0} offen offset:{i*1024} {OPT['ntwo']} lds")
        a(f"""s_add_u32 s{sR2}, s{sR2}, 1
        s_and_b32 s{sR2}, s{sR2}, 15""")
    def issueO(u):
        l1 = L()
        a(f"""s_cmp_lt_u32 s{sSig}, s{sSplit}
        s_cselect_b32 s{sT2}, 0xf, 0xf0
        s_andn2_b32 s{sT1}, s{sT2}, s{sRdy}
        s_cbranch_scc0 {l1}
        s_call_b64 s[4:5], L_poll1""")
        a(f"{l1}:")
        a(f"s_lshl_b32 s{sT1}, s{sSig}, 17")
        for G in range(4):
            a(f"s_mov_b32 m0, {OREG(u) + G*4096}")
            a(f"s_add_u32 s{sT0}, s{sT1}, s{sRho}")
            for i in range(4):
                a(f"buffer_load_dwordx4 v{vO}, s[{sS}:{sS+3}], s{sT0} offen offset:{i*1024} sc1 lds")
            a(f"""s_add_u32 s{sRho}, s{sRho}, 4096
            s_and_b32 s{sRho}, s{sRho}, 0x3fff""")
        a(f"""s_add_u32 s{sSig}, s{sSig}, 1
        s_and_b32 s{sSig}, s{sSig}, 7""")
    kvgroups = [(base, s_, vreg, nv, b, jj) for (base, s_, vreg, nv) in ((KBASE, sK, vK, 4), (VBASE, sV, vV, 2)) for b in range(2) for jj in range(3)]
    def kvgroup(gi):
        base, s_, vreg, nv, b, jj = kvgroups[gi]
        a(f"s_mov_b32 m0, {base + b*12288 + jj*4096}")
        a(f"s_add_u32 s{sT0}, s{sKV}, {b*32*12288 + jj*4096}")
        for i in range(4):
            a(f"buffer_load_dwordx4 v{vreg + i % nv}, s[{s_}:{s_+3}], s{sT0} offen offset:{i*1024} {OPT['ntkv']} lds")
    st()
    a("L_gissue:")
    issueG()
    a(f"""L_gnext:
    s_add_u32 s{sI}, s{sI}, 1""")
    a(f"""L_ploop:
    s_waitcnt vmcnt(24)
    s_barrier
    s_cmp_eq_u32 s{sI}, 12
    s_cbranch_scc1 L_pdone
    s_sub_u32 s{sT0}, s{sI}, s{sCls}
    s_cmp_gt_u32 s{sT0}, 1
    s_cbranch_scc1 L_gissue
    s_cmp_eq_u32 s{sT0}, 1
    s_cbranch_scc1 L_vissue""")
    for gi in range(6): kvgroup(gi)
    a("s_branch L_gnext")
    a("L_vissue:")
    for gi in range(6, 12): kvgroup(gi)
    a("s_branch L_gnext")
    a("L_pdone:")
    st.n = 5
    a(f"s_load_dword s{sN}, s[60:61], 0")
    a("s_cmp_ge_u32 s2, 240")
    a("s_cbranch_scc1 L_prod_notile")
    for t in range(0, 4): issueWo(t)
    a(f"s_waitcnt vmcnt(32)")
    a("s_barrier")
    st()
    get_nonce(vF+1)
    a("s_barrier")
    st()
    for t in range(4, OPT["woq"]): issueWo(t)
    st()
    a("s_barrier")
    st()
    for t in range(OPT["woq"], 16): issueWo(t)
    a("s_waitcnt vmcnt(0)")
    a("s_barrier")
    st()
    a(f"""s_mov_b32 s{sT0}, {F1_OFF}
    buffer_load_dword v{vF+3}, v{vF}, s[{sS}:{sS+3}], s{sT0} offen sc1
    s_barrier""")
    a(f"""s_waitcnt vmcnt(0)
    v_cmp_eq_u32 s[{sRdy}:{sRdy+1}], s{sN}, v{vF+3}
    s_nop 1""")
    issueO(0)
    n0 = st.n; st.n = 12; st(); st.n = n0
    bset = [int(c) for c in str(OPT["bset"])[1:]]
    sched = [int(c) for c in str(OPT["osched"])[1:]]
    nxo = 1
    for bi, u in enumerate(bset):
        tgt = sched[bi] if bi < len(sched) else 8
        while nxo < tgt: issueO(nxo); nxo += 1
        lastneeded = (bset[bi+1] - 1) if bi + 1 < len(bset) else 7
        assert lastneeded < nxo
        a(f"s_waitcnt vmcnt({min(63, 16*(nxo - 1 - lastneeded))})")
        a("s_barrier")
        if u in (0, 4): st()
    a("s_branch L_done")
    a("L_prod_notile:")
    a(f"""s_waitcnt vmcnt(0)
    s_barrier
    s_branch L_done""")
    a("L_poll1:")
    a(f"""s_mov_b32 s{sCnt}, 0
    s_mov_b32 s{sT0}, {F1_OFF}
    L_poll1_loop:
    buffer_load_dword v{vF+3}, v{vF}, s[{sS}:{sS+3}], s{sT0} offen sc1
    s_add_u32 s{sCnt}, s{sCnt}, 1
    s_waitcnt vmcnt(0)
    v_cmp_eq_u32 s[{sRdy}:{sRdy+1}], s{sN}, v{vF+3}
    s_cmp_gt_u32 s{sCnt}, {OPT['spin']}
    s_cbranch_scc1 L_poll1_end
    s_andn2_b32 s{sT1}, s{sT2}, s{sRdy}
    s_cbranch_scc1 L_poll1_loop
    L_poll1_end:
    s_setpc_b64 s[4:5]""")

    a("L_notprod:")
    vRB = 12; vRA = 16
    vQW, vQR, vKR, vVR, vOo, vNo, vTR = 24, 25, 26, 27, 28, 29, 30
    ACC = 32; FA = [80, 108]
    def acc(tt, i): return ACC + (tt*3 + i)*4
    if OPT["cpf"]:
        a(f"""s_cmp_lg_u32 s{sWv}, 6
        s_cbranch_scc1 L_nocpf
        s_getpc_b64 s[{sY}:{sY+1}]
        L_pcref:
        s_sub_u32 s{sY}, s{sY}, L_pcref-{KN}
        s_subb_u32 s{sY+1}, s{sY+1}, 0
        s_bfe_u32 s{sT0}, s2, 0x30003
        s_mul_i32 s{sT0}, s{sT0}, 24
        v_min_u32 v{vT}, 23, v{vL}
        v_add_u32 v{vT}, s{sT0}, v{vT}
        v_lshlrev_b32 v{vT}, 7, v{vT}
        v_min_u32 v{vT}, L_codeend-{KN}-4, v{vT}
        global_load_dword v250, v{vT}, s[{sY}:{sY+1}]
        L_nocpf:""")
    a("s_waitcnt lgkmcnt(0)")
    srd(a, sS, 48, WS_USED); srd(a, sD, 60, 256); srd(a, sY, 6, X_BYTES)
    a(f"""s_lshl_b32 s{sT0}, s2, 3
    s_add_u32 s{sT0}, s{sT0}, s{sWv}
    s_cmp_lg_u32 s{sT0}, 5
    s_cbranch_scc1 L_nononce
    s_mov_b32 s{sT0}, {E_OFF}
    buffer_load_dword v{vT}, off, s[{sS}:{sS+3}], s{sT0} sc1
    s_mov_b32 s{sT1}, 0x9e3779b1
    s_waitcnt vmcnt(0)
    v_mul_lo_u32 v{vT}, v{vT}, s{sT1}
    v_add_u32 v{vT}, 0x7f4a7c15, v{vT}
    v_max_u32 v{vT}, 1, v{vT}
    s_mov_b64 exec, 1
    buffer_store_dword v{vT}, off, s[{sD}:{sD+3}], 0 sc1
    buffer_store_dword v{vT}, off, s[{sS}:{sS+3}], s{sT0} sc1
    s_mov_b64 exec, -1
    L_nononce:""")
    a(f"""s_cmp_gt_u32 s{sWv}, 4
    s_cselect_b32 s{sT0}, 1, 0
    s_sub_u32 s{sJ}, s{sWv}, s{sT0}
    s_lshl_b32 s{sT0}, s{sJ}, 12
    s_add_u32 s{sT0}, s{sT0}, {QX}
    v_lshlrev_b32 v{vOo}, 4, v{vL}
    v_add_u32 v{vQR}, s{sT0}, v{vOo}
    s_cmp_ge_u32 s{sJ}, 3
    s_cselect_b32 s{sT2}, 12288, 0
    v_lshrrev_b32 v{vT}, 1, v{vG}
    v_xor_b32 v{vT}, v{vT}, v{vC}
    v_lshlrev_b32 v{vT}, 4, v{vT}
    v_lshl_add_u32 v{vT}, v{vC}, 8, v{vT}
    v_and_b32 v{vT+1}, 1, v{vG}
    v_lshl_add_u32 v{vT}, v{vT+1}, 3, v{vT}
    s_add_u32 s{sT0}, s{sT2}, {KBASE}
    v_add_u32 v{vKR}, s{sT0}, v{vT}
    v_lshrrev_b32 v{vT}, 2, v{vC}
    v_lshl_add_u32 v{vT}, v{vG}, 2, v{vT}
    v_and_b32 v{vT+1}, 7, v{vT}
    v_lshlrev_b32 v{vT+1}, 5, v{vT+1}
    v_lshl_add_u32 v{vT}, v{vT}, 8, v{vT+1}
    v_and_b32 v{vT+1}, 3, v{vC}
    v_lshl_add_u32 v{vTR}, v{vT+1}, 3, v{vT}
    s_add_u32 s{sT0}, s{sT2}, {VBASE}
    v_add_u32 v{vVR}, s{sT0}, v{vTR}
    s_lshr_b32 s{sB}, s{sWv}, 1
    s_and_b32 s{sDH}, s{sWv}, 1
    s_mul_i32 s{sT0}, s{sB}, 12288
    s_lshl_b32 s{sT1}, s{sDH}, 11
    s_add_u32 s{sT0}, s{sT0}, s{sT1}
    s_add_u32 s{sT0}, s{sT0}, {QX}
    v_add_u32 v{vQW}, s{sT0}, v{vOo}
    s_mul_i32 s{sT0}, s{sP}, 6
    s_add_u32 s{sT0}, s{sT0}, s{sJ}
    s_lshl_b32 s{sT0}, s{sT0}, 7
    s_lshl_b32 s{sT1}, s{sH}, 2
    s_add_u32 s{sT0}, s{sT0}, s{sT1}
    s_lshl_b32 s{sT0}, s{sT0}, 10
    v_add_u32 v{vOo}, s{sT0}, v{vOo}""")
    c = (128 ** -0.5) * math.log2(math.e)
    cb = struct.unpack('<I', struct.pack('<f', c))[0]
    a(f"s_mov_b32 s{sC}, {cb:#x}")
    a(f"s_mov_b32 s{sC+1}, {cb:#x}")
    set_cls()
    a(f"s_cmp_lt_u32 s{sWv}, 4")
    a("s_cbranch_scc1 L_cons")
    KF, VF = 136, 184
    def k_reads():
        r = []
        for T in range(4):
            for hf in range(2):
                tmp = vT + ((2*T+hf) & 3)
                r.append(f"v_xor_b32 v{tmp}, {64*T + 32*hf}, v{vKR}")
                for kt in range(3):
                    r.append(f"ds_read_b64 {vr(KF+(kt*4+T)*4+2*hf,2)}, v{tmp} offset:{kt*4096}")
        return r
    def v_reads():
        r = []
        for t in range(8):
            tmp = vT + 4 + (t & 3)
            r.append(f"v_xor_b32 v{tmp}, {32*t}, v{vVR}")
            for q in range(3):
                r.append(f"ds_read_b64_tr_b16 {vr(VF+t*6+2*q,2)}, v{tmp} offset:{q*4096}")
        return r
    def kvcall(kk):
        if kk in kvs:
            l = L()
            a(f"s_cmp_lg_u32 s{sCls}, {kk}")
            a(f"s_cbranch_scc1 {l}")
            a(f"s_call_b64 s[4:5], L_kvread")
            a(f"{l}:")
    for kk in range(10):
        kvcall(kk)
        a("s_barrier")
        if kk == 6: a(f"s_load_dword s{sN}, s[60:61], 0")
    a("s_branch L_qx")
    a("L_kvread:")
    a("s_barrier")
    for x in k_reads(): a(x)
    a("s_barrier")
    for x in v_reads(): a(x)
    a("s_setpc_b64 s[4:5]")
    a("L_cons:")
    a(f"""s_mul_i32 s{sT0}, s{sB}, {48*128}
    v_and_b32 v{vT}, 7, v{vC}
    v_xor_b32 v{vT}, v{vT}, v{vG}
    v_lshlrev_b32 v{vT}, 4, v{vT}
    v_lshl_add_u32 v{vT}, v{vC}, 7, v{vT}
    v_add_u32 v{vRB}, s{sT0}, v{vT}
    v_xor_b32 v{vRB+2}, 64, v{vRB}
    v_add_u32 v{vRB+1}, {2*SLOT}, v{vRB}
    v_add_u32 v{vRB+3}, {2*SLOT}, v{vRB+2}
    v_lshrrev_b32 v{vT}, 2, v{vC}
    v_lshl_add_u32 v{vT+1}, v{vG}, 3, v{vT}
    v_lshlrev_b32 v{vT+1}, 8, v{vT+1}
    v_and_b32 v{vT+2}, 1, v{vG}
    v_lshlrev_b32 v{vT+2}, 3, v{vT+2}
    v_lshl_add_u32 v{vT+2}, v{vT}, 1, v{vT+2}
    v_and_b32 v{vT+3}, 3, v{vC}
    v_lshlrev_b32 v{vT+3}, 3, v{vT+3}
    v_add_u32 v{vT+1}, v{vT+1}, v{vT+3}
    v_add_u32 v{vT+1}, 12288, v{vT+1}
    s_lshl_b32 s{sT0}, s{sDH}, 3
    v_xor_b32 v{vT+2}, s{sT0}, v{vT+2}
    v_lshl_add_u32 v{vRA}, v{vT+2}, 4, v{vT+1}""")
    for tt in range(1, 4):
        a(f"v_xor_b32 v{vRA+2*tt}, {32*tt}, v{vRA}")
    for tt in range(4):
        a(f"v_add_u32 v{vRA+2*tt+1}, {2*SLOT}, v{vRA+2*tt}")
    def reads(kk, sub, fs):
        slot = kk % NSLOT; hi = slot >> 1; so = (slot & 1)*SLOT; F = FA[fs]
        r = [f"ds_read_b128 {vr(F+16,4)}, v{vRB+2*sub+hi} offset:{so}"]
        for tt in range(4):
            for q in range(2):
                r.append(f"ds_read_b64_tr_b16 {vr(F+4*tt+2*q,2)}, v{vRA+2*tt+hi} offset:{so + (32*sub + 4*q)*256}")
        for i in range(1, 3):
            r.append(f"ds_read_b128 {vr(F+16+4*i,4)}, v{vRB+2*sub+hi} offset:{so + i*2048}")
        return r
    def mfmas(fs, first):
        F = FA[fs]; r = []
        for i in range(3):
            for tt in range(4):
                cc = "0" if first else vr(acc(tt,i),4)
                r.append(f"v_mfma_f32_16x16x32_bf16 {vr(acc(tt,i),4)}, {vr(F+4*tt,4)}, {vr(F+16+4*i,4)}, {cc}")
        return r
    st.n = 1; st()
    for kk in range(9):
        kvcall(kk)
        a("s_barrier")
        if kk in (0, 3, 7): st()
        if kk == 6: a(f"s_load_dword s{sN}, s[60:61], 0")
        mix(a, mfmas(1, False) if kk else [], reads(kk, 0, 0), per=OPT['rper'])
        a("s_waitcnt lgkmcnt(0)")
        mix(a, mfmas(0, kk == 0), reads(kk, 1, 1), per=OPT['rper'])
        a("s_waitcnt lgkmcnt(0)")
    QW = 232
    def qcvt(i):
        r = []
        for T in range(2):
            d = QW + (i*2+T)*4
            for u in range(2):
                s_ = acc(2*T+u, i)
                r.append(f"v_cvt_pk_bf16_f32 v{d+2*u}, v{s_}, v{s_+1}")
                r.append(f"v_cvt_pk_bf16_f32 v{d+2*u+1}, v{s_+2}, v{s_+3}")
            r.append(f"ds_write_b128 v{vQW}, {vr(d,4)} offset:{i*4096 + T*1024}")
        return r
    m0_, m1_ = mfmas(0, False), mfmas(1, False)
    for m in m1_: a(m)
    a("s_barrier")
    st()
    r0, r1 = reads(9, 0, 0), reads(9, 1, 1)
    for x in r0[:9] + r1[:6]: a(x)
    a("s_waitcnt lgkmcnt(6)")
    mix(a, m0_[:4], r1[6:9] + [r0[9], r1[9], r0[10], r1[10]], per=2, lead=False)
    a("s_waitcnt lgkmcnt(4)")
    for m in m1_[:4]: a(m)
    a("s_waitcnt lgkmcnt(2)")
    for m in m0_[4:8] + m1_[4:7]: a(m)
    a("s_waitcnt lgkmcnt(0)")
    mix(a, m1_[7:8] + m0_[8:], qcvt(0), per=2, lead=False)
    mix(a, m1_[8:], qcvt(1)[:6], per=2, lead=True)
    for x in qcvt(1)[6:]: a(x)
    a("s_nop 3")
    for x in qcvt(2): a(x)
    a("L_qx:")
    a("s_waitcnt lgkmcnt(0)")
    a("s_barrier")
    st()
    QF = 56; SA = 32; PF = 44; OA = 80
    for T in range(4):
        a(f"ds_read_b128 {vr(QF+4*T,4)}, v{vQR} offset:{T*1024}")
    for T in range(4):
        a(f"s_waitcnt lgkmcnt({3-T})")
        for kt in range(3):
            cc = "0" if T == 0 else vr(SA+4*kt,4)
            a(f"v_mfma_f32_16x16x32_bf16 {vr(SA+4*kt,4)}, {vr(KF+(kt*4+T)*4,4)}, {vr(QF+4*T,4)}, {cc}")
    a(f"""v_mov_b32 v{vNo}, 0
    v_mov_b32 v{vQW}, {CNT}
    ds_write_b32 v{vQW}, v{vNo}""")
    M, M2, Ls, L2 = 4, 5, 6, 7
    v = [SA+j for j in range(12)]
    a(f"""s_nop 2
    v_max3_f32 v{M}, v{v[0]}, v{v[1]}, v{v[2]}
    v_max3_f32 v{M2}, v{v[3]}, v{v[4]}, v{v[5]}
    v_max3_f32 v{Ls}, v{v[6]}, v{v[7]}, v{v[8]}
    v_max3_f32 v{L2}, v{v[9]}, v{v[10]}, v{v[11]}
    v_max3_f32 v{M}, v{M}, v{M2}, v{Ls}
    v_max_f32 v{M}, v{M}, v{L2}""")
    for sw in ("v_permlane32_swap_b32", "v_permlane16_swap_b32"):
        a(f"""v_mov_b32 v{M2}, v{M}
        s_nop 1
        {sw} v{M}, v{M2}
        v_max_f32 v{M}, v{M}, v{M2}""")
    a(f"v_mul_f32 v{M}, s{sC}, v{M}")
    for j in range(6):
        a(f"v_pk_fma_f32 {vr(SA+2*j,2)}, {vr(SA+2*j,2)}, s[{sC}:{sC+1}], {vr(M,2)} op_sel_hi:[1,1,0] neg_lo:[0,0,1] neg_hi:[0,0,1]")
    for x in v: a(f"v_exp_f32 v{x}, v{x}")
    a("s_waitcnt lgkmcnt(0)")
    for j in range(6):
        a(f"v_cvt_pk_bf16_f32 v{PF+j}, v{SA+2*j}, v{SA+2*j+1}")
    a(f"v_pk_add_f32 {vr(Ls,2)}, {vr(SA,2)}, {vr(SA+2,2)}")
    pv = [f"v_mfma_f32_16x16x32_bf16 {vr(OA+4*t,4)}, {vr(VF+t*6,4)}, {vr(PF,4)}, 0" for t in range(8)]
    pv += [f"v_mfma_f32_16x16x16_bf16 {vr(OA+4*t,4)}, {vr(VF+t*6+4,2)}, {vr(PF+4,2)}, {vr(OA+4*t,4)}" for t in range(8)]
    sm = [f"v_pk_add_f32 {vr(M,2)}, {vr(SA+4,2)}, {vr(SA+6,2)}",
          f"v_pk_add_f32 {vr(Ls,2)}, {vr(Ls,2)}, {vr(SA+8,2)}",
          f"v_pk_add_f32 {vr(M,2)}, {vr(M,2)}, {vr(SA+10,2)}",
          f"v_pk_add_f32 {vr(Ls,2)}, {vr(Ls,2)}, {vr(M,2)}",
          f"v_add_f32 v{Ls}, v{Ls}, v{L2}",
          f"v_mov_b32 v{L2}, v{Ls}", "s_nop 0",
          f"v_permlane32_swap_b32 v{Ls}, v{L2}",
          f"v_add_f32 v{Ls}, v{Ls}, v{L2}",
          f"v_mov_b32 v{L2}, v{Ls}", "s_nop 0",
          f"v_permlane16_swap_b32 v{Ls}, v{L2}",
          f"v_add_f32 v{Ls}, v{Ls}, v{L2}",
          f"v_rcp_f32 v{Ls}, v{Ls}"]
    mix(a, pv, sm, per=1)
    a("s_nop 0")
    for T in range(4):
        d = QF + 4*T
        for u in range(2):
            s_ = OA + 4*(2*T+u)
            a(f"v_pk_mul_f32 {vr(s_,2)}, {vr(s_,2)}, {vr(Ls,2)} op_sel_hi:[1,0]")
            a(f"v_pk_mul_f32 {vr(s_+2,2)}, {vr(s_+2,2)}, {vr(Ls,2)} op_sel_hi:[1,0]")
        for u in range(2):
            s_ = OA + 4*(2*T+u)
            a(f"v_cvt_pk_bf16_f32 v{d+2*u}, v{s_}, v{s_+1}")
            a(f"v_cvt_pk_bf16_f32 v{d+2*u+1}, v{s_+2}, v{s_+3}")
        a(f"buffer_store_dwordx4 {vr(d,4)}, v{vOo}, s[{sS}:{sS+3}], 0 offen offset:{T*1024} sc1")
    st()
    a("s_barrier")
    get_nonce(vNo)
    a(f"""v_mov_b32 v{vT}, 1
    v_mov_b32 v{vNo}, s{sN}
    v_lshlrev_b32 v31, 2, v{vL}
    s_lshl_b32 s{sT0}, s2, {FS}
    s_add_u32 s{sT0}, s{sT0}, {F1_OFF}
    s_mov_b64 exec, 1
    s_waitcnt vmcnt(0)
    ds_add_rtn_u32 v{vT+1}, v{vQW}, v{vT}
    s_waitcnt lgkmcnt(0)
    v_readfirstlane_b32 s{sT1}, v{vT+1}
    s_mov_b32 exec_lo, {-1 if OPT['f1full'] else 1}
    s_cmp_lg_u32 s{sT1}, 5
    s_cbranch_scc1 L_noflag
    buffer_store_dword v{vNo}, v31, s[{sS}:{sS+3}], s{sT0} offen sc1
    L_noflag:
    s_mov_b64 exec, -1
    s_cmp_ge_u32 s2, 240
    s_cbranch_scc1 L_done
    s_cmp_lt_u32 s{sWv}, 4
    s_cbranch_scc1 L_ph2
    s_barrier
    s_barrier
    s_endpgm
    L_ph2:""")
    st()
    vRA2, vB0, vB1, vB2, vPo, vF2, vPw, vOut, vFa, vFb = 12, 16, 17, 18, 25, 26, 27, 28, 19, 20
    sSig = 40
    AR = 32; BS = [160, 192]; AC = [224, 232]; ST = [240, 244]
    decode_tile()
    a(f"""s_lshl_b32 s{sT0}, s{sWv}, 6
    v_xor_b32 v{vRA2}, s{sT0}, v{vTR}
    v_xor_b32 v{vRA2+2}, 32, v{vRA2}
    v_add_u32 v{vRA2+1}, 0x10000, v{vRA2}
    v_add_u32 v{vRA2+3}, 0x10000, v{vRA2+2}
    v_lshlrev_b32 v{vB0}, 4, v{vL}
    v_add_u32 v{vB1}, 0x10000, v{vB0}
    v_add_u32 v{vB2}, 0x20000, v{vB0}
    s_add_u32 s{sSig}, s{sJ}, 1
    s_and_b32 s{sSig}, s{sSig}, 7
    s_lshl_b32 s{sSig}, s{sSig}, 15
    s_andn2_b32 s{sT0}, s2, 7
    s_lshl_b32 s{sT0}, s{sT0}, 3
    s_add_u32 s{sT0}, s{sT0}, s{sJ}
    s_lshl_b32 s{sT0}, s{sT0}, 12
    s_lshl_b32 s{sT1}, s{sWv}, 10
    s_add_u32 s{sT0}, s{sT0}, s{sT1}
    s_add_u32 s{sT0}, s{sT0}, {P_OFF}
    v_add_u32 v{vPw}, s{sT0}, v{vB0}
    s_lshl_b32 s{sT0}, s2, 15
    s_add_u32 s{sT0}, s{sT0}, s{sT1}
    s_add_u32 s{sT0}, s{sT0}, {P_OFF}
    v_add_u32 v{vPo}, s{sT0}, v{vB0}
    s_lshl_b32 s{sT0}, s2, 2
    s_add_u32 s{sT0}, s{sT0}, s{sWv}
    s_lshl_b32 s{sT0}, s{sT0}, {3+FS}
    s_add_u32 s{sT0}, s{sT0}, {F2_OFF}
    v_min_u32 v{vF2}, 6, v{vL}
    v_lshlrev_b32 v{vF2}, {FS}, v{vF2}
    v_add_u32 v{vF2}, s{sT0}, v{vF2}
    s_andn2_b32 s{sT0}, s2, 7
    s_lshl_b32 s{sT0}, s{sT0}, 2
    s_add_u32 s{sT0}, s{sT0}, s{sWv}
    s_lshl_b32 s{sT0}, s{sT0}, {3+FS}
    s_add_u32 s{sT0}, s{sT0}, {F2_OFF}
    s_add_u32 s{sT1}, s{sJ}, 1
    v_add_u32 v{vT}, s{sT1}, v{vL}
    v_and_b32 v{vT}, 7, v{vT}
    v_lshlrev_b32 v{vT}, 5, v{vT}
    v_add_u32 v{vT}, v{vT}, v{vL}
    v_lshlrev_b32 v{vT}, {FS}, v{vT}
    v_add_u32 v{vT}, s{sT0}, v{vT}
    v_mov_b32 v{vT+1}, 0x7ffffff0
    v_cmp_gt_u32 vcc, {OPT['fsplit']}, v{vL}
    s_nop 1
    v_cndmask_b32 v{vFa}, v{vT+1}, v{vT}, vcc
    v_cndmask_b32 v{vFb}, v{vT}, v{vT+1}, vcc
    v_cmp_gt_u32 vcc, 7, v{vL}
    s_nop 1
    v_cndmask_b32 v{vFb}, v{vT+1}, v{vFb}, vcc
    s_lshl_b32 s{sT0}, s{sTA}, 3
    s_add_u32 s{sT0}, s{sT0}, s{sJ}
    s_mul_i32 s{sT0}, s{sT0}, {16*1280}
    s_lshl_b32 s{sT1}, s{sTB}, 8
    s_add_u32 s{sT0}, s{sT0}, s{sT1}
    s_lshl_b32 s{sT1}, s{sWv}, 6
    s_add_u32 s{sT0}, s{sT0}, s{sT1}
    v_mul_u32_u24 v{vOut}, 1280, v{vC}
    v_lshl_add_u32 v{vOut}, v{vG}, 3, v{vOut}
    v_add_u32 v{vOut}, s{sT0}, v{vOut}
    s_barrier""")
    st()
    for t in range(16):
        ad = WOBLK[t]*8192; hi = ad >> 16; lo = ad & 0xffff
        for tt in range(2):
            for q in range(2):
                a(f"ds_read_b64_tr_b16 {vr(AR+(t*2+tt)*4+2*q,2)}, v{vRA2+2*tt+hi} offset:{lo + q*4096}")
    a("s_waitcnt lgkmcnt(0)")
    a("s_barrier")
    def breads(hp):
        u, hf = hp >> 1, hp & 1
        ad = OREG(u) + hf*8192
        base = [vB0, vB1, vB2][ad >> 16]
        return [f"ds_read_b128 {vr(BS[hf]+4*k,4)}, v{base} offset:{(ad & 0xffff) + k*1024}" for k in range(8)]
    def mf2(hp):
        u, hf = hp >> 1, hp & 1
        r = []
        for k in range(8):
            for tt in range(2):
                d = AC[u & 1] + 4*tt
                cc = "0" if (hf == 0 and k == 0) else vr(d,4)
                r.append(f"v_mfma_f32_16x16x32_bf16 {vr(d,4)}, {vr(AR+((hf*8+k)*2+tt)*4,4)}, {vr(BS[hf]+4*k,4)}, {cc}")
        return r
    def pstore(u):
        s_ = AC[u & 1]; d = ST[u & 1]
        return [f"v_cvt_pk_bf16_f32 v{d+j}, v{s_+2*j}, v{s_+2*j+1}" for j in range(4)] + \
               [f"buffer_store_dwordx4 {vr(d,4)}, v{vPw}, s[{sS}:{sS+3}], s{sSig} offen sc1",
                f"s_add_u32 s{sSig}, s{sSig}, 0x8000", f"s_and_b32 s{sSig}, s{sSig}, 0x3ffff"]
    FSP = OPT["fsplit"]
    for hp in range(17):
        u = hp >> 1
        if hp < 16 and (hp & 1) == 0 and u in [int(c) for c in str(OPT['bset'])[1:]]:
            a("s_barrier")
            if u in (0, 4): st()
        side = breads(hp) if hp < 16 else []
        mf = mf2(hp - 1) if hp >= 1 else []
        extra = pstore(u - 1) if (hp & 1) == 1 and u >= 1 else []
        if FSP and hp == OPT["fblk"]:
            issued = (hp - 1)//2 if hp & 1 else (hp - 2)//2
            extra = extra + [f"s_waitcnt vmcnt({issued - FSP})", f"buffer_store_dword v{vNo}, v{vFa}, s[{sS}:{sS+3}], 0 offen sc1"]
        mix(a, mf[:4], side, per=2)
        mix(a, mf[4:], extra, per=1)
        a("s_waitcnt lgkmcnt(0)")
    st()
    sPend = 41
    HB = 32; SUM = AC[1]
    a(f"""s_waitcnt vmcnt({1 if FSP and OPT['fblk'] >= 15 else 0})
    buffer_store_dword v{vNo}, v{vFb}, s[{sS}:{sS+3}], 0 offen sc1
    s_mov_b32 s{sPend}, 0x7f
    s_mov_b32 s{sCnt}, 0
    s_mov_b32 s42, 0xffff0000""")
    if OPT["psl"]: a(f"s_sleep {OPT['psl']}")
    a(f"""L_poll2:
    buffer_load_dword v{vT}, v{vF2}, s[{sS}:{sS+3}], 0 offen sc1
    s_add_u32 s{sCnt}, s{sCnt}, 1
    s_waitcnt vmcnt(0)
    v_cmp_eq_u32 vcc, s{sN}, v{vT}
    s_nop 1
    s_and_b32 s{sT2}, vcc_lo, s{sPend}
    s_andn2_b32 s{sPend}, s{sPend}, s{sT2}""")
    for u in range(7):
        l = L()
        a(f"""s_bitcmp1_b32 s{sT2}, {u}
        s_cbranch_scc0 {l}
        s_add_u32 s{sT0}, s{sJ}, {7-u}
        s_and_b32 s{sT0}, s{sT0}, 7
        s_lshl_b32 s{sT0}, s{sT0}, 12
        buffer_load_dwordx4 {vr(HB+4*u,4)}, v{vPo}, s[{sS}:{sS+3}], s{sT0} offen sc1""")
        a(f"{l}:")
    a(f"""s_cmp_gt_u32 s{sCnt}, {OPT['spin']}
    s_cbranch_scc1 L_p2go
    s_cmp_lg_u32 s{sPend}, 0
    s_cbranch_scc1 L_poll2
    L_p2go:""")
    st()
    a("s_waitcnt vmcnt(0)")
    for u in range(7):
        for d in range(4):
            x = HB + 4*u + d
            a(f"v_lshlrev_b32 v{vT+2*(d&1)}, 16, v{x}")
            a(f"v_and_b32 v{vT+2*(d&1)+1}, s42, v{x}")
            a(f"v_pk_add_f32 {vr(SUM+2*d,2)}, {vr(SUM+2*d,2)}, {vr(vT+2*(d&1),2)}")
    for d in range(4):
        a(f"v_cvt_pk_bf16_f32 v{HB+d}, v{SUM+2*d}, v{SUM+2*d+1}")
    a(f"buffer_store_dwordx2 {vr(HB,2)}, v{vOut}, s[{sY}:{sY+3}], 0 offen {OPT['outf']}")
    a(f"buffer_store_dwordx2 {vr(HB+2,2)}, v{vOut}, s[{sY}:{sY+3}], 0 offen offset:32 {OPT['outf']}")
    a("L_done:")
    st.dump(0, sWv, 48, vT)
    a("L_end:")
    a("s_endpgm")
    a("L_codeend:")

def main(out):
    a = Asm(); gen(a)
    t = HDR
    t += f"; @launch grid=(256,1,1) block=(448,1,1) lds=163840\n"
    t += '.amdgcn_target "amdgcn-amd-amdhsa--gfx950"\n.text\n'
    t += f".globl {KN}\n.p2align 8\n.type {KN},@function\n{KN}:\n" + a.text()
    t += '.section .rodata,"a"\n.p2align 6\n' + kd(KN, 256, 102 if OPT["stamp"] else 64)
    open(out, "w").write(t)

if __name__ == "__main__":
    for kv in sys.argv[2:]:
        k, v = kv.split("=")
        OPT[k] = int(v) if v.lstrip("-").isdigit() else v.replace("_", " ")
    main(sys.argv[1])
```

```python
import sys, math, struct
from gen2 import Asm, vr, HDR, kd, srd, X_BYTES, KV_BYTES, W_BYTES, O_BYTES
import gen2
OPT = gen2.OPT
OPT.update(dict(stamp=False, ntx="", ntw="", ntkv="", ntwo="", kvc='x24682468', rot=1, xrot=1, la=2,
                spin=400000, cpf=1, woq=9, kvspread=0, kvend=5, pre8=1, sigm=0, bset='x01234567', osched='x345678', fsplit=5, fblk=16, rper=2, imaj=1, prio=3, pw=24, ftouch=0, tf='sc1', outf='', psl=0, f1full=1, fast=0, old='sc1', wbl=0))
Stamper = gen2.Stamper
KN = "standalone__mha_block_cached__near_ridge_kernel"

SLOT = 28672; NSLOT = 4
KBASE = SLOT*NSLOT; VBASE = KBASE + 24576
QX = 11*8192
WOBLK = [7,8,9,10, 0,1,2,3,4,5,6,14,15, 11,12,13]
def OREG(u): return 131072 + u*16384 if u < 2 else (u-2)*16384
P_OFF = 0x800000
F1_OFF = 0x1000000; E_OFF = 0x1080000; F2_OFF = 0x1100000; WS_USED = 0x1200000
FS = 7
CNT = 131072

def mix(a, main, side, per=2, lead=True):
    main = list(main); side = list(side)
    while main or side:
        if not lead and main: a(main.pop(0))
        for _ in range(per):
            if side: a(side.pop(0))
        if lead and main: a(main.pop(0))

def gen(a):
    sX, sK, sV, sW, sS, sD, sY = 8, 12, 16, 20, 24, 52, 56
    sH, sP, sWv, sB, sDH = 28, 29, 30, 31, 32
    sT0, sT1, sT2 = 33, 34, 35
    sOW, sOX, sKV, sCls, sC, sJ = 36, 37, 38, 39, 50, 51
    sN, sTA, sTB, sCnt = 3, 6, 7, 37
    vL, vG, vC, vT = 1, 2, 3, 4
    lab = [0]
    def L():
        lab[0] += 1; return f"L{lab[0]}"
    a("s_cmp_ge_u32 s2, 256")
    a("s_cbranch_scc1 L_end")
    st = Stamper(a, 62); st()
    a(f"""s_load_dwordx8 s[40:47], s[0:1], 0
    s_load_dwordx4 s[4:7], s[0:1], 32
    s_load_dwordx2 s[60:61], s[0:1], 48
    s_load_dwordx2 s[48:49], s[0:1], 56
    v_lshrrev_b32 v{vT}, 6, v0
    v_and_b32 v{vL}, 63, v0
    v_readfirstlane_b32 s{sWv}, v{vT}
    v_lshrrev_b32 v{vG}, 4, v{vL}
    v_and_b32 v{vC}, 15, v{vL}
    s_and_b32 s{sT0}, s2, 7
    s_lshl_b32 s{sT0}, s{sT0}, 2
    s_bfe_u32 s{sT1}, s2, 0x20003
    s_add_u32 s{sH}, s{sT0}, s{sT1}
    s_lshr_b32 s{sP}, s2, 5
    s_cmp_lg_u32 s{sWv}, 4
    s_cbranch_scc1 L_notprod""")
    kvs = [int(c) for c in str(OPT["kvc"])[1:]]
    def set_cls():
        a(f"""s_lshl_b32 s{sT0}, s{sP}, 2
        s_lshr_b32 s{sCls}, {sum(k << (4*i) for i, k in enumerate(kvs))}, s{sT0}
        s_and_b32 s{sCls}, s{sCls}, 0xf""")

    def get_nonce(vreg):
        l0, l1 = L(), L()
        a(f"s_waitcnt lgkmcnt(0)")
        a(f"s_mov_b32 s{sCnt}, 0")
        a(f"{l0}:")
        a(f"""s_cmp_lg_u32 s{sN}, 0
        s_cbranch_scc1 {l1}
        s_cmp_gt_u32 s{sCnt}, {OPT['spin']}
        s_cbranch_scc1 {l1}
        buffer_load_dword v{vreg}, off, s[{sD}:{sD+3}], 0 sc1
        s_add_u32 s{sCnt}, s{sCnt}, 1
        s_waitcnt vmcnt(0)
        v_readfirstlane_b32 s{sN}, v{vreg}
        s_nop 0
        s_branch {l0}""")
        a(f"{l1}:")
    def decode_tile():
        a(f"""s_lshr_b32 s{sT0}, s2, 3
        s_mul_i32 s{sTA}, s{sT0}, 52
        s_lshr_b32 s{sTA}, s{sTA}, 8
        s_mul_i32 s{sTB}, s{sTA}, 5
        s_sub_u32 s{sTB}, s{sT0}, s{sTB}
        s_and_b32 s{sJ}, s2, 7""")

    if OPT["prio"]: a(f"s_setprio {OPT['prio']}")
    vW, vX, vK, vV = 12, 16, 20, 24
    if OPT["rot"] == 1:
        a(f"""s_mul_i32 s{sT0}, s{sT1}, 5
        s_add_u32 s{sT0}, s{sT0}, 1
        s_lshr_b32 s{sT0}, s{sT0}, 1
        s_add_u32 s{sT2}, s{sT0}, s{sP}""")
    elif OPT["rot"] >= 2:
        R = OPT["rot"]
        tab = [round(10*i/R) % 10 for i in range(R)]
        lut = sum(tab[(x % R)] << (4*x) for x in range(11))
        a(f"""s_add_u32 s{sT0}, s{sT1}, s{sP}
        s_lshl_b32 s{sT0}, s{sT0}, 2
        s_mov_b32 s36, {lut & 0xffffffff}
        s_mov_b32 s37, {lut >> 32}
        s_lshr_b64 s[36:37], s[36:37], s{sT0}
        s_and_b32 s{sT2}, s36, 15""")
    else:
        a(f"s_mov_b32 s{sT2}, 0")
    if OPT["xrot"]:
        a(f"""s_and_b32 s{sT0}, s2, 7
        s_add_u32 s{sT2}, s{sT2}, s{sT0}
        s_cmp_ge_u32 s{sT2}, 10
        s_cselect_b32 s{sT0}, 10, 0
        s_sub_u32 s{sT2}, s{sT2}, s{sT0}""")
    if OPT["rot"] == 1:
        a(f"""s_cmp_ge_u32 s{sT2}, 10
        s_cselect_b32 s{sT0}, 10, 0
        s_sub_u32 s{sT2}, s{sT2}, s{sT0}""")
    a(f"""s_lshl_b32 s{sOW}, s{sT2}, 19
    s_lshl_b32 s{sOX}, s{sT2}, 7
    s_lshl_b32 s{sT0}, s{sH}, 8
    v_lshlrev_b32 v{vT}, 1, v{vG}
    v_xor_b32 v{vT}, v{vT}, v{vC}
    v_lshlrev_b32 v{vT}, 4, v{vT}
    v_lshl_add_u32 v{vW}, v{vG}, 13, v{vT}
    v_add_u32 v{vW}, s{sT0}, v{vW}
    v_add_u32 v{vW+1}, {4*8192 - 1024}, v{vW}
    v_xor_b32 v{vW+2}, 0x80, v{vW}
    v_add_u32 v{vW+3}, {12*8192 - 3072}, v{vW+2}
    v_add_u32 v{vW+2}, {8*8192 - 2048}, v{vW+2}
    s_mul_i32 s{sT0}, s{sP}, {96*1280}
    v_lshrrev_b32 v{vT+1}, 3, v{vL}
    v_and_b32 v{vT+2}, 7, v{vL}
    v_xor_b32 v{vT+2}, v{vT+2}, v{vT+1}
    v_lshlrev_b32 v{vT+2}, 4, v{vT+2}
    v_mul_u32_u24 v{vX}, 1280, v{vT+1}
    v_add3_u32 v{vX}, v{vX}, v{vT+2}, s{sT0}
    v_add_u32 v{vX+1}, {8*1280 - 1024}, v{vX}
    v_add_u32 v{vX+2}, {16*1280 - 2048}, v{vX}
    v_add_u32 v{vX+3}, {24*1280 - 3072}, v{vX}
    s_waitcnt lgkmcnt(0)""")
    srd(a, sW, 46, W_BYTES); srd(a, sX, 40, X_BYTES)
    sSlot, sI = 31, 32
    def issueG():
        for jj in range(4):
            a(f"s_add_u32 m0, s{sSlot}, {12288 + jj*4096}")
            a(f"s_add_u32 s{sT0}, s{sOW}, {jj*16*8192}")
            for i in range(4):
                a(f"buffer_load_dwordx4 v{vW+i}, s[{sW}:{sW+3}], s{sT0} offen offset:{i*1024} {OPT['ntw']} lds")
        for jj in range(3):
            a(f"s_add_u32 m0, s{sSlot}, {jj*4096}")
            a(f"s_add_u32 s{sT0}, s{sOX}, {jj*32*1280}")
            for i in range(4):
                a(f"buffer_load_dwordx4 v{vX+i}, s[{sX}:{sX+3}], s{sT0} offen offset:{i*1024} {OPT['ntx']} lds")
        a(f"""s_add_u32 s{sOW}, s{sOW}, {64*8192}
        s_add_u32 s{sOX}, s{sOX}, 128
        s_cmp_ge_u32 s{sOX}, 1280
        s_cselect_b32 s{sOW}, 0, s{sOW}
        s_cselect_b32 s{sOX}, 0, s{sOX}
        s_add_u32 s{sSlot}, s{sSlot}, {SLOT}
        s_cmp_ge_u32 s{sSlot}, {NSLOT*SLOT}
        s_cselect_b32 s{sSlot}, 0, s{sSlot}""")
    a(f"""s_mov_b32 s{sSlot}, 0
    s_mov_b32 s{sI}, 1""")
    issueG()
    srd(a, sK, 42, KV_BYTES); srd(a, sV, 44, KV_BYTES)
    a(f"""s_lshl_b32 s{sKV}, s{sP}, 6
    s_add_u32 s{sKV}, s{sKV}, s{sH}
    s_mul_i32 s{sKV}, s{sKV}, 12288
    v_xor_b32 v{vT+1}, v{vC}, v{vG}
    v_lshlrev_b32 v{vT+1}, 4, v{vT+1}
    v_lshl_add_u32 v{vK}, v{vG}, 8, v{vT+1}
    v_xor_b32 v{vK+1}, 64, v{vK}
    v_xor_b32 v{vK+2}, 128, v{vK}
    v_xor_b32 v{vK+3}, 192, v{vK}
    v_lshl_add_u32 v{vV}, v{vG}, 8, v{vT}
    v_xor_b32 v{vV+1}, 128, v{vV}""")
    set_cls()
    sWo = 56
    vW2, vO, vF = 28, 32, 36
    sR2, sRho, sSig, sSplit, sRdy = 50, 40, 41, 42, 44
    srd(a, sWo, 4, W_BYTES); srd(a, sS, 48, WS_USED); srd(a, sD, 60, 256)
    a("s_mov_b64 s[46:47], s[6:7]")
    decode_tile()
    a(f"""s_mul_i32 s{sT0}, s{sJ}, {512*1280}
    s_lshl_b32 s{sT1}, s{sTB}, 8
    s_add_u32 s{sT0}, s{sT0}, s{sT1}
    v_mul_u32_u24 v{vW2}, 1280, v{vG}
    v_add3_u32 v{vW2}, v{vW2}, v{vT}, s{sT0}
    v_xor_b32 v{vW2+1}, 0x80, v{vW2}
    v_add_u32 v{vW2+2}, {8*1280 - 2048}, v{vW2}
    v_add_u32 v{vW2+3}, {12*1280 - 3072}, v{vW2+1}
    v_add_u32 v{vW2+1}, {4*1280 - 1024}, v{vW2+1}
    s_lshl_b32 s{sT0}, s{sTA}, 10
    s_lshl_b32 s{sT1}, s{sJ}, 4
    s_add_u32 s{sT0}, s{sT0}, s{sT1}
    s_lshl_b32 s{sT0}, s{sT0}, 10
    v_lshlrev_b32 v{vO}, 4, v{vL}
    v_add_u32 v{vO}, s{sT0}, v{vO}
    s_mul_i32 s{sT0}, s{sTA}, 43
    s_lshr_b32 s{sT0}, s{sT0}, 5
    s_mul_i32 s{sSplit}, s{sT0}, 6
    s_add_u32 s{sSplit}, s{sSplit}, 6
    s_lshl_b32 s{sT1}, s{sTA}, 3
    s_sub_u32 s{sSplit}, s{sSplit}, s{sT1}
    s_lshl_b32 s{sT0}, s{sT0}, 5
    s_add_u32 s{sT0}, s{sT0}, s{sJ}
    v_and_b32 v{vF}, 7, v{vL}
    v_lshl_add_u32 v{vF}, v{vF}, 3, s{sT0}
    v_lshlrev_b32 v{vF}, {FS}, v{vF}
    v_lshlrev_b32 v{vF+2}, 2, v{vL}
    s_and_b32 s{sRho}, s{sTA}, 3
    s_lshl_b32 s{sR2}, s{sRho}, 2
    s_lshl_b32 s{sRho}, s{sRho}, 12
    s_add_u32 s{sSig}, s{sJ}, 1
    s_and_b32 s{sSig}, s{sSig}, 7
    s_mov_b32 s{sRdy}, 0""")
    def issueWo(t):
        a(f"s_mul_i32 s{sT1}, s{sR2}, {32*1280}")
        for jj in range(2):
            a(f"s_mov_b32 m0, {WOBLK[t]*8192 + jj*4096}")
            a(f"s_add_u32 s{sT0}, s{sT1}, {jj*16*1280}")
            for i in range(4):
                a(f"buffer_load_dwordx4 v{vW2+i}, s[{sWo}:{sWo+3}], s{sT0} offen offset:{i*1024} {OPT['ntwo']} lds")
        a(f"""s_add_u32 s{sR2}, s{sR2}, 1
        s_and_b32 s{sR2}, s{sR2}, 15""")
    def issueO(u):
        l1 = L()
        a(f"""s_cmp_lt_u32 s{sSig}, s{sSplit}
        s_cselect_b32 s{sT2}, 0xf, 0xf0
        s_andn2_b32 s{sT1}, s{sT2}, s{sRdy}
        s_cbranch_scc0 {l1}
        s_call_b64 s[4:5], L_poll1""")
        a(f"{l1}:")
        a(f"s_lshl_b32 s{sT1}, s{sSig}, 17")
        for G in range(4):
            a(f"s_mov_b32 m0, {OREG(u) + G*4096}")
            a(f"s_add_u32 s{sT0}, s{sT1}, s{sRho}")
            for i in range(4):
                a(f"buffer_load_dwordx4 v{vO}, s[{sS}:{sS+3}], s{sT0} offen offset:{i*1024} sc1 lds")
            a(f"""s_add_u32 s{sRho}, s{sRho}, 4096
            s_and_b32 s{sRho}, s{sRho}, 0x3fff""")
        a(f"""s_add_u32 s{sSig}, s{sSig}, 1
        s_and_b32 s{sSig}, s{sSig}, 7""")
    kvgroups = [(base, s_, vreg, nv, b, jj) for (base, s_, vreg, nv) in ((KBASE, sK, vK, 4), (VBASE, sV, vV, 2)) for b in range(2) for jj in range(3)]
    def kvgroup(gi):
        base, s_, vreg, nv, b, jj = kvgroups[gi]
        a(f"s_mov_b32 m0, {base + b*12288 + jj*4096}")
        a(f"s_add_u32 s{sT0}, s{sKV}, {b*32*12288 + jj*4096}")
        for i in range(4):
            a(f"buffer_load_dwordx4 v{vreg + i % nv}, s[{s_}:{s_+3}], s{sT0} offen offset:{i*1024} {OPT['ntkv']} lds")
    st()
    a("L_gissue:")
    issueG()
    a(f"""L_gnext:
    s_add_u32 s{sI}, s{sI}, 1""")
    a(f"""L_ploop:
    s_waitcnt vmcnt({OPT['pw']})
    s_barrier
    s_cmp_eq_u32 s{sI}, 12
    s_cbranch_scc1 L_pdone
    s_sub_u32 s{sT0}, s{sI}, s{sCls}
    s_cmp_gt_u32 s{sT0}, 1
    s_cbranch_scc1 L_gissue
    s_cmp_eq_u32 s{sT0}, 1
    s_cbranch_scc1 L_vissue""")
    if OPT["ftouch"] & 1:
        a(f"""s_mov_b32 s{sT0}, {F1_OFF}
        buffer_load_dword v{vF+3}, v{vF}, s[{sS}:{sS+3}], s{sT0} offen {OPT['tf']}""")
    if OPT["ftouch"] & 2:
        a(f"""s_lshl_b32 s{sT0}, s2, {5+FS}
        s_add_u32 s{sT0}, s{sT0}, {F2_OFF}
        v_and_b32 v40, 31, v{vL}
        v_lshlrev_b32 v40, {FS}, v40
        buffer_load_dword v41, v40, s[{sS}:{sS+3}], s{sT0} offen {OPT['tf']}""")
    if OPT["ftouch"] & 4:
        a(f"""s_mul_i32 s{sT0}, s{sP}, 6
        s_lshl_b32 s{sT0}, s{sT0}, 7
        s_lshl_b32 s{sT1}, s{sH}, 2
        s_add_u32 s{sT0}, s{sT0}, s{sT1}
        s_lshl_b32 s{sT0}, s{sT0}, 10
        v_min_u32 v40, 5, v{vL}
        v_lshlrev_b32 v40, 17, v40
        buffer_load_dword v41, v40, s[{sS}:{sS+3}], s{sT0} offen {OPT['tf']}
        v_and_b32 v40, 7, v{vL}
        v_lshlrev_b32 v42, 17, v40
        s_lshl_b32 s{sT0}, s{sTA}, 20
        s_lshl_b32 s{sT1}, s{sJ}, 14
        s_add_u32 s{sT0}, s{sT0}, s{sT1}
        buffer_load_dword v41, v42, s[{sS}:{sS+3}], s{sT0} offen {OPT['tf']}
        v_lshlrev_b32 v42, 15, v40
        s_andn2_b32 s{sT0}, s2, 7
        s_lshl_b32 s{sT0}, s{sT0}, 3
        s_add_u32 s{sT0}, s{sT0}, s{sJ}
        s_lshl_b32 s{sT0}, s{sT0}, 12
        s_add_u32 s{sT0}, s{sT0}, {P_OFF}
        buffer_load_dword v41, v42, s[{sS}:{sS+3}], s{sT0} offen {OPT['tf']}""")
    if OPT["ftouch"] & 8:
        a(f"""v_and_b32 v40, 7, v{vL}
        v_mul_u32_u24 v42, {64*1280}, v40
        s_mul_i32 s{sT0}, s{sJ}, {512*1280}
        buffer_load_dword v41, v42, s[{sWo}:{sWo+3}], s{sT0} offen
        s_mul_i32 s{sT0}, s{sP}, {96*1280}
        v_mov_b32 v42, s{sT0}
        global_load_dword v41, v42, s[46:47]""")
    for gi in range(6): kvgroup(gi)
    a("s_branch L_gnext")
    a("L_vissue:")
    for gi in range(6, 12): kvgroup(gi)
    a("s_branch L_gnext")
    a("L_pdone:")
    st.n = 5
    a(f"s_load_dword s{sN}, s[60:61], 0")
    a("s_cmp_ge_u32 s2, 240")
    a("s_cbranch_scc1 L_prod_notile")
    for t in range(0, 4): issueWo(t)
    a(f"s_waitcnt vmcnt(32)")
    a("s_barrier")
    st()
    get_nonce(vF+1)
    a("s_barrier")
    st()
    for t in range(4, OPT["woq"]): issueWo(t)
    st()
    a("s_barrier")
    st()
    for t in range(OPT["woq"], 16): issueWo(t)
    a("s_waitcnt vmcnt(0)")
    a("s_barrier")
    st()
    a(f"""s_mov_b32 s{sT0}, {F1_OFF}
    buffer_load_dword v{vF+3}, v{vF}, s[{sS}:{sS+3}], s{sT0} offen sc1
    s_barrier""")
    a(f"""s_waitcnt vmcnt(0)
    v_cmp_eq_u32 s[{sRdy}:{sRdy+1}], s{sN}, v{vF+3}
    s_nop 1""")
    issueO(0)
    n0 = st.n; st.n = 12; st(); st.n = n0
    bset = [int(c) for c in str(OPT["bset"])[1:]]
    sched = [int(c) for c in str(OPT["osched"])[1:]]
    nxo = 1
    for bi, u in enumerate(bset):
        tgt = sched[bi] if bi < len(sched) else 8
        while nxo < tgt: issueO(nxo); nxo += 1
        lastneeded = (bset[bi+1] - 1) if bi + 1 < len(bset) else 7
        assert lastneeded < nxo
        a(f"s_waitcnt vmcnt({min(63, 16*(nxo - 1 - lastneeded))})")
        a("s_barrier")
        if u in (0, 4): st()
    a("s_branch L_done")
    a("L_prod_notile:")
    a(f"""s_waitcnt vmcnt(0)
    s_barrier
    s_branch L_done""")
    a("L_poll1:")
    a(f"""s_mov_b32 s{sCnt}, 0
    s_mov_b32 s{sT0}, {F1_OFF}
    L_poll1_loop:
    buffer_load_dword v{vF+3}, v{vF}, s[{sS}:{sS+3}], s{sT0} offen sc1
    s_add_u32 s{sCnt}, s{sCnt}, 1
    s_waitcnt vmcnt(0)
    v_cmp_eq_u32 s[{sRdy}:{sRdy+1}], s{sN}, v{vF+3}
    s_cmp_gt_u32 s{sCnt}, {OPT['spin']}
    s_cbranch_scc1 L_poll1_end
    s_andn2_b32 s{sT1}, s{sT2}, s{sRdy}
    s_cbranch_scc1 L_poll1_loop
    L_poll1_end:
    s_setpc_b64 s[4:5]""")

    a("L_notprod:")
    vRB = 12; vRA = 16
    vQW, vQR, vKR, vVR, vOo, vNo, vTR = 24, 25, 26, 27, 28, 29, 30
    ACC = 32; FA = [80, 108]
    def acc(tt, i): return ACC + (tt*3 + i)*4
    if OPT["cpf"]:
        a(f"""s_cmp_lg_u32 s{sWv}, 6
        s_cbranch_scc1 L_nocpf
        s_getpc_b64 s[{sY}:{sY+1}]
        L_pcref:
        s_sub_u32 s{sY}, s{sY}, L_pcref-{KN}
        s_subb_u32 s{sY+1}, s{sY+1}, 0
        s_bfe_u32 s{sT0}, s2, 0x30003
        s_mul_i32 s{sT0}, s{sT0}, 24
        v_min_u32 v{vT}, 23, v{vL}
        v_add_u32 v{vT}, s{sT0}, v{vT}
        v_lshlrev_b32 v{vT}, 7, v{vT}
        v_min_u32 v{vT}, L_codeend-{KN}-4, v{vT}
        global_load_dword v250, v{vT}, s[{sY}:{sY+1}]
        L_nocpf:""")
    a("s_waitcnt lgkmcnt(0)")
    srd(a, sS, 48, WS_USED); srd(a, sD, 60, 256); srd(a, sY, 6, X_BYTES)
    a(f"""s_lshl_b32 s{sT0}, s2, 3
    s_add_u32 s{sT0}, s{sT0}, s{sWv}
    s_cmp_lg_u32 s{sT0}, 5
    s_cbranch_scc1 L_nononce
    s_mov_b32 s{sT0}, {E_OFF}
    buffer_load_dword v{vT}, off, s[{sS}:{sS+3}], s{sT0} sc1
    s_mov_b32 s{sT1}, 0x9e3779b1
    s_waitcnt vmcnt(0)
    v_mul_lo_u32 v{vT}, v{vT}, s{sT1}
    v_add_u32 v{vT}, 0x7f4a7c15, v{vT}
    v_max_u32 v{vT}, 1, v{vT}
    s_mov_b64 exec, 1
    buffer_store_dword v{vT}, off, s[{sD}:{sD+3}], 0 sc1
    buffer_store_dword v{vT}, off, s[{sS}:{sS+3}], s{sT0} sc1
    s_mov_b64 exec, -1
    L_nononce:""")
    a(f"""s_cmp_gt_u32 s{sWv}, 4
    s_cselect_b32 s{sT0}, 1, 0
    s_sub_u32 s{sJ}, s{sWv}, s{sT0}
    s_lshl_b32 s{sT0}, s{sJ}, 12
    s_add_u32 s{sT0}, s{sT0}, {QX}
    v_lshlrev_b32 v{vOo}, 4, v{vL}
    v_add_u32 v{vQR}, s{sT0}, v{vOo}
    s_cmp_ge_u32 s{sJ}, 3
    s_cselect_b32 s{sT2}, 12288, 0
    v_lshrrev_b32 v{vT}, 1, v{vG}
    v_xor_b32 v{vT}, v{vT}, v{vC}
    v_lshlrev_b32 v{vT}, 4, v{vT}
    v_lshl_add_u32 v{vT}, v{vC}, 8, v{vT}
    v_and_b32 v{vT+1}, 1, v{vG}
    v_lshl_add_u32 v{vT}, v{vT+1}, 3, v{vT}
    s_add_u32 s{sT0}, s{sT2}, {KBASE}
    v_add_u32 v{vKR}, s{sT0}, v{vT}
    v_lshrrev_b32 v{vT}, 2, v{vC}
    v_lshl_add_u32 v{vT}, v{vG}, 2, v{vT}
    v_and_b32 v{vT+1}, 7, v{vT}
    v_lshlrev_b32 v{vT+1}, 5, v{vT+1}
    v_lshl_add_u32 v{vT}, v{vT}, 8, v{vT+1}
    v_and_b32 v{vT+1}, 3, v{vC}
    v_lshl_add_u32 v{vTR}, v{vT+1}, 3, v{vT}
    s_add_u32 s{sT0}, s{sT2}, {VBASE}
    v_add_u32 v{vVR}, s{sT0}, v{vTR}
    s_lshr_b32 s{sB}, s{sWv}, 1
    s_and_b32 s{sDH}, s{sWv}, 1
    s_mul_i32 s{sT0}, s{sB}, 12288
    s_lshl_b32 s{sT1}, s{sDH}, 11
    s_add_u32 s{sT0}, s{sT0}, s{sT1}
    s_add_u32 s{sT0}, s{sT0}, {QX}
    v_add_u32 v{vQW}, s{sT0}, v{vOo}
    s_mul_i32 s{sT0}, s{sP}, 6
    s_add_u32 s{sT0}, s{sT0}, s{sJ}
    s_lshl_b32 s{sT0}, s{sT0}, 7
    s_lshl_b32 s{sT1}, s{sH}, 2
    s_add_u32 s{sT0}, s{sT0}, s{sT1}
    s_lshl_b32 s{sT0}, s{sT0}, 10
    v_add_u32 v{vOo}, s{sT0}, v{vOo}""")
    c = (128 ** -0.5) * math.log2(math.e)
    cb = struct.unpack('<I', struct.pack('<f', c))[0]
    a(f"s_mov_b32 s{sC}, {cb:#x}")
    a(f"s_mov_b32 s{sC+1}, {cb:#x}")
    set_cls()
    a(f"s_cmp_lt_u32 s{sWv}, 4")
    a("s_cbranch_scc1 L_cons")
    KF, VF = 136, 184
    def k_reads():
        r = []
        for T in range(4):
            for hf in range(2):
                tmp = vT + ((2*T+hf) & 3)
                r.append(f"v_xor_b32 v{tmp}, {64*T + 32*hf}, v{vKR}")
                for kt in range(3):
                    r.append(f"ds_read_b64 {vr(KF+(kt*4+T)*4+2*hf,2)}, v{tmp} offset:{kt*4096}")
        return r
    def v_reads():
        r = []
        for t in range(8):
            tmp = vT + 4 + (t & 3)
            r.append(f"v_xor_b32 v{tmp}, {32*t}, v{vVR}")
            for q in range(3):
                r.append(f"ds_read_b64_tr_b16 {vr(VF+t*6+2*q,2)}, v{tmp} offset:{q*4096}")
        return r
    def kvcall(kk):
        if kk in kvs:
            l = L()
            a(f"s_cmp_lg_u32 s{sCls}, {kk}")
            a(f"s_cbranch_scc1 {l}")
            a(f"s_call_b64 s[4:5], L_kvread")
            a(f"{l}:")
    for kk in range(10):
        kvcall(kk)
        a("s_barrier")
        if kk == 6: a(f"s_load_dword s{sN}, s[60:61], 0")
    a("s_branch L_qx")
    a("L_kvread:")
    a("s_barrier")
    for x in k_reads(): a(x)
    a("s_barrier")
    for x in v_reads(): a(x)
    a("s_setpc_b64 s[4:5]")
    a("L_cons:")
    a(f"""s_mul_i32 s{sT0}, s{sB}, {48*128}
    v_and_b32 v{vT}, 7, v{vC}
    v_xor_b32 v{vT}, v{vT}, v{vG}
    v_lshlrev_b32 v{vT}, 4, v{vT}
    v_lshl_add_u32 v{vT}, v{vC}, 7, v{vT}
    v_add_u32 v{vRB}, s{sT0}, v{vT}
    v_xor_b32 v{vRB+2}, 64, v{vRB}
    v_add_u32 v{vRB+1}, {2*SLOT}, v{vRB}
    v_add_u32 v{vRB+3}, {2*SLOT}, v{vRB+2}
    v_lshrrev_b32 v{vT}, 2, v{vC}
    v_lshl_add_u32 v{vT+1}, v{vG}, 3, v{vT}
    v_lshlrev_b32 v{vT+1}, 8, v{vT+1}
    v_and_b32 v{vT+2}, 1, v{vG}
    v_lshlrev_b32 v{vT+2}, 3, v{vT+2}
    v_lshl_add_u32 v{vT+2}, v{vT}, 1, v{vT+2}
    v_and_b32 v{vT+3}, 3, v{vC}
    v_lshlrev_b32 v{vT+3}, 3, v{vT+3}
    v_add_u32 v{vT+1}, v{vT+1}, v{vT+3}
    v_add_u32 v{vT+1}, 12288, v{vT+1}
    s_lshl_b32 s{sT0}, s{sDH}, 3
    v_xor_b32 v{vT+2}, s{sT0}, v{vT+2}
    v_lshl_add_u32 v{vRA}, v{vT+2}, 4, v{vT+1}""")
    for tt in range(1, 4):
        a(f"v_xor_b32 v{vRA+2*tt}, {32*tt}, v{vRA}")
    for tt in range(4):
        a(f"v_add_u32 v{vRA+2*tt+1}, {2*SLOT}, v{vRA+2*tt}")
    def reads(kk, sub, fs):
        slot = kk % NSLOT; hi = slot >> 1; so = (slot & 1)*SLOT; F = FA[fs]
        r = [f"ds_read_b128 {vr(F+16,4)}, v{vRB+2*sub+hi} offset:{so}"]
        for tt in range(4):
            for q in range(2):
                r.append(f"ds_read_b64_tr_b16 {vr(F+4*tt+2*q,2)}, v{vRA+2*tt+hi} offset:{so + (32*sub + 4*q)*256}")
        for i in range(1, 3):
            r.append(f"ds_read_b128 {vr(F+16+4*i,4)}, v{vRB+2*sub+hi} offset:{so + i*2048}")
        return r
    def mfmas(fs, first):
        F = FA[fs]; r = []
        for i in range(3):
            for tt in range(4):
                cc = "0" if first else vr(acc(tt,i),4)
                r.append(f"v_mfma_f32_16x16x32_bf16 {vr(acc(tt,i),4)}, {vr(F+4*tt,4)}, {vr(F+16+4*i,4)}, {cc}")
        return r
    st.n = 1; st()
    for kk in range(9):
        kvcall(kk)
        a("s_barrier")
        if kk in (0, 3, 7): st()
        if kk == 6: a(f"s_load_dword s{sN}, s[60:61], 0")
        mix(a, mfmas(1, False) if kk else [], reads(kk, 0, 0), per=OPT['rper'])
        a("s_waitcnt lgkmcnt(0)")
        mix(a, mfmas(0, kk == 0), reads(kk, 1, 1), per=OPT['rper'])
        a("s_waitcnt lgkmcnt(0)")
    QW = 232
    def qcvt(i):
        r = []
        for T in range(2):
            d = QW + (i*2+T)*4
            for u in range(2):
                s_ = acc(2*T+u, i)
                r.append(f"v_cvt_pk_bf16_f32 v{d+2*u}, v{s_}, v{s_+1}")
                r.append(f"v_cvt_pk_bf16_f32 v{d+2*u+1}, v{s_+2}, v{s_+3}")
            r.append(f"ds_write_b128 v{vQW}, {vr(d,4)} offset:{i*4096 + T*1024}")
        return r
    m0_, m1_ = mfmas(0, False), mfmas(1, False)
    for m in m1_: a(m)
    a("s_barrier")
    st()
    r0, r1 = reads(9, 0, 0), reads(9, 1, 1)
    for x in r0[:9] + r1[:6]: a(x)
    a("s_waitcnt lgkmcnt(6)")
    mix(a, m0_[:4], r1[6:9] + [r0[9], r1[9], r0[10], r1[10]], per=2, lead=False)
    a("s_waitcnt lgkmcnt(4)")
    for m in m1_[:4]: a(m)
    a("s_waitcnt lgkmcnt(2)")
    for m in m0_[4:8] + m1_[4:7]: a(m)
    a("s_waitcnt lgkmcnt(0)")
    mix(a, m1_[7:8] + m0_[8:], qcvt(0), per=2, lead=False)
    mix(a, m1_[8:], qcvt(1)[:6], per=2, lead=True)
    for x in qcvt(1)[6:]: a(x)
    a("s_nop 3")
    for x in qcvt(2): a(x)
    a("L_qx:")
    a("s_waitcnt lgkmcnt(0)")
    a("s_barrier")
    st()
    QF = 56; SA = 32; PF = 44; OA = 80
    for T in range(4):
        a(f"ds_read_b128 {vr(QF+4*T,4)}, v{vQR} offset:{T*1024}")
    for T in range(4):
        a(f"s_waitcnt lgkmcnt({3-T})")
        for kt in range(3):
            cc = "0" if T == 0 else vr(SA+4*kt,4)
            a(f"v_mfma_f32_16x16x32_bf16 {vr(SA+4*kt,4)}, {vr(KF+(kt*4+T)*4,4)}, {vr(QF+4*T,4)}, {cc}")
    a(f"""v_mov_b32 v{vNo}, 0
    v_mov_b32 v{vQW}, {CNT}
    ds_write_b32 v{vQW}, v{vNo}""")
    M, M2, Ls, L2 = 4, 5, 6, 7
    v = [SA+j for j in range(12)]
    a(f"""s_nop 2
    v_max3_f32 v{M}, v{v[0]}, v{v[1]}, v{v[2]}
    v_max3_f32 v{M2}, v{v[3]}, v{v[4]}, v{v[5]}
    v_max3_f32 v{Ls}, v{v[6]}, v{v[7]}, v{v[8]}
    v_max3_f32 v{L2}, v{v[9]}, v{v[10]}, v{v[11]}
    v_max3_f32 v{M}, v{M}, v{M2}, v{Ls}
    v_max_f32 v{M}, v{M}, v{L2}""")
    for sw in ("v_permlane32_swap_b32", "v_permlane16_swap_b32"):
        a(f"""v_mov_b32 v{M2}, v{M}
        s_nop 1
        {sw} v{M}, v{M2}
        v_max_f32 v{M}, v{M}, v{M2}""")
    a(f"v_mul_f32 v{M}, s{sC}, v{M}")
    for j in range(6):
        a(f"v_pk_fma_f32 {vr(SA+2*j,2)}, {vr(SA+2*j,2)}, s[{sC}:{sC+1}], {vr(M,2)} op_sel_hi:[1,1,0] neg_lo:[0,0,1] neg_hi:[0,0,1]")
    for x in v: a(f"v_exp_f32 v{x}, v{x}")
    a("s_waitcnt lgkmcnt(0)")
    for j in range(6):
        a(f"v_cvt_pk_bf16_f32 v{PF+j}, v{SA+2*j}, v{SA+2*j+1}")
    a(f"v_pk_add_f32 {vr(Ls,2)}, {vr(SA,2)}, {vr(SA+2,2)}")
    pv = [f"v_mfma_f32_16x16x32_bf16 {vr(OA+4*t,4)}, {vr(VF+t*6,4)}, {vr(PF,4)}, 0" for t in range(8)]
    pv += [f"v_mfma_f32_16x16x16_bf16 {vr(OA+4*t,4)}, {vr(VF+t*6+4,2)}, {vr(PF+4,2)}, {vr(OA+4*t,4)}" for t in range(8)]
    sm = [f"v_pk_add_f32 {vr(M,2)}, {vr(SA+4,2)}, {vr(SA+6,2)}",
          f"v_pk_add_f32 {vr(Ls,2)}, {vr(Ls,2)}, {vr(SA+8,2)}",
          f"v_pk_add_f32 {vr(M,2)}, {vr(M,2)}, {vr(SA+10,2)}",
          f"v_pk_add_f32 {vr(Ls,2)}, {vr(Ls,2)}, {vr(M,2)}",
          f"v_add_f32 v{Ls}, v{Ls}, v{L2}",
          f"v_mov_b32 v{L2}, v{Ls}", "s_nop 0",
          f"v_permlane32_swap_b32 v{Ls}, v{L2}",
          f"v_add_f32 v{Ls}, v{Ls}, v{L2}",
          f"v_mov_b32 v{L2}, v{Ls}", "s_nop 0",
          f"v_permlane16_swap_b32 v{Ls}, v{L2}",
          f"v_add_f32 v{Ls}, v{Ls}, v{L2}",
          f"v_rcp_f32 v{Ls}, v{Ls}"]
    mix(a, pv, sm, per=1)
    a("s_nop 0")
    for T in range(4):
        d = QF + 4*T
        for u in range(2):
            s_ = OA + 4*(2*T+u)
            a(f"v_pk_mul_f32 {vr(s_,2)}, {vr(s_,2)}, {vr(Ls,2)} op_sel_hi:[1,0]")
            a(f"v_pk_mul_f32 {vr(s_+2,2)}, {vr(s_+2,2)}, {vr(Ls,2)} op_sel_hi:[1,0]")
        for u in range(2):
            s_ = OA + 4*(2*T+u)
            a(f"v_cvt_pk_bf16_f32 v{d+2*u}, v{s_}, v{s_+1}")
            a(f"v_cvt_pk_bf16_f32 v{d+2*u+1}, v{s_+2}, v{s_+3}")
        a(f"buffer_store_dwordx4 {vr(d,4)}, v{vOo}, s[{sS}:{sS+3}], 0 offen offset:{T*1024} sc1")
    st()
    a("s_barrier")
    get_nonce(vNo)
    a(f"""v_mov_b32 v{vT}, 1
    v_mov_b32 v{vNo}, s{sN}
    v_lshlrev_b32 v31, 2, v{vL}
    s_lshl_b32 s{sT0}, s2, {FS}
    s_add_u32 s{sT0}, s{sT0}, {F1_OFF}
    s_mov_b64 exec, 1
    s_waitcnt vmcnt(0)
    ds_add_rtn_u32 v{vT+1}, v{vQW}, v{vT}
    s_waitcnt lgkmcnt(0)
    v_readfirstlane_b32 s{sT1}, v{vT+1}
    s_mov_b32 exec_lo, {-1 if OPT['f1full'] else 1}
    s_cmp_lg_u32 s{sT1}, 5
    s_cbranch_scc1 L_noflag
    buffer_store_dword v{vNo}, v31, s[{sS}:{sS+3}], s{sT0} offen sc1
    L_noflag:
    s_mov_b64 exec, -1
    s_cmp_ge_u32 s2, 240
    s_cbranch_scc1 L_done
    s_cmp_lt_u32 s{sWv}, 4
    s_cbranch_scc1 L_ph2
    s_barrier
    s_barrier
    s_endpgm
    L_ph2:""")
    st()
    vRA2, vB0, vB1, vB2, vPo, vF2, vPw, vOut, vFa, vFb = 12, 16, 17, 18, 25, 26, 27, 28, 19, 20
    sSig = 40
    AR = 32; BS = [160, 192]; AC = [224, 232]; ST = [240, 244]
    decode_tile()
    a(f"""s_lshl_b32 s{sT0}, s{sWv}, 6
    v_xor_b32 v{vRA2}, s{sT0}, v{vTR}
    v_xor_b32 v{vRA2+2}, 32, v{vRA2}
    v_add_u32 v{vRA2+1}, 0x10000, v{vRA2}
    v_add_u32 v{vRA2+3}, 0x10000, v{vRA2+2}
    v_lshlrev_b32 v{vB0}, 4, v{vL}
    v_add_u32 v{vB1}, 0x10000, v{vB0}
    v_add_u32 v{vB2}, 0x20000, v{vB0}
    s_add_u32 s{sSig}, s{sJ}, 1
    s_and_b32 s{sSig}, s{sSig}, 7
    s_lshl_b32 s{sSig}, s{sSig}, 15
    s_andn2_b32 s{sT0}, s2, 7
    s_lshl_b32 s{sT0}, s{sT0}, 3
    s_add_u32 s{sT0}, s{sT0}, s{sJ}
    s_lshl_b32 s{sT0}, s{sT0}, 12
    s_lshl_b32 s{sT1}, s{sWv}, 10
    s_add_u32 s{sT0}, s{sT0}, s{sT1}
    s_add_u32 s{sT0}, s{sT0}, {P_OFF}
    v_add_u32 v{vPw}, s{sT0}, v{vB0}
    s_lshl_b32 s{sT0}, s2, 15
    s_add_u32 s{sT0}, s{sT0}, s{sT1}
    s_add_u32 s{sT0}, s{sT0}, {P_OFF}
    v_add_u32 v{vPo}, s{sT0}, v{vB0}
    s_lshl_b32 s{sT0}, s2, 2
    s_add_u32 s{sT0}, s{sT0}, s{sWv}
    s_lshl_b32 s{sT0}, s{sT0}, {3+FS}
    s_add_u32 s{sT0}, s{sT0}, {F2_OFF}
    v_min_u32 v{vF2}, 6, v{vL}
    v_lshlrev_b32 v{vF2}, {FS}, v{vF2}
    v_add_u32 v{vF2}, s{sT0}, v{vF2}
    s_andn2_b32 s{sT0}, s2, 7
    s_lshl_b32 s{sT0}, s{sT0}, 2
    s_add_u32 s{sT0}, s{sT0}, s{sWv}
    s_lshl_b32 s{sT0}, s{sT0}, {3+FS}
    s_add_u32 s{sT0}, s{sT0}, {F2_OFF}
    s_add_u32 s{sT1}, s{sJ}, 1
    v_add_u32 v{vT}, s{sT1}, v{vL}
    v_and_b32 v{vT}, 7, v{vT}
    v_lshlrev_b32 v{vT}, 5, v{vT}
    v_add_u32 v{vT}, v{vT}, v{vL}
    v_lshlrev_b32 v{vT}, {FS}, v{vT}
    v_add_u32 v{vT}, s{sT0}, v{vT}
    v_mov_b32 v{vT+1}, 0x7ffffff0
    v_cmp_gt_u32 vcc, {OPT['fsplit']}, v{vL}
    s_nop 1
    v_cndmask_b32 v{vFa}, v{vT+1}, v{vT}, vcc
    v_cndmask_b32 v{vFb}, v{vT}, v{vT+1}, vcc
    v_cmp_gt_u32 vcc, 7, v{vL}
    s_nop 1
    v_cndmask_b32 v{vFb}, v{vT+1}, v{vFb}, vcc
    s_lshl_b32 s{sT0}, s{sTA}, 3
    s_add_u32 s{sT0}, s{sT0}, s{sJ}
    s_mul_i32 s{sT0}, s{sT0}, {16*1280}
    s_lshl_b32 s{sT1}, s{sTB}, 8
    s_add_u32 s{sT0}, s{sT0}, s{sT1}
    s_lshl_b32 s{sT1}, s{sWv}, 6
    s_add_u32 s{sT0}, s{sT0}, s{sT1}
    v_mul_u32_u24 v{vOut}, 1280, v{vC}
    v_lshl_add_u32 v{vOut}, v{vG}, 3, v{vOut}
    v_add_u32 v{vOut}, s{sT0}, v{vOut}
    s_barrier""")
    st()
    for t in range(16):
        ad = WOBLK[t]*8192; hi = ad >> 16; lo = ad & 0xffff
        for tt in range(2):
            for q in range(2):
                a(f"ds_read_b64_tr_b16 {vr(AR+(t*2+tt)*4+2*q,2)}, v{vRA2+2*tt+hi} offset:{lo + q*4096}")
    a("s_waitcnt lgkmcnt(0)")
    a("s_barrier")
    def breads(hp):
        u, hf = hp >> 1, hp & 1
        ad = OREG(u) + hf*8192
        base = [vB0, vB1, vB2][ad >> 16]
        return [f"ds_read_b128 {vr(BS[hf]+4*k,4)}, v{base} offset:{(ad & 0xffff) + k*1024}" for k in range(8)]
    def mf2(hp):
        u, hf = hp >> 1, hp & 1
        r = []
        for k in range(8):
            for tt in range(2):
                d = AC[u & 1] + 4*tt
                cc = "0" if (hf == 0 and k == 0) else vr(d,4)
                r.append(f"v_mfma_f32_16x16x32_bf16 {vr(d,4)}, {vr(AR+((hf*8+k)*2+tt)*4,4)}, {vr(BS[hf]+4*k,4)}, {cc}")
        return r
    def pstore(u):
        s_ = AC[u & 1]; d = ST[u & 1]
        return [f"v_cvt_pk_bf16_f32 v{d+j}, v{s_+2*j}, v{s_+2*j+1}" for j in range(4)] + \
               [f"buffer_store_dwordx4 {vr(d,4)}, v{vPw}, s[{sS}:{sS+3}], s{sSig} offen sc1",
                f"s_add_u32 s{sSig}, s{sSig}, 0x8000", f"s_and_b32 s{sSig}, s{sSig}, 0x3ffff"]
    FSP = OPT["fsplit"]
    for hp in range(17):
        u = hp >> 1
        if hp < 16 and (hp & 1) == 0 and u in [int(c) for c in str(OPT['bset'])[1:]]:
            a("s_barrier")
            if u in (0, 4): st()
        side = breads(hp) if hp < 16 else []
        mf = mf2(hp - 1) if hp >= 1 else []
        extra = pstore(u - 1) if (hp & 1) == 1 and u >= 1 else []
        if FSP and hp == OPT["fblk"]:
            issued = (hp - 1)//2 if hp & 1 else (hp - 2)//2
            extra = extra + [f"s_waitcnt vmcnt({issued - FSP})", f"buffer_store_dword v{vNo}, v{vFa}, s[{sS}:{sS+3}], 0 offen sc1"]
        mix(a, mf[:4], side, per=2)
        mix(a, mf[4:], extra, per=1)
        a("s_waitcnt lgkmcnt(0)")
    st()
    sPend = 41
    HB = 32; SUM = AC[1]
    a(f"""s_waitcnt vmcnt({1 if FSP and OPT['fblk'] >= 15 else 0})
    buffer_store_dword v{vNo}, v{vFb}, s[{sS}:{sS+3}], 0 offen sc1
    s_mov_b32 s{sPend}, 0x7f
    s_mov_b32 s{sCnt}, 0
    s_mov_b32 s42, 0xffff0000""")
    if OPT["psl"]: a(f"s_sleep {OPT['psl']}")
    a(f"""L_poll2:
    buffer_load_dword v{vT}, v{vF2}, s[{sS}:{sS+3}], 0 offen sc1
    s_add_u32 s{sCnt}, s{sCnt}, 1
    s_waitcnt vmcnt(0)
    v_cmp_eq_u32 vcc, s{sN}, v{vT}
    s_nop 1
    s_and_b32 s{sT2}, vcc_lo, s{sPend}
    s_andn2_b32 s{sPend}, s{sPend}, s{sT2}""")
    for u in range(7):
        l = L()
        a(f"""s_bitcmp1_b32 s{sT2}, {u}
        s_cbranch_scc0 {l}
        s_add_u32 s{sT0}, s{sJ}, {7-u}
        s_and_b32 s{sT0}, s{sT0}, 7
        s_lshl_b32 s{sT0}, s{sT0}, 12
        buffer_load_dwordx4 {vr(HB+4*u,4)}, v{vPo}, s[{sS}:{sS+3}], s{sT0} offen sc1""")
        a(f"{l}:")
    a(f"""s_cmp_gt_u32 s{sCnt}, {OPT['spin']}
    s_cbranch_scc1 L_p2go
    s_cmp_lg_u32 s{sPend}, 0
    s_cbranch_scc1 L_poll2
    L_p2go:""")
    st()
    a("s_waitcnt vmcnt(0)")
    for u in range(7):
        for d in range(4):
            x = HB + 4*u + d
            a(f"v_lshlrev_b32 v{vT+2*(d&1)}, 16, v{x}")
            a(f"v_and_b32 v{vT+2*(d&1)+1}, s42, v{x}")
            a(f"v_pk_add_f32 {vr(SUM+2*d,2)}, {vr(SUM+2*d,2)}, {vr(vT+2*(d&1),2)}")
    for d in range(4):
        a(f"v_cvt_pk_bf16_f32 v{HB+d}, v{SUM+2*d}, v{SUM+2*d+1}")
    a(f"buffer_store_dwordx2 {vr(HB,2)}, v{vOut}, s[{sY}:{sY+3}], 0 offen {OPT['outf']}")
    a(f"buffer_store_dwordx2 {vr(HB+2,2)}, v{vOut}, s[{sY}:{sY+3}], 0 offen offset:32 {OPT['outf']}")
    a("L_done:")
    st.dump(0, sWv, 48, vT)
    a("L_end:")
    a("s_endpgm")
    a("L_codeend:")

def main(out):
    a = Asm(); gen(a)
    t = HDR
    t += f"; @launch grid=(256,1,1) block=(448,1,1) lds=163840\n"
    t += '.amdgcn_target "amdgcn-amd-amdhsa--gfx950"\n.text\n'
    t += f".globl {KN}\n.p2align 8\n.type {KN},@function\n{KN}:\n" + a.text()
    t += '.section .rodata,"a"\n.p2align 6\n' + kd(KN, 256, 102 if OPT["stamp"] else 64)
    open(out, "w").write(t)

if __name__ == "__main__":
    for kv in sys.argv[2:]:
        k, v = kv.split("=")
        OPT[k] = int(v) if v.lstrip("-").isdigit() else v.replace("_", " ")
    main(sys.argv[1])
```

```python
import sys, math, struct
from gen2 import Asm, vr, HDR, kd, srd, X_BYTES, KV_BYTES, W_BYTES, O_BYTES
import gen2
OPT = gen2.OPT
OPT.update(dict(stamp=False, ntx="", ntw="", ntkv="", ntwo="", kvc='x24682468', rot=1, xrot=1, la=2,
                spin=400000, cpf=1, woq=4, kvspread=0, kvend=5, pre8=1, sigm=0, bset='x01234567', osched='x345678', fsplit=5, fblk=16, rper=2, imaj=1, prio=3, pw=24, ftouch=3, pvm=1, psum=1, wflag=1, wo9=4, wlate=12, tf='sc1', outf='', psl=0, f1full=1, fast=0, old='sc1', wbl=0))
Stamper = gen2.Stamper
KN = "standalone__mha_block_cached__near_ridge_kernel"

SLOT = 28672; NSLOT = 4
KBASE = SLOT*NSLOT; VBASE = KBASE + 24576
QX = 11*8192
WOBLK = [7,8,9,10, 0,1,2,3,4,5,6,14, 16,17,18,19]
def OREG(u): return u*16384
P_OFF = 0x800000
F1_OFF = 0x1000000; E_OFF = 0x1080000; F2_OFF = 0x1100000; WS_USED = 0x1200000
FS = 7
CNT = 131072

def mix(a, main, side, per=2, lead=True):
    main = list(main); side = list(side)
    while main or side:
        if not lead and main: a(main.pop(0))
        for _ in range(per):
            if side: a(side.pop(0))
        if lead and main: a(main.pop(0))

def gen(a):
    sX, sK, sV, sW, sS, sD, sY = 8, 12, 16, 20, 24, 52, 56
    sH, sP, sWv, sB, sDH = 28, 29, 30, 31, 32
    sT0, sT1, sT2 = 33, 34, 35
    sOW, sOX, sKV, sCls, sC, sJ = 36, 37, 38, 39, 50, 51
    sN, sTA, sTB, sCnt = 3, 6, 7, 37
    vL, vG, vC, vT = 1, 2, 3, 4
    lab = [0]
    def L():
        lab[0] += 1; return f"L{lab[0]}"
    a("s_cmp_ge_u32 s2, 256")
    a("s_cbranch_scc1 L_end")
    st = Stamper(a, 62); st()
    a(f"""s_load_dwordx8 s[40:47], s[0:1], 0
    s_load_dwordx4 s[4:7], s[0:1], 32
    s_load_dwordx2 s[60:61], s[0:1], 48
    s_load_dwordx2 s[48:49], s[0:1], 56
    v_lshrrev_b32 v{vT}, 6, v0
    v_and_b32 v{vL}, 63, v0
    v_readfirstlane_b32 s{sWv}, v{vT}
    v_lshrrev_b32 v{vG}, 4, v{vL}
    v_and_b32 v{vC}, 15, v{vL}
    s_and_b32 s{sT0}, s2, 7
    s_lshl_b32 s{sT0}, s{sT0}, 2
    s_bfe_u32 s{sT1}, s2, 0x20003
    s_add_u32 s{sH}, s{sT0}, s{sT1}
    s_lshr_b32 s{sP}, s2, 5
    s_cmp_lg_u32 s{sWv}, 4
    s_cbranch_scc1 L_notprod""")
    kvs = [int(c) for c in str(OPT["kvc"])[1:]]
    def set_cls():
        a(f"""s_lshl_b32 s{sT0}, s{sP}, 2
        s_lshr_b32 s{sCls}, {sum(k << (4*i) for i, k in enumerate(kvs))}, s{sT0}
        s_and_b32 s{sCls}, s{sCls}, 0xf""")

    def get_nonce(vreg):
        l0, l1 = L(), L()
        a(f"s_waitcnt lgkmcnt(0)")
        a(f"s_mov_b32 s{sCnt}, 0")
        a(f"{l0}:")
        a(f"""s_cmp_lg_u32 s{sN}, 0
        s_cbranch_scc1 {l1}
        s_cmp_gt_u32 s{sCnt}, {OPT['spin']}
        s_cbranch_scc1 {l1}
        buffer_load_dword v{vreg}, off, s[{sD}:{sD+3}], 0 sc1
        s_add_u32 s{sCnt}, s{sCnt}, 1
        s_waitcnt vmcnt(0)
        v_readfirstlane_b32 s{sN}, v{vreg}
        s_nop 0
        s_branch {l0}""")
        a(f"{l1}:")
    def decode_tile():
        a(f"""s_lshr_b32 s{sT0}, s2, 3
        s_mul_i32 s{sTA}, s{sT0}, 52
        s_lshr_b32 s{sTA}, s{sTA}, 8
        s_mul_i32 s{sTB}, s{sTA}, 5
        s_sub_u32 s{sTB}, s{sT0}, s{sTB}
        s_and_b32 s{sJ}, s2, 7""")

    if OPT["prio"]: a(f"s_setprio {OPT['prio']}")
    vW, vX, vK, vV = 12, 16, 20, 24
    if OPT["rot"] == 1:
        a(f"""s_mul_i32 s{sT0}, s{sT1}, 5
        s_add_u32 s{sT0}, s{sT0}, 1
        s_lshr_b32 s{sT0}, s{sT0}, 1
        s_add_u32 s{sT2}, s{sT0}, s{sP}""")
    elif OPT["rot"] >= 2:
        R = OPT["rot"]
        tab = [round(10*i/R) % 10 for i in range(R)]
        lut = sum(tab[(x % R)] << (4*x) for x in range(11))
        a(f"""s_add_u32 s{sT0}, s{sT1}, s{sP}
        s_lshl_b32 s{sT0}, s{sT0}, 2
        s_mov_b32 s36, {lut & 0xffffffff}
        s_mov_b32 s37, {lut >> 32}
        s_lshr_b64 s[36:37], s[36:37], s{sT0}
        s_and_b32 s{sT2}, s36, 15""")
    else:
        a(f"s_mov_b32 s{sT2}, 0")
    if OPT["xrot"]:
        a(f"""s_and_b32 s{sT0}, s2, 7
        s_add_u32 s{sT2}, s{sT2}, s{sT0}
        s_cmp_ge_u32 s{sT2}, 10
        s_cselect_b32 s{sT0}, 10, 0
        s_sub_u32 s{sT2}, s{sT2}, s{sT0}""")
    if OPT["rot"] == 1:
        a(f"""s_cmp_ge_u32 s{sT2}, 10
        s_cselect_b32 s{sT0}, 10, 0
        s_sub_u32 s{sT2}, s{sT2}, s{sT0}""")
    a(f"""s_lshl_b32 s{sOW}, s{sT2}, 19
    s_lshl_b32 s{sOX}, s{sT2}, 7
    s_lshl_b32 s{sT0}, s{sH}, 8
    v_lshlrev_b32 v{vT}, 1, v{vG}
    v_xor_b32 v{vT}, v{vT}, v{vC}
    v_lshlrev_b32 v{vT}, 4, v{vT}
    v_lshl_add_u32 v{vW}, v{vG}, 13, v{vT}
    v_add_u32 v{vW}, s{sT0}, v{vW}
    v_add_u32 v{vW+1}, {4*8192 - 1024}, v{vW}
    v_xor_b32 v{vW+2}, 0x80, v{vW}
    v_add_u32 v{vW+3}, {12*8192 - 3072}, v{vW+2}
    v_add_u32 v{vW+2}, {8*8192 - 2048}, v{vW+2}
    s_mul_i32 s{sT0}, s{sP}, {96*1280}
    v_lshrrev_b32 v{vT+1}, 3, v{vL}
    v_and_b32 v{vT+2}, 7, v{vL}
    v_xor_b32 v{vT+2}, v{vT+2}, v{vT+1}
    v_lshlrev_b32 v{vT+2}, 4, v{vT+2}
    v_mul_u32_u24 v{vX}, 1280, v{vT+1}
    v_add3_u32 v{vX}, v{vX}, v{vT+2}, s{sT0}
    v_add_u32 v{vX+1}, {8*1280 - 1024}, v{vX}
    v_add_u32 v{vX+2}, {16*1280 - 2048}, v{vX}
    v_add_u32 v{vX+3}, {24*1280 - 3072}, v{vX}
    s_waitcnt lgkmcnt(0)""")
    srd(a, sW, 46, W_BYTES); srd(a, sX, 40, X_BYTES)
    sSlot, sI = 31, 32
    def issueG():
        for jj in range(4):
            a(f"s_add_u32 m0, s{sSlot}, {12288 + jj*4096}")
            a(f"s_add_u32 s{sT0}, s{sOW}, {jj*16*8192}")
            for i in range(4):
                a(f"buffer_load_dwordx4 v{vW+i}, s[{sW}:{sW+3}], s{sT0} offen offset:{i*1024} {OPT['ntw']} lds")
        for jj in range(3):
            a(f"s_add_u32 m0, s{sSlot}, {jj*4096}")
            a(f"s_add_u32 s{sT0}, s{sOX}, {jj*32*1280}")
            for i in range(4):
                a(f"buffer_load_dwordx4 v{vX+i}, s[{sX}:{sX+3}], s{sT0} offen offset:{i*1024} {OPT['ntx']} lds")
        a(f"""s_add_u32 s{sOW}, s{sOW}, {64*8192}
        s_add_u32 s{sOX}, s{sOX}, 128
        s_cmp_ge_u32 s{sOX}, 1280
        s_cselect_b32 s{sOW}, 0, s{sOW}
        s_cselect_b32 s{sOX}, 0, s{sOX}
        s_add_u32 s{sSlot}, s{sSlot}, {SLOT}
        s_cmp_ge_u32 s{sSlot}, {NSLOT*SLOT}
        s_cselect_b32 s{sSlot}, 0, s{sSlot}""")
    a(f"""s_mov_b32 s{sSlot}, 0
    s_mov_b32 s{sI}, 1""")
    issueG()
    srd(a, sK, 42, KV_BYTES); srd(a, sV, 44, KV_BYTES)
    a(f"""s_lshl_b32 s{sKV}, s{sP}, 6
    s_add_u32 s{sKV}, s{sKV}, s{sH}
    s_mul_i32 s{sKV}, s{sKV}, 12288
    v_xor_b32 v{vT+1}, v{vC}, v{vG}
    v_lshlrev_b32 v{vT+1}, 4, v{vT+1}
    v_lshl_add_u32 v{vK}, v{vG}, 8, v{vT+1}
    v_xor_b32 v{vK+1}, 64, v{vK}
    v_xor_b32 v{vK+2}, 128, v{vK}
    v_xor_b32 v{vK+3}, 192, v{vK}
    v_lshl_add_u32 v{vV}, v{vG}, 8, v{vT}
    v_xor_b32 v{vV+1}, 128, v{vV}""")
    set_cls()
    sWo = 56
    vW2, vO, vF = 28, 32, 36
    sR2, sRho, sSig, sSplit, sRdy = 50, 40, 41, 42, 44
    srd(a, sWo, 4, W_BYTES); srd(a, sS, 48, WS_USED); srd(a, sD, 60, 256)
    a("s_mov_b64 s[46:47], s[6:7]")
    decode_tile()
    if OPT["wflag"]:
        pollvec = f"""s_lshl_b32 s{sT0}, s{sTA}, 8
        s_lshl_b32 s{sT1}, s{sJ}, 2
        s_add_u32 s{sT0}, s{sT0}, s{sT1}
        v_bfe_u32 v{vF}, v{vL}, 2, 3
        v_and_b32 v{vF+2}, 3, v{vL}
        v_lshl_add_u32 v{vF}, v{vF}, 5, v{vF+2}
        v_add_u32 v{vF}, s{sT0}, v{vF}
        v_lshlrev_b32 v{vF}, {FS}, v{vF}"""
    else:
        pollvec = f"""s_lshl_b32 s{sT0}, s{sT0}, 5
        s_add_u32 s{sT0}, s{sT0}, s{sJ}
        v_and_b32 v{vF}, 7, v{vL}
        v_lshl_add_u32 v{vF}, v{vF}, 3, s{sT0}
        v_lshlrev_b32 v{vF}, {FS}, v{vF}"""
    a(f"""s_mul_i32 s{sT0}, s{sJ}, {512*1280}
    s_lshl_b32 s{sT1}, s{sTB}, 8
    s_add_u32 s{sT0}, s{sT0}, s{sT1}
    v_mul_u32_u24 v{vW2}, 1280, v{vG}
    v_add3_u32 v{vW2}, v{vW2}, v{vT}, s{sT0}
    v_xor_b32 v{vW2+1}, 0x80, v{vW2}
    v_add_u32 v{vW2+2}, {8*1280 - 2048}, v{vW2}
    v_add_u32 v{vW2+3}, {12*1280 - 3072}, v{vW2+1}
    v_add_u32 v{vW2+1}, {4*1280 - 1024}, v{vW2+1}
    s_lshl_b32 s{sT0}, s{sTA}, 10
    s_lshl_b32 s{sT1}, s{sJ}, 4
    s_add_u32 s{sT0}, s{sT0}, s{sT1}
    s_lshl_b32 s{sT0}, s{sT0}, 10
    v_lshlrev_b32 v{vO}, 4, v{vL}
    v_add_u32 v{vO}, s{sT0}, v{vO}
    s_mul_i32 s{sT0}, s{sTA}, 43
    s_lshr_b32 s{sT0}, s{sT0}, 5
    s_mul_i32 s{sSplit}, s{sT0}, 6
    s_add_u32 s{sSplit}, s{sSplit}, 6
    s_lshl_b32 s{sT1}, s{sTA}, 3
    s_sub_u32 s{sSplit}, s{sSplit}, s{sT1}
    {pollvec}
    s_and_b32 s{sRho}, s{sTA}, 3
    s_lshl_b32 s{sR2}, s{sRho}, 2
    s_lshl_b32 s{sRho}, s{sRho}, 12
    s_add_u32 s{sSig}, s{sJ}, 1
    s_and_b32 s{sSig}, s{sSig}, 7
    s_mov_b32 s{sRdy}, 0""")
    def issueWo(t):
        a(f"s_mul_i32 s{sT1}, s{sR2}, {32*1280}")
        for jj in range(2):
            a(f"s_mov_b32 m0, {WOBLK[t]*8192 + jj*4096}")
            a(f"s_add_u32 s{sT0}, s{sT1}, {jj*16*1280}")
            for i in range(4):
                a(f"buffer_load_dwordx4 v{vW2+i}, s[{sWo}:{sWo+3}], s{sT0} offen offset:{i*1024} {OPT['ntwo']} lds")
        a(f"""s_add_u32 s{sR2}, s{sR2}, 1
        s_and_b32 s{sR2}, s{sR2}, 15""")
    def issueO(u):
        l1 = L()
        if OPT["wflag"]:
            a(f"""s_lshl_b32 s{sT1}, s{sSig}, 2
            s_lshl_b32 s{sT2}, 0xf, s{sT1}""")
        else:
            a(f"""s_cmp_lt_u32 s{sSig}, s{sSplit}
            s_cselect_b32 s{sT2}, 0xf, 0xf0""")
        a(f"""s_andn2_b32 s{sT1}, s{sT2}, s{sRdy}
        s_cbranch_scc0 {l1}
        s_call_b64 s[4:5], L_poll1""")
        a(f"{l1}:")
        a(f"s_lshl_b32 s{sT1}, s{sSig}, 17")
        for G in range(4):
            a(f"s_mov_b32 m0, {OREG(u) + G*4096}")
            a(f"s_add_u32 s{sT0}, s{sT1}, s{sRho}")
            for i in range(4):
                a(f"buffer_load_dwordx4 v{vO}, s[{sS}:{sS+3}], s{sT0} offen offset:{i*1024} sc1 lds")
            a(f"""s_add_u32 s{sRho}, s{sRho}, 4096
            s_and_b32 s{sRho}, s{sRho}, 0x3fff""")
        a(f"""s_add_u32 s{sSig}, s{sSig}, 1
        s_and_b32 s{sSig}, s{sSig}, 7""")
    kvgroups = [(base, s_, vreg, nv, b, jj) for (base, s_, vreg, nv) in ((KBASE, sK, vK, 4), (VBASE, sV, vV, 2)) for b in range(2) for jj in range(3)]
    def kvgroup(gi):
        base, s_, vreg, nv, b, jj = kvgroups[gi]
        a(f"s_mov_b32 m0, {base + b*12288 + jj*4096}")
        a(f"s_add_u32 s{sT0}, s{sKV}, {b*32*12288 + jj*4096}")
        for i in range(4):
            a(f"buffer_load_dwordx4 v{vreg + i % nv}, s[{s_}:{s_+3}], s{sT0} offen offset:{i*1024} {OPT['ntkv']} lds")
    st()
    a("L_gissue:")
    issueG()
    a(f"""L_gnext:
    s_add_u32 s{sI}, s{sI}, 1""")
    a(f"""L_ploop:
    s_waitcnt vmcnt({OPT['pw']})
    s_barrier
    s_cmp_eq_u32 s{sI}, 12
    s_cbranch_scc1 L_pdone
    s_sub_u32 s{sT0}, s{sI}, s{sCls}
    s_cmp_gt_u32 s{sT0}, 1
    s_cbranch_scc1 L_gissue
    s_cmp_eq_u32 s{sT0}, 1
    s_cbranch_scc1 L_vissue""")
    if OPT["ftouch"] & 1:
        a(f"""s_mov_b32 s{sT0}, {F1_OFF}
        buffer_load_dword v{vF+3}, v{vF}, s[{sS}:{sS+3}], s{sT0} offen {OPT['tf']}""")
    if OPT["ftouch"] & 2:
        a(f"""s_lshl_b32 s{sT0}, s2, {5+FS}
        s_add_u32 s{sT0}, s{sT0}, {F2_OFF}
        v_and_b32 v40, 31, v{vL}
        v_lshlrev_b32 v40, {FS}, v40
        buffer_load_dword v41, v40, s[{sS}:{sS+3}], s{sT0} offen {OPT['tf']}""")
    if OPT["ftouch"] & 4:
        a(f"""s_mul_i32 s{sT0}, s{sP}, 6
        s_lshl_b32 s{sT0}, s{sT0}, 7
        s_lshl_b32 s{sT1}, s{sH}, 2
        s_add_u32 s{sT0}, s{sT0}, s{sT1}
        s_lshl_b32 s{sT0}, s{sT0}, 10
        v_min_u32 v40, 5, v{vL}
        v_lshlrev_b32 v40, 17, v40
        buffer_load_dword v41, v40, s[{sS}:{sS+3}], s{sT0} offen {OPT['tf']}
        v_and_b32 v40, 7, v{vL}
        v_lshlrev_b32 v42, 17, v40
        s_lshl_b32 s{sT0}, s{sTA}, 20
        s_lshl_b32 s{sT1}, s{sJ}, 14
        s_add_u32 s{sT0}, s{sT0}, s{sT1}
        buffer_load_dword v41, v42, s[{sS}:{sS+3}], s{sT0} offen {OPT['tf']}
        v_lshlrev_b32 v42, 15, v40
        s_andn2_b32 s{sT0}, s2, 7
        s_lshl_b32 s{sT0}, s{sT0}, 3
        s_add_u32 s{sT0}, s{sT0}, s{sJ}
        s_lshl_b32 s{sT0}, s{sT0}, 12
        s_add_u32 s{sT0}, s{sT0}, {P_OFF}
        buffer_load_dword v41, v42, s[{sS}:{sS+3}], s{sT0} offen {OPT['tf']}""")
    if OPT["ftouch"] & 8:
        a(f"""v_and_b32 v40, 7, v{vL}
        v_mul_u32_u24 v42, {64*1280}, v40
        s_mul_i32 s{sT0}, s{sJ}, {512*1280}
        buffer_load_dword v41, v42, s[{sWo}:{sWo+3}], s{sT0} offen
        s_mul_i32 s{sT0}, s{sP}, {96*1280}
        v_mov_b32 v42, s{sT0}
        global_load_dword v41, v42, s[46:47]""")
    for gi in range(6): kvgroup(gi)
    a("s_branch L_gnext")
    a("L_vissue:")
    for gi in range(6, 12): kvgroup(gi)
    a("s_branch L_gnext")
    a("L_pdone:")
    st.n = 5
    a(f"s_load_dword s{sN}, s[60:61], 0")
    a("s_cmp_ge_u32 s2, 240")
    a("s_cbranch_scc1 L_prod_notile")
    for t in range(0, 4): issueWo(t)
    a(f"s_waitcnt vmcnt(32)")
    a("s_barrier")
    st()
    for t in range(4, OPT["wo9"]): issueWo(t)
    get_nonce(vF+1)
    a("s_barrier")
    st()
    for t in range(OPT["wo9"], OPT["woq"]): issueWo(t)
    st()
    a("s_barrier")
    st()
    for t in range(OPT["woq"], OPT["wlate"]): issueWo(t)
    a("s_waitcnt vmcnt(0)")
    a("s_barrier")
    st()
    a(f"""s_mov_b32 s{sT0}, {F1_OFF}
    buffer_load_dword v{vF+3}, v{vF}, s[{sS}:{sS+3}], s{sT0} offen sc1""")
    for t in range(OPT["wlate"], 16): issueWo(t)
    a("s_barrier")
    a(f"""s_waitcnt vmcnt({8*(16 - OPT["wlate"])})
    v_cmp_eq_u32 s[{sRdy}:{sRdy+1}], s{sN}, v{vF+3}
    s_nop 1""")
    issueO(0)
    n0 = st.n; st.n = 12; st(); st.n = n0
    bset = [int(c) for c in str(OPT["bset"])[1:]]
    sched = [int(c) for c in str(OPT["osched"])[1:]]
    nxo = 1
    for bi, u in enumerate(bset):
        tgt = sched[bi] if bi < len(sched) else 8
        while nxo < tgt: issueO(nxo); nxo += 1
        lastneeded = (bset[bi+1] - 1) if bi + 1 < len(bset) else 7
        assert lastneeded < nxo
        a(f"s_waitcnt vmcnt({min(63, 16*(nxo - 1 - lastneeded))})")
        a("s_barrier")
        if u in (0, 4): st()
    a("s_branch L_done")
    a("L_prod_notile:")
    a(f"""s_waitcnt vmcnt(0)
    s_barrier
    s_branch L_done""")
    a("L_poll1:")
    a(f"""s_mov_b32 s{sCnt}, 0
    s_mov_b32 s{sT0}, {F1_OFF}
    L_poll1_loop:
    buffer_load_dword v{vF+3}, v{vF}, s[{sS}:{sS+3}], s{sT0} offen sc1
    s_add_u32 s{sCnt}, s{sCnt}, 1
    s_waitcnt vmcnt(0)
    v_cmp_eq_u32 s[{sRdy}:{sRdy+1}], s{sN}, v{vF+3}
    s_cmp_gt_u32 s{sCnt}, {OPT['spin']}
    s_cbranch_scc1 L_poll1_end
    s_andn2_b32 s{sT1}, s{sT2}, s{sRdy}
    s_cbranch_scc1 L_poll1_loop
    L_poll1_end:
    s_setpc_b64 s[4:5]""")

    a("L_notprod:")
    vRB = 12; vRA = 16
    vQW, vQR, vKR, vVR, vOo, vNo, vTR = 24, 25, 26, 27, 28, 29, 30
    ACC = 32; FA = [80, 108]
    def acc(tt, i): return ACC + (tt*3 + i)*4
    if OPT["cpf"]:
        a(f"""s_cmp_lg_u32 s{sWv}, 6
        s_cbranch_scc1 L_nocpf
        s_getpc_b64 s[{sY}:{sY+1}]
        L_pcref:
        s_sub_u32 s{sY}, s{sY}, L_pcref-{KN}
        s_subb_u32 s{sY+1}, s{sY+1}, 0
        s_bfe_u32 s{sT0}, s2, 0x30003
        s_mul_i32 s{sT0}, s{sT0}, 24
        v_min_u32 v{vT}, 23, v{vL}
        v_add_u32 v{vT}, s{sT0}, v{vT}
        v_lshlrev_b32 v{vT}, 7, v{vT}
        v_min_u32 v{vT}, L_codeend-{KN}-4, v{vT}
        global_load_dword v250, v{vT}, s[{sY}:{sY+1}]
        L_nocpf:""")
    a("s_waitcnt lgkmcnt(0)")
    srd(a, sS, 48, WS_USED); srd(a, sD, 60, 256); srd(a, sY, 6, X_BYTES)
    a(f"""s_lshl_b32 s{sT0}, s2, 3
    s_add_u32 s{sT0}, s{sT0}, s{sWv}
    s_cmp_lg_u32 s{sT0}, 5
    s_cbranch_scc1 L_nononce
    s_mov_b32 s{sT0}, {E_OFF}
    buffer_load_dword v{vT}, off, s[{sS}:{sS+3}], s{sT0} sc1
    s_mov_b32 s{sT1}, 0x9e3779b1
    s_waitcnt vmcnt(0)
    v_mul_lo_u32 v{vT}, v{vT}, s{sT1}
    v_add_u32 v{vT}, 0x7f4a7c15, v{vT}
    v_max_u32 v{vT}, 1, v{vT}
    s_mov_b64 exec, 1
    buffer_store_dword v{vT}, off, s[{sD}:{sD+3}], 0 sc1
    buffer_store_dword v{vT}, off, s[{sS}:{sS+3}], s{sT0} sc1
    s_mov_b64 exec, -1
    L_nononce:""")
    a(f"""s_cmp_gt_u32 s{sWv}, 4
    s_cselect_b32 s{sT0}, 1, 0
    s_sub_u32 s{sJ}, s{sWv}, s{sT0}
    s_lshl_b32 s{sT0}, s{sJ}, 12
    s_add_u32 s{sT0}, s{sT0}, {QX}
    v_lshlrev_b32 v{vOo}, 4, v{vL}
    v_add_u32 v{vQR}, s{sT0}, v{vOo}
    s_cmp_ge_u32 s{sJ}, 3
    s_cselect_b32 s{sT2}, 12288, 0
    v_lshrrev_b32 v{vT}, 1, v{vG}
    v_xor_b32 v{vT}, v{vT}, v{vC}
    v_lshlrev_b32 v{vT}, 4, v{vT}
    v_lshl_add_u32 v{vT}, v{vC}, 8, v{vT}
    v_and_b32 v{vT+1}, 1, v{vG}
    v_lshl_add_u32 v{vT}, v{vT+1}, 3, v{vT}
    s_add_u32 s{sT0}, s{sT2}, {KBASE}
    v_add_u32 v{vKR}, s{sT0}, v{vT}
    v_lshrrev_b32 v{vT}, 2, v{vC}
    v_lshl_add_u32 v{vT}, v{vG}, 2, v{vT}
    v_and_b32 v{vT+1}, 7, v{vT}
    v_lshlrev_b32 v{vT+1}, 5, v{vT+1}
    v_lshl_add_u32 v{vT}, v{vT}, 8, v{vT+1}
    v_and_b32 v{vT+1}, 3, v{vC}
    v_lshl_add_u32 v{vTR}, v{vT+1}, 3, v{vT}
    s_add_u32 s{sT0}, s{sT2}, {VBASE}
    v_add_u32 v{vVR}, s{sT0}, v{vTR}
    s_lshr_b32 s{sB}, s{sWv}, 1
    s_and_b32 s{sDH}, s{sWv}, 1
    s_mul_i32 s{sT0}, s{sB}, 12288
    s_lshl_b32 s{sT1}, s{sDH}, 11
    s_add_u32 s{sT0}, s{sT0}, s{sT1}
    s_add_u32 s{sT0}, s{sT0}, {QX}
    v_add_u32 v{vQW}, s{sT0}, v{vOo}
    s_mul_i32 s{sT0}, s{sP}, 6
    s_add_u32 s{sT0}, s{sT0}, s{sJ}
    s_lshl_b32 s{sT0}, s{sT0}, 7
    s_lshl_b32 s{sT1}, s{sH}, 2
    s_add_u32 s{sT0}, s{sT0}, s{sT1}
    s_lshl_b32 s{sKV}, s{sT0}, {FS-2}
    s_add_u32 s{sKV}, s{sKV}, {F1_OFF}
    s_lshl_b32 s{sT0}, s{sT0}, 10
    v_add_u32 v{vOo}, s{sT0}, v{vOo}""")
    c = (128 ** -0.5) * math.log2(math.e)
    cb = struct.unpack('<I', struct.pack('<f', c))[0]
    a(f"s_mov_b32 s{sC}, {cb:#x}")
    a(f"s_mov_b32 s{sC+1}, {cb:#x}")
    set_cls()
    a(f"s_cmp_lt_u32 s{sWv}, 4")
    a("s_cbranch_scc1 L_cons")
    KF, VF = 136, 184
    def k_reads():
        r = []
        for T in range(4):
            for hf in range(2):
                tmp = vT + ((2*T+hf) & 3)
                r.append(f"v_xor_b32 v{tmp}, {64*T + 32*hf}, v{vKR}")
                for kt in range(3):
                    r.append(f"ds_read_b64 {vr(KF+(kt*4+T)*4+2*hf,2)}, v{tmp} offset:{kt*4096}")
        return r
    def v_reads():
        r = []
        for t in range(8):
            tmp = vT + 4 + (t & 3)
            r.append(f"v_xor_b32 v{tmp}, {32*t}, v{vVR}")
            for q in range(3):
                r.append(f"ds_read_b64_tr_b16 {vr(VF+t*6+2*q,2)}, v{tmp} offset:{q*4096}")
        return r
    def kvcall(kk):
        if kk in kvs:
            l = L()
            a(f"s_cmp_lg_u32 s{sCls}, {kk}")
            a(f"s_cbranch_scc1 {l}")
            a(f"s_call_b64 s[4:5], L_kvread")
            a(f"{l}:")
    for kk in range(10):
        kvcall(kk)
        if kk == 9: a("s_waitcnt lgkmcnt(0)")
        a("s_barrier")
        if kk == 6: a(f"s_load_dword s{sN}, s[60:61], 0")
    a("s_branch L_qx")
    a("L_kvread:")
    a("s_barrier")
    for x in k_reads(): a(x)
    a("s_barrier")
    for x in v_reads(): a(x)
    a("s_setpc_b64 s[4:5]")
    a("L_cons:")
    a(f"""s_mul_i32 s{sT0}, s{sB}, {48*128}
    v_and_b32 v{vT}, 7, v{vC}
    v_xor_b32 v{vT}, v{vT}, v{vG}
    v_lshlrev_b32 v{vT}, 4, v{vT}
    v_lshl_add_u32 v{vT}, v{vC}, 7, v{vT}
    v_add_u32 v{vRB}, s{sT0}, v{vT}
    v_xor_b32 v{vRB+2}, 64, v{vRB}
    v_add_u32 v{vRB+1}, {2*SLOT}, v{vRB}
    v_add_u32 v{vRB+3}, {2*SLOT}, v{vRB+2}
    v_lshrrev_b32 v{vT}, 2, v{vC}
    v_lshl_add_u32 v{vT+1}, v{vG}, 3, v{vT}
    v_lshlrev_b32 v{vT+1}, 8, v{vT+1}
    v_and_b32 v{vT+2}, 1, v{vG}
    v_lshlrev_b32 v{vT+2}, 3, v{vT+2}
    v_lshl_add_u32 v{vT+2}, v{vT}, 1, v{vT+2}
    v_and_b32 v{vT+3}, 3, v{vC}
    v_lshlrev_b32 v{vT+3}, 3, v{vT+3}
    v_add_u32 v{vT+1}, v{vT+1}, v{vT+3}
    v_add_u32 v{vT+1}, 12288, v{vT+1}
    s_lshl_b32 s{sT0}, s{sDH}, 3
    v_xor_b32 v{vT+2}, s{sT0}, v{vT+2}
    v_lshl_add_u32 v{vRA}, v{vT+2}, 4, v{vT+1}""")
    for tt in range(1, 4):
        a(f"v_xor_b32 v{vRA+2*tt}, {32*tt}, v{vRA}")
    for tt in range(4):
        a(f"v_add_u32 v{vRA+2*tt+1}, {2*SLOT}, v{vRA+2*tt}")
    def reads(kk, sub, fs):
        slot = kk % NSLOT; hi = slot >> 1; so = (slot & 1)*SLOT; F = FA[fs]
        r = [f"ds_read_b128 {vr(F+16,4)}, v{vRB+2*sub+hi} offset:{so}"]
        for tt in range(4):
            for q in range(2):
                r.append(f"ds_read_b64_tr_b16 {vr(F+4*tt+2*q,2)}, v{vRA+2*tt+hi} offset:{so + (32*sub + 4*q)*256}")
        for i in range(1, 3):
            r.append(f"ds_read_b128 {vr(F+16+4*i,4)}, v{vRB+2*sub+hi} offset:{so + i*2048}")
        return r
    def mfmas(fs, first):
        F = FA[fs]; r = []
        for i in range(3):
            for tt in range(4):
                cc = "0" if first else vr(acc(tt,i),4)
                r.append(f"v_mfma_f32_16x16x32_bf16 {vr(acc(tt,i),4)}, {vr(F+4*tt,4)}, {vr(F+16+4*i,4)}, {cc}")
        return r
    st.n = 1; st()
    for kk in range(9):
        kvcall(kk)
        a("s_barrier")
        if kk in (0, 3, 7): st()
        if kk == 6: a(f"s_load_dword s{sN}, s[60:61], 0")
        mix(a, mfmas(1, False) if kk else [], reads(kk, 0, 0), per=OPT['rper'])
        a("s_waitcnt lgkmcnt(0)")
        mix(a, mfmas(0, kk == 0), reads(kk, 1, 1), per=OPT['rper'])
        a("s_waitcnt lgkmcnt(0)")
    QW = 232
    def qcvt(i):
        r = []
        for T in range(2):
            d = QW + (i*2+T)*4
            for u in range(2):
                s_ = acc(2*T+u, i)
                r.append(f"v_cvt_pk_bf16_f32 v{d+2*u}, v{s_}, v{s_+1}")
                r.append(f"v_cvt_pk_bf16_f32 v{d+2*u+1}, v{s_+2}, v{s_+3}")
            r.append(f"ds_write_b128 v{vQW}, {vr(d,4)} offset:{i*4096 + T*1024}")
        return r
    m0_, m1_ = mfmas(0, False), mfmas(1, False)
    for m in m1_: a(m)
    a("s_barrier")
    st()
    r0, r1 = reads(9, 0, 0), reads(9, 1, 1)
    for x in r0[:9] + r1[:6]: a(x)
    a("s_waitcnt lgkmcnt(6)")
    mix(a, m0_[:4], r1[6:9] + [r0[9], r1[9], r0[10], r1[10]], per=2, lead=False)
    a("s_waitcnt lgkmcnt(4)")
    for m in m1_[:4]: a(m)
    a("s_waitcnt lgkmcnt(2)")
    for m in m0_[4:8] + m1_[4:7]: a(m)
    a("s_waitcnt lgkmcnt(0)")
    mix(a, m1_[7:8] + m0_[8:], qcvt(0), per=2, lead=False)
    mix(a, m1_[8:], qcvt(1)[:6], per=2, lead=True)
    for x in qcvt(1)[6:]: a(x)
    a("s_nop 3")
    for x in qcvt(2): a(x)
    a("L_qx:")
    a("s_waitcnt lgkmcnt(0)")
    a("s_barrier")
    st()
    QF = 56; SA = 32; PF = 44; OA = 80
    for T in range(4):
        a(f"ds_read_b128 {vr(QF+4*T,4)}, v{vQR} offset:{T*1024}")
    for T in range(4):
        a(f"s_waitcnt lgkmcnt({3-T})")
        for kt in range(3):
            cc = "0" if T == 0 else vr(SA+4*kt,4)
            a(f"v_mfma_f32_16x16x32_bf16 {vr(SA+4*kt,4)}, {vr(KF+(kt*4+T)*4,4)}, {vr(QF+4*T,4)}, {cc}")
    if OPT["wflag"]:
        a("s_nop 2")
    else:
        a(f"""v_mov_b32 v{vNo}, 0
        v_mov_b32 v{vQW}, {CNT}
        ds_write_b32 v{vQW}, v{vNo}""")
    M, M2, Ls, L2 = 4, 5, 6, 7
    v = [SA+j for j in range(12)]
    a(f"""s_nop 2
    v_max3_f32 v{M}, v{v[0]}, v{v[1]}, v{v[2]}
    v_max3_f32 v{M2}, v{v[3]}, v{v[4]}, v{v[5]}
    v_max3_f32 v{Ls}, v{v[6]}, v{v[7]}, v{v[8]}
    v_max3_f32 v{L2}, v{v[9]}, v{v[10]}, v{v[11]}
    v_max3_f32 v{M}, v{M}, v{M2}, v{Ls}
    v_max_f32 v{M}, v{M}, v{L2}""")
    for sw in ("v_permlane32_swap_b32", "v_permlane16_swap_b32"):
        a(f"""v_mov_b32 v{M2}, v{M}
        s_nop 1
        {sw} v{M}, v{M2}
        v_max_f32 v{M}, v{M}, v{M2}""")
    a(f"v_mul_f32 v{M}, s{sC}, v{M}")
    for j in range(6):
        a(f"v_pk_fma_f32 {vr(SA+2*j,2)}, {vr(SA+2*j,2)}, s[{sC}:{sC+1}], {vr(M,2)} op_sel_hi:[1,1,0] neg_lo:[0,0,1] neg_hi:[0,0,1]")
    for x in v: a(f"v_exp_f32 v{x}, v{x}")
    a("s_waitcnt lgkmcnt(0)")
    for j in range(6):
        a(f"v_cvt_pk_bf16_f32 v{PF+j}, v{SA+2*j}, v{SA+2*j+1}")
    a(f"v_pk_add_f32 {vr(Ls,2)}, {vr(SA,2)}, {vr(SA+2,2)}")
    pv = [f"v_mfma_f32_16x16x32_bf16 {vr(OA+4*t,4)}, {vr(VF+t*6,4)}, {vr(PF,4)}, 0" for t in range(8)]
    pv += [f"v_mfma_f32_16x16x16_bf16 {vr(OA+4*t,4)}, {vr(VF+t*6+4,2)}, {vr(PF+4,2)}, {vr(OA+4*t,4)}" for t in range(8)]
    sm = [f"v_pk_add_f32 {vr(M,2)}, {vr(SA+4,2)}, {vr(SA+6,2)}",
          f"v_pk_add_f32 {vr(Ls,2)}, {vr(Ls,2)}, {vr(SA+8,2)}",
          f"v_pk_add_f32 {vr(M,2)}, {vr(M,2)}, {vr(SA+10,2)}",
          f"v_pk_add_f32 {vr(Ls,2)}, {vr(Ls,2)}, {vr(M,2)}",
          f"v_add_f32 v{Ls}, v{Ls}, v{L2}",
          f"v_mov_b32 v{L2}, v{Ls}", "s_nop 1",
          f"v_permlane32_swap_b32 v{Ls}, v{L2}",
          f"v_add_f32 v{Ls}, v{Ls}, v{L2}",
          f"v_mov_b32 v{L2}, v{Ls}", "s_nop 1",
          f"v_permlane16_swap_b32 v{Ls}, v{L2}",
          f"v_add_f32 v{Ls}, v{Ls}, v{L2}",
          f"v_rcp_f32 v{Ls}, v{Ls}"]
    def epi(T):
        d = QF + 4*T; r = []
        for u in range(2):
            s_ = OA + 4*(2*T+u)
            r.append(f"v_pk_mul_f32 {vr(s_,2)}, {vr(s_,2)}, {vr(Ls,2)} op_sel_hi:[1,0]")
            r.append(f"v_pk_mul_f32 {vr(s_+2,2)}, {vr(s_+2,2)}, {vr(Ls,2)} op_sel_hi:[1,0]")
        for u in range(2):
            s_ = OA + 4*(2*T+u)
            r.append(f"v_cvt_pk_bf16_f32 v{d+2*u}, v{s_}, v{s_+1}")
            r.append(f"v_cvt_pk_bf16_f32 v{d+2*u+1}, v{s_+2}, v{s_+3}")
        r.append(f"buffer_store_dwordx4 {vr(d,4)}, v{vOo}, s[{sS}:{sS+3}], 0 offen offset:{T*1024} sc1")
        return r
    if OPT["pvm"]:
        pa = pv[0:4] + pv[8:12]; pb = pv[4:8] + pv[12:16]
        mix(a, pa, sm, per=2)
        for m in pb[:4]: a(m)
        a("s_nop 1")
        mix(a, pb[4:], epi(0), per=2)
        for x in epi(1): a(x)
        for x in epi(2): a(x)
        for x in epi(3): a(x)
    else:
        mix(a, pv, sm, per=1)
        a("s_nop 0")
        for T in range(4):
            for x in epi(T): a(x)
    st()
    a("s_barrier")
    get_nonce(vNo)
    if OPT["wflag"]:
        a(f"""v_mov_b32 v{vNo}, s{sN}
        s_mov_b64 exec, 1
        s_waitcnt vmcnt(0)
        buffer_store_dword v{vNo}, off, s[{sS}:{sS+3}], s{sKV} sc1
        s_mov_b64 exec, -1""")
    else:
        a(f"""v_mov_b32 v{vT}, 1
        v_mov_b32 v{vNo}, s{sN}
        v_lshlrev_b32 v31, 2, v{vL}
        s_lshl_b32 s{sT0}, s2, {FS}
        s_add_u32 s{sT0}, s{sT0}, {F1_OFF}
        s_mov_b64 exec, 1
        s_waitcnt vmcnt(0)
        ds_add_rtn_u32 v{vT+1}, v{vQW}, v{vT}
        s_waitcnt lgkmcnt(0)
        v_readfirstlane_b32 s{sT1}, v{vT+1}
        s_mov_b32 exec_lo, {-1 if OPT['f1full'] else 1}
        s_cmp_lg_u32 s{sT1}, 5
        s_cbranch_scc1 L_noflag
        buffer_store_dword v{vNo}, v31, s[{sS}:{sS+3}], s{sT0} offen sc1
        L_noflag:
        s_mov_b64 exec, -1""")
    a(f"""
    s_cmp_ge_u32 s2, 240
    s_cbranch_scc1 L_done
    s_cmp_lt_u32 s{sWv}, 4
    s_cbranch_scc1 L_ph2
    s_barrier
    s_barrier
    s_endpgm
    L_ph2:""")
    st()
    vRA2, vB0, vB1, vB2, vPo, vF2, vPw, vOut, vFa, vFb = 12, 16, 17, 18, 25, 26, 27, 28, 19, 20
    sSig = 40
    AR = 32; BS = [160, 192]; AC = [224, 232]; ST = [240, 244]
    decode_tile()
    a(f"""s_lshl_b32 s{sT0}, s{sWv}, 6
    v_xor_b32 v{vRA2}, s{sT0}, v{vTR}
    v_xor_b32 v{vRA2+2}, 32, v{vRA2}
    v_add_u32 v{vRA2+1}, 0x10000, v{vRA2}
    v_add_u32 v{vRA2+3}, 0x10000, v{vRA2+2}
    v_add_u32 v22, 0x20000, v{vRA2}
    v_add_u32 v23, 0x20000, v{vRA2+2}
    v_lshlrev_b32 v{vB0}, 4, v{vL}
    v_add_u32 v{vB1}, 0x10000, v{vB0}
    v_add_u32 v{vB2}, 0x20000, v{vB0}
    s_add_u32 s{sSig}, s{sJ}, 1
    s_and_b32 s{sSig}, s{sSig}, 7
    s_lshl_b32 s{sSig}, s{sSig}, 15
    s_andn2_b32 s{sT0}, s2, 7
    s_lshl_b32 s{sT0}, s{sT0}, 3
    s_add_u32 s{sT0}, s{sT0}, s{sJ}
    s_lshl_b32 s{sT0}, s{sT0}, 12
    s_lshl_b32 s{sT1}, s{sWv}, 10
    s_add_u32 s{sT0}, s{sT0}, s{sT1}
    s_add_u32 s{sT0}, s{sT0}, {P_OFF}
    v_add_u32 v{vPw}, s{sT0}, v{vB0}
    s_lshl_b32 s{sT0}, s2, 15
    s_add_u32 s{sT0}, s{sT0}, s{sT1}
    s_add_u32 s{sT0}, s{sT0}, {P_OFF}
    v_add_u32 v{vPo}, s{sT0}, v{vB0}
    s_lshl_b32 s{sT0}, s2, 2
    s_add_u32 s{sT0}, s{sT0}, s{sWv}
    s_lshl_b32 s{sT0}, s{sT0}, {3+FS}
    s_add_u32 s{sT0}, s{sT0}, {F2_OFF}
    v_min_u32 v{vF2}, 6, v{vL}
    v_lshlrev_b32 v{vF2}, {FS}, v{vF2}
    v_add_u32 v{vF2}, s{sT0}, v{vF2}
    s_andn2_b32 s{sT0}, s2, 7
    s_lshl_b32 s{sT0}, s{sT0}, 2
    s_add_u32 s{sT0}, s{sT0}, s{sWv}
    s_lshl_b32 s{sT0}, s{sT0}, {3+FS}
    s_add_u32 s{sT0}, s{sT0}, {F2_OFF}
    s_add_u32 s{sT1}, s{sJ}, 1
    v_add_u32 v{vT}, s{sT1}, v{vL}
    v_and_b32 v{vT}, 7, v{vT}
    v_lshlrev_b32 v{vT}, 5, v{vT}
    v_add_u32 v{vT}, v{vT}, v{vL}
    v_lshlrev_b32 v{vT}, {FS}, v{vT}
    v_add_u32 v{vT}, s{sT0}, v{vT}
    v_mov_b32 v{vT+1}, 0x7ffffff0
    v_cmp_gt_u32 vcc, {OPT['fsplit']}, v{vL}
    s_nop 1
    v_cndmask_b32 v{vFa}, v{vT+1}, v{vT}, vcc
    v_cndmask_b32 v{vFb}, v{vT}, v{vT+1}, vcc
    v_cmp_gt_u32 vcc, 7, v{vL}
    s_nop 1
    v_cndmask_b32 v{vFb}, v{vT+1}, v{vFb}, vcc
    s_lshl_b32 s{sT0}, s{sTA}, 3
    s_add_u32 s{sT0}, s{sT0}, s{sJ}
    s_mul_i32 s{sT0}, s{sT0}, {16*1280}
    s_lshl_b32 s{sT1}, s{sTB}, 8
    s_add_u32 s{sT0}, s{sT0}, s{sT1}
    s_lshl_b32 s{sT1}, s{sWv}, 6
    s_add_u32 s{sT0}, s{sT0}, s{sT1}
    v_mul_u32_u24 v{vOut}, 1280, v{vC}
    v_lshl_add_u32 v{vOut}, v{vG}, 3, v{vOut}
    v_add_u32 v{vOut}, s{sT0}, v{vOut}
    s_barrier""")
    st()
    def areads(ts):
        r = []
        for t in ts:
            ad = WOBLK[t]*8192; hi = ad >> 16; lo = ad & 0xffff
            for tt in range(2):
                for q in range(2):
                    r.append(f"ds_read_b64_tr_b16 {vr(AR+(t*2+tt)*4+2*q,2)}, v{vRA2+2*tt+hi if hi < 2 else 22+tt} offset:{lo + q*4096}")
        return r
    for x in areads(range(OPT["wlate"])): a(x)
    a("s_waitcnt lgkmcnt(0)")
    a("s_barrier")
    def breads(hp):
        u, hf = hp >> 1, hp & 1
        ad = OREG(u) + hf*8192
        base = [vB0, vB1, vB2][ad >> 16]
        return [f"ds_read_b128 {vr(BS[hf]+4*k,4)}, v{base} offset:{(ad & 0xffff) + k*1024}" for k in range(8)]
    def mf2(hp):
        u, hf = hp >> 1, hp & 1
        r = []
        for k in range(8):
            for tt in range(2):
                d = AC[u & 1] + 4*tt
                cc = "0" if (hf == 0 and k == 0) else vr(d,4)
                r.append(f"v_mfma_f32_16x16x32_bf16 {vr(d,4)}, {vr(AR+((hf*8+k)*2+tt)*4,4)}, {vr(BS[hf]+4*k,4)}, {cc}")
        return r
    def pstore(u):
        s_ = AC[u & 1]; d = ST[u & 1]
        return [f"v_cvt_pk_bf16_f32 v{d+j}, v{s_+2*j}, v{s_+2*j+1}" for j in range(4)] + \
               [f"buffer_store_dwordx4 {vr(d,4)}, v{vPw}, s[{sS}:{sS+3}], s{sSig} offen sc1",
                f"s_add_u32 s{sSig}, s{sSig}, 0x8000", f"s_and_b32 s{sSig}, s{sSig}, 0x3ffff"]
    FSP = OPT["fsplit"]
    for hp in range(17):
        u = hp >> 1
        if hp < 16 and (hp & 1) == 0 and u in [int(c) for c in str(OPT['bset'])[1:]]:
            a("s_barrier")
            if u in (0, 4): st()
        side = breads(hp) if hp < 16 else []
        mf = mf2(hp - 1) if hp >= 1 else []
        extra = pstore(u - 1) if (hp & 1) == 1 and u >= 1 else []
        if FSP and hp == OPT["fblk"]:
            issued = (hp - 1)//2 if hp & 1 else (hp - 2)//2
            extra = extra + [f"s_waitcnt vmcnt({issued - FSP})", f"buffer_store_dword v{vNo}, v{vFa}, s[{sS}:{sS+3}], 0 offen sc1"]
        if hp == 1: extra = areads(range(OPT["wlate"], 16))
        mix(a, mf[:4], side, per=2)
        mix(a, mf[4:], extra, per=2 if hp == 1 else 1)
        a("s_waitcnt lgkmcnt(0)")
    st()
    sPend = 41
    HB = 32; SUM = AC[1]
    a(f"""s_waitcnt vmcnt({1 if FSP and OPT['fblk'] >= 15 else 0})
    buffer_store_dword v{vNo}, v{vFb}, s[{sS}:{sS+3}], 0 offen sc1
    s_mov_b32 s{sPend}, 0x7f
    s_mov_b32 s{sCnt}, 0
    s_mov_b32 s42, 0xffff0000""")
    if OPT["psl"]: a(f"s_sleep {OPT['psl']}")
    a(f"""L_poll2:
    buffer_load_dword v{vT}, v{vF2}, s[{sS}:{sS+3}], 0 offen sc1
    s_add_u32 s{sCnt}, s{sCnt}, 1
    s_waitcnt vmcnt(0)
    v_cmp_eq_u32 vcc, s{sN}, v{vT}
    s_nop 1
    s_and_b32 s{sT2}, vcc_lo, s{sPend}
    s_andn2_b32 s{sPend}, s{sPend}, s{sT2}""")
    for u in range(7):
        l = L()
        a(f"""s_bitcmp1_b32 s{sT2}, {u}
        s_cbranch_scc0 {l}
        s_add_u32 s{sT0}, s{sJ}, {7-u}
        s_and_b32 s{sT0}, s{sT0}, 7
        s_lshl_b32 s{sT0}, s{sT0}, 12
        buffer_load_dwordx4 {vr(HB+4*u,4)}, v{vPo}, s[{sS}:{sS+3}], s{sT0} offen sc1""")
        a(f"{l}:")
    a(f"""s_cmp_gt_u32 s{sCnt}, {OPT['spin']}
    s_cbranch_scc1 L_p2go
    s_cmp_lg_u32 s{sPend}, 0
    s_cbranch_scc1 L_poll2
    L_p2go:""")
    st()
    a("s_waitcnt vmcnt(0)")
    for u in range(7):
        for d in range(4):
            x = HB + 4*u + d
            a(f"v_lshlrev_b32 v{vT+2*(d&1)}, 16, v{x}")
            a(f"v_and_b32 v{vT+2*(d&1)+1}, s42, v{x}")
            a(f"v_pk_add_f32 {vr(SUM+2*d,2)}, {vr(SUM+2*d,2)}, {vr(vT+2*(d&1),2)}")
    for d in range(4):
        a(f"v_cvt_pk_bf16_f32 v{HB+d}, v{SUM+2*d}, v{SUM+2*d+1}")
    a(f"buffer_store_dwordx2 {vr(HB,2)}, v{vOut}, s[{sY}:{sY+3}], 0 offen {OPT['outf']}")
    a(f"buffer_store_dwordx2 {vr(HB+2,2)}, v{vOut}, s[{sY}:{sY+3}], 0 offen offset:32 {OPT['outf']}")
    a("L_done:")
    st.dump(0, sWv, 48, vT)
    a("L_end:")
    a("s_endpgm")
    a("L_codeend:")

def main(out):
    a = Asm(); gen(a)
    t = HDR
    t += f"; @launch grid=(256,1,1) block=(448,1,1) lds=163840\n"
    t += '.amdgcn_target "amdgcn-amd-amdhsa--gfx950"\n.text\n'
    t += f".globl {KN}\n.p2align 8\n.type {KN},@function\n{KN}:\n" + a.text()
    t += '.section .rodata,"a"\n.p2align 6\n' + kd(KN, 256, 102 if OPT["stamp"] else 64)
    open(out, "w").write(t)

if __name__ == "__main__":
    for kv in sys.argv[2:]:
        k, v = kv.split("=")
        OPT[k] = int(v) if v.lstrip("-").isdigit() else v.replace("_", " ")
    main(sys.argv[1])
```

```python
import sys, math, struct
from gen2 import Asm, vr, HDR, kd, srd, X_BYTES, KV_BYTES, W_BYTES, O_BYTES
import gen2
OPT = gen2.OPT
OPT.update(dict(stamp=False, ntx="", ntw="", ntkv="", ntwo="", kvc='x24682468', rot=1, xrot=1, la=2,
                spin=400000, cpf=1, woq=4, kvspread=0, kvend=5, pre8=1, sigm=0, bset='x01234567', osched='x345678', fsplit=4, fblk=14, hprio=0, cprio=0, g0fast=0, g2m=2, g2per=1, sdel=0, pg=1, stub=1, rper=2, imaj=1, prio=3, pw=24, ftouch=3, pvm=1, psum=1, wflag=1, wo9=4, wlate=12, tf='sc1', outf='', psl=0, f1full=1, fast=0, old='sc1', wbl=0))
Stamper = gen2.Stamper
KN = "standalone__mha_block_cached__near_ridge_kernel"

SLOT = 28672; NSLOT = 4
KBASE = SLOT*NSLOT; VBASE = KBASE + 24576
QX = 11*8192
WOBLK = [7,8,9,10, 0,1,2,3,4,5,6,14, 16,17,18,19]
def OREG(u): return u*16384
P_OFF = 0x800000
F1_OFF = 0x1000000; E_OFF = 0x1080000; F2_OFF = 0x1100000; WS_USED = 0x1200000
FS = 7
CNT = 131072

def mix(a, main, side, per=2, lead=True):
    main = list(main); side = list(side)
    while main or side:
        if not lead and main: a(main.pop(0))
        for _ in range(per):
            if side: a(side.pop(0))
        if lead and main: a(main.pop(0))

def gen(a):
    sX, sK, sV, sW, sS, sD, sY = 8, 12, 16, 20, 24, 52, 56
    sH, sP, sWv, sB, sDH = 28, 29, 30, 31, 32
    sT0, sT1, sT2 = 33, 34, 35
    sOW, sOX, sKV, sCls, sC, sJ = 36, 37, 38, 39, 50, 51
    sN, sTA, sTB, sCnt = 3, 6, 7, 37
    vL, vG, vC, vT = 1, 2, 3, 4
    lab = [0]
    def L():
        lab[0] += 1; return f"L{lab[0]}"
    def page(name, fall=True):
        if not OPT["pg"]: return
        if fall: a(f"s_branch L_pg{name}")
        a(".p2align 12")
        a(f"L_stub{name}:")
        a("s_setpc_b64 s[4:5]")
        a(f"L_pg{name}:")
    a("s_cmp_ge_u32 s2, 256")
    a("s_cbranch_scc1 L_end")
    st = Stamper(a, 62); st()
    a(f"""s_load_dwordx8 s[40:47], s[0:1], 0
    s_load_dwordx4 s[4:7], s[0:1], 32
    s_load_dwordx2 s[60:61], s[0:1], 48
    s_load_dwordx2 s[48:49], s[0:1], 56
    v_lshrrev_b32 v{vT}, 6, v0
    v_and_b32 v{vL}, 63, v0
    v_readfirstlane_b32 s{sWv}, v{vT}
    v_lshrrev_b32 v{vG}, 4, v{vL}
    v_and_b32 v{vC}, 15, v{vL}
    s_and_b32 s{sT0}, s2, 7
    s_lshl_b32 s{sT0}, s{sT0}, 2
    s_bfe_u32 s{sT1}, s2, 0x20003
    s_add_u32 s{sH}, s{sT0}, s{sT1}
    s_lshr_b32 s{sP}, s2, 5
    s_cmp_lg_u32 s{sWv}, 4
    s_cbranch_scc1 L_notprod""")
    kvs = [int(c) for c in str(OPT["kvc"])[1:]]
    def set_cls():
        a(f"""s_lshl_b32 s{sT0}, s{sP}, 2
        s_lshr_b32 s{sCls}, {sum(k << (4*i) for i, k in enumerate(kvs))}, s{sT0}
        s_and_b32 s{sCls}, s{sCls}, 0xf""")

    def get_nonce(vreg):
        l0, l1 = L(), L()
        a(f"s_waitcnt lgkmcnt(0)")
        a(f"s_mov_b32 s{sCnt}, 0")
        a(f"{l0}:")
        a(f"""s_cmp_lg_u32 s{sN}, 0
        s_cbranch_scc1 {l1}
        s_cmp_gt_u32 s{sCnt}, {OPT['spin']}
        s_cbranch_scc1 {l1}
        buffer_load_dword v{vreg}, off, s[{sD}:{sD+3}], 0 sc1
        s_add_u32 s{sCnt}, s{sCnt}, 1
        s_waitcnt vmcnt(0)
        v_readfirstlane_b32 s{sN}, v{vreg}
        s_nop 0
        s_branch {l0}""")
        a(f"{l1}:")
    def decode_tile():
        a(f"""s_lshr_b32 s{sT0}, s2, 3
        s_mul_i32 s{sTA}, s{sT0}, 52
        s_lshr_b32 s{sTA}, s{sTA}, 8
        s_mul_i32 s{sTB}, s{sTA}, 5
        s_sub_u32 s{sTB}, s{sT0}, s{sTB}
        s_and_b32 s{sJ}, s2, 7""")

    if OPT["prio"]: a(f"s_setprio {OPT['prio']}")
    vW, vX, vK, vV = 12, 16, 20, 24
    if OPT["rot"] == 1:
        a(f"""s_mul_i32 s{sT0}, s{sT1}, 5
        s_add_u32 s{sT0}, s{sT0}, 1
        s_lshr_b32 s{sT0}, s{sT0}, 1
        s_add_u32 s{sT2}, s{sT0}, s{sP}""")
    elif OPT["rot"] >= 2:
        R = OPT["rot"]
        tab = [round(10*i/R) % 10 for i in range(R)]
        lut = sum(tab[(x % R)] << (4*x) for x in range(11))
        a(f"""s_add_u32 s{sT0}, s{sT1}, s{sP}
        s_lshl_b32 s{sT0}, s{sT0}, 2
        s_mov_b32 s36, {lut & 0xffffffff}
        s_mov_b32 s37, {lut >> 32}
        s_lshr_b64 s[36:37], s[36:37], s{sT0}
        s_and_b32 s{sT2}, s36, 15""")
    else:
        a(f"s_mov_b32 s{sT2}, 0")
    if OPT["xrot"]:
        a(f"""s_and_b32 s{sT0}, s2, 7
        s_add_u32 s{sT2}, s{sT2}, s{sT0}
        s_cmp_ge_u32 s{sT2}, 10
        s_cselect_b32 s{sT0}, 10, 0
        s_sub_u32 s{sT2}, s{sT2}, s{sT0}""")
    if OPT["rot"] == 1:
        a(f"""s_cmp_ge_u32 s{sT2}, 10
        s_cselect_b32 s{sT0}, 10, 0
        s_sub_u32 s{sT2}, s{sT2}, s{sT0}""")
    a(f"""s_lshl_b32 s{sOW}, s{sT2}, 19
    s_lshl_b32 s{sOX}, s{sT2}, 7
    s_lshl_b32 s{sT0}, s{sH}, 8
    v_lshlrev_b32 v{vT}, 1, v{vG}
    v_xor_b32 v{vT}, v{vT}, v{vC}
    v_lshlrev_b32 v{vT}, 4, v{vT}
    v_lshl_add_u32 v{vW}, v{vG}, 13, v{vT}
    v_add_u32 v{vW}, s{sT0}, v{vW}
    v_add_u32 v{vW+1}, {4*8192 - 1024}, v{vW}
    v_xor_b32 v{vW+2}, 0x80, v{vW}
    v_add_u32 v{vW+3}, {12*8192 - 3072}, v{vW+2}
    v_add_u32 v{vW+2}, {8*8192 - 2048}, v{vW+2}
    s_mul_i32 s{sT0}, s{sP}, {96*1280}
    v_lshrrev_b32 v{vT+1}, 3, v{vL}
    v_and_b32 v{vT+2}, 7, v{vL}
    v_xor_b32 v{vT+2}, v{vT+2}, v{vT+1}
    v_lshlrev_b32 v{vT+2}, 4, v{vT+2}
    v_mul_u32_u24 v{vX}, 1280, v{vT+1}
    v_add3_u32 v{vX}, v{vX}, v{vT+2}, s{sT0}
    v_add_u32 v{vX+1}, {8*1280 - 1024}, v{vX}
    v_add_u32 v{vX+2}, {16*1280 - 2048}, v{vX}
    v_add_u32 v{vX+3}, {24*1280 - 3072}, v{vX}
    s_waitcnt lgkmcnt(0)""")
    srd(a, sW, 46, W_BYTES); srd(a, sX, 40, X_BYTES)
    sSlot, sI = 31, 32
    def issueG():
        for jj in range(4):
            a(f"s_add_u32 m0, s{sSlot}, {12288 + jj*4096}")
            a(f"s_add_u32 s{sT0}, s{sOW}, {jj*16*8192}")
            for i in range(4):
                a(f"buffer_load_dwordx4 v{vW+i}, s[{sW}:{sW+3}], s{sT0} offen offset:{i*1024} {OPT['ntw']} lds")
        for jj in range(3):
            a(f"s_add_u32 m0, s{sSlot}, {jj*4096}")
            a(f"s_add_u32 s{sT0}, s{sOX}, {jj*32*1280}")
            for i in range(4):
                a(f"buffer_load_dwordx4 v{vX+i}, s[{sX}:{sX+3}], s{sT0} offen offset:{i*1024} {OPT['ntx']} lds")
        a(f"""s_add_u32 s{sOW}, s{sOW}, {64*8192}
        s_add_u32 s{sOX}, s{sOX}, 128
        s_cmp_ge_u32 s{sOX}, 1280
        s_cselect_b32 s{sOW}, 0, s{sOW}
        s_cselect_b32 s{sOX}, 0, s{sOX}
        s_add_u32 s{sSlot}, s{sSlot}, {SLOT}
        s_cmp_ge_u32 s{sSlot}, {NSLOT*SLOT}
        s_cselect_b32 s{sSlot}, 0, s{sSlot}""")
    a(f"""s_mov_b32 s{sSlot}, 0
    s_mov_b32 s{sI}, 1""")
    issueG()
    srd(a, sK, 42, KV_BYTES); srd(a, sV, 44, KV_BYTES)
    a(f"""s_lshl_b32 s{sKV}, s{sP}, 6
    s_add_u32 s{sKV}, s{sKV}, s{sH}
    s_mul_i32 s{sKV}, s{sKV}, 12288
    v_xor_b32 v{vT+1}, v{vC}, v{vG}
    v_lshlrev_b32 v{vT+1}, 4, v{vT+1}
    v_lshl_add_u32 v{vK}, v{vG}, 8, v{vT+1}
    v_xor_b32 v{vK+1}, 64, v{vK}
    v_xor_b32 v{vK+2}, 128, v{vK}
    v_xor_b32 v{vK+3}, 192, v{vK}
    v_lshl_add_u32 v{vV}, v{vG}, 8, v{vT}
    v_xor_b32 v{vV+1}, 128, v{vV}""")
    set_cls()
    sWo = 56
    vW2, vO, vF = 28, 32, 36
    sR2, sRho, sSig, sSplit, sRdy = 50, 40, 41, 42, 44
    srd(a, sWo, 4, W_BYTES); srd(a, sS, 48, WS_USED); srd(a, sD, 60, 256)
    a("s_mov_b64 s[46:47], s[6:7]")
    decode_tile()
    if OPT["wflag"]:
        pollvec = f"""s_lshl_b32 s{sT0}, s{sTA}, 8
        s_lshl_b32 s{sT1}, s{sJ}, 2
        s_add_u32 s{sT0}, s{sT0}, s{sT1}
        v_bfe_u32 v{vF}, v{vL}, 2, 3
        v_and_b32 v{vF+2}, 3, v{vL}
        v_lshl_add_u32 v{vF}, v{vF}, 5, v{vF+2}
        v_add_u32 v{vF}, s{sT0}, v{vF}
        v_lshlrev_b32 v{vF}, {FS}, v{vF}"""
    else:
        pollvec = f"""s_lshl_b32 s{sT0}, s{sT0}, 5
        s_add_u32 s{sT0}, s{sT0}, s{sJ}
        v_and_b32 v{vF}, 7, v{vL}
        v_lshl_add_u32 v{vF}, v{vF}, 3, s{sT0}
        v_lshlrev_b32 v{vF}, {FS}, v{vF}"""
    a(f"""s_mul_i32 s{sT0}, s{sJ}, {512*1280}
    s_lshl_b32 s{sT1}, s{sTB}, 8
    s_add_u32 s{sT0}, s{sT0}, s{sT1}
    v_mul_u32_u24 v{vW2}, 1280, v{vG}
    v_add3_u32 v{vW2}, v{vW2}, v{vT}, s{sT0}
    v_xor_b32 v{vW2+1}, 0x80, v{vW2}
    v_add_u32 v{vW2+2}, {8*1280 - 2048}, v{vW2}
    v_add_u32 v{vW2+3}, {12*1280 - 3072}, v{vW2+1}
    v_add_u32 v{vW2+1}, {4*1280 - 1024}, v{vW2+1}
    s_lshl_b32 s{sT0}, s{sTA}, 10
    s_lshl_b32 s{sT1}, s{sJ}, 4
    s_add_u32 s{sT0}, s{sT0}, s{sT1}
    s_lshl_b32 s{sT0}, s{sT0}, 10
    v_lshlrev_b32 v{vO}, 4, v{vL}
    v_add_u32 v{vO}, s{sT0}, v{vO}
    s_mul_i32 s{sT0}, s{sTA}, 43
    s_lshr_b32 s{sT0}, s{sT0}, 5
    s_mul_i32 s{sSplit}, s{sT0}, 6
    s_add_u32 s{sSplit}, s{sSplit}, 6
    s_lshl_b32 s{sT1}, s{sTA}, 3
    s_sub_u32 s{sSplit}, s{sSplit}, s{sT1}
    {pollvec}
    s_and_b32 s{sRho}, s{sTA}, 3
    s_lshl_b32 s{sR2}, s{sRho}, 2
    s_lshl_b32 s{sRho}, s{sRho}, 12
    s_add_u32 s{sSig}, s{sJ}, 1
    s_and_b32 s{sSig}, s{sSig}, 7
    s_mov_b32 s{sRdy}, 0""")
    def issueWo(t):
        a(f"s_mul_i32 s{sT1}, s{sR2}, {32*1280}")
        for jj in range(2):
            a(f"s_mov_b32 m0, {WOBLK[t]*8192 + jj*4096}")
            a(f"s_add_u32 s{sT0}, s{sT1}, {jj*16*1280}")
            for i in range(4):
                a(f"buffer_load_dwordx4 v{vW2+i}, s[{sWo}:{sWo+3}], s{sT0} offen offset:{i*1024} {OPT['ntwo']} lds")
        a(f"""s_add_u32 s{sR2}, s{sR2}, 1
        s_and_b32 s{sR2}, s{sR2}, 15""")
    def issueO(u):
        l1 = L()
        if OPT["wflag"]:
            a(f"""s_lshl_b32 s{sT1}, s{sSig}, 2
            s_lshl_b32 s{sT2}, 0xf, s{sT1}""")
        else:
            a(f"""s_cmp_lt_u32 s{sSig}, s{sSplit}
            s_cselect_b32 s{sT2}, 0xf, 0xf0""")
        a(f"""s_andn2_b32 s{sT1}, s{sT2}, s{sRdy}
        s_cbranch_scc0 {l1}
        s_call_b64 s[4:5], L_poll1""")
        a(f"{l1}:")
        a(f"s_lshl_b32 s{sT1}, s{sSig}, 17")
        for G in range(4):
            a(f"s_mov_b32 m0, {OREG(u) + G*4096}")
            a(f"s_add_u32 s{sT0}, s{sT1}, s{sRho}")
            for i in range(4):
                a(f"buffer_load_dwordx4 v{vO}, s[{sS}:{sS+3}], s{sT0} offen offset:{i*1024} sc1 lds")
            a(f"""s_add_u32 s{sRho}, s{sRho}, 4096
            s_and_b32 s{sRho}, s{sRho}, 0x3fff""")
        a(f"""s_add_u32 s{sSig}, s{sSig}, 1
        s_and_b32 s{sSig}, s{sSig}, 7""")
    kvgroups = [(base, s_, vreg, nv, b, jj) for (base, s_, vreg, nv) in ((KBASE, sK, vK, 4), (VBASE, sV, vV, 2)) for b in range(2) for jj in range(3)]
    def kvgroup(gi):
        base, s_, vreg, nv, b, jj = kvgroups[gi]
        a(f"s_mov_b32 m0, {base + b*12288 + jj*4096}")
        a(f"s_add_u32 s{sT0}, s{sKV}, {b*32*12288 + jj*4096}")
        for i in range(4):
            a(f"buffer_load_dwordx4 v{vreg + i % nv}, s[{s_}:{s_+3}], s{sT0} offen offset:{i*1024} {OPT['ntkv']} lds")
    st()
    a("L_gissue:")
    issueG()
    a(f"""L_gnext:
    s_add_u32 s{sI}, s{sI}, 1""")
    a(f"""L_ploop:
    s_waitcnt vmcnt({OPT['pw']})
    s_barrier
    s_cmp_eq_u32 s{sI}, 12
    s_cbranch_scc1 L_pdone
    s_sub_u32 s{sT0}, s{sI}, s{sCls}
    s_cmp_gt_u32 s{sT0}, 1
    s_cbranch_scc1 L_gissue
    s_cmp_eq_u32 s{sT0}, 1
    s_cbranch_scc1 L_vissue""")
    if OPT["ftouch"] & 1:
        a(f"""s_mov_b32 s{sT0}, {F1_OFF}
        buffer_load_dword v{vF+3}, v{vF}, s[{sS}:{sS+3}], s{sT0} offen {OPT['tf']}""")
    if OPT["ftouch"] & 2:
        a(f"""s_lshl_b32 s{sT0}, s2, {5+FS}
        s_add_u32 s{sT0}, s{sT0}, {F2_OFF}
        v_and_b32 v40, 31, v{vL}
        v_lshlrev_b32 v40, {FS}, v40
        buffer_load_dword v41, v40, s[{sS}:{sS+3}], s{sT0} offen {OPT['tf']}""")
    if OPT["ftouch"] & 4:
        a(f"""s_mul_i32 s{sT0}, s{sP}, 6
        s_lshl_b32 s{sT0}, s{sT0}, 7
        s_lshl_b32 s{sT1}, s{sH}, 2
        s_add_u32 s{sT0}, s{sT0}, s{sT1}
        s_lshl_b32 s{sT0}, s{sT0}, 10
        v_min_u32 v40, 5, v{vL}
        v_lshlrev_b32 v40, 17, v40
        buffer_load_dword v41, v40, s[{sS}:{sS+3}], s{sT0} offen {OPT['tf']}
        v_and_b32 v40, 7, v{vL}
        v_lshlrev_b32 v42, 17, v40
        s_lshl_b32 s{sT0}, s{sTA}, 20
        s_lshl_b32 s{sT1}, s{sJ}, 14
        s_add_u32 s{sT0}, s{sT0}, s{sT1}
        buffer_load_dword v41, v42, s[{sS}:{sS+3}], s{sT0} offen {OPT['tf']}
        v_lshlrev_b32 v42, 15, v40
        s_andn2_b32 s{sT0}, s2, 7
        s_lshl_b32 s{sT0}, s{sT0}, 3
        s_add_u32 s{sT0}, s{sT0}, s{sJ}
        s_lshl_b32 s{sT0}, s{sT0}, 12
        s_add_u32 s{sT0}, s{sT0}, {P_OFF}
        buffer_load_dword v41, v42, s[{sS}:{sS+3}], s{sT0} offen {OPT['tf']}""")
    if OPT["ftouch"] & 8:
        a(f"""v_and_b32 v40, 7, v{vL}
        v_mul_u32_u24 v42, {64*1280}, v40
        s_mul_i32 s{sT0}, s{sJ}, {512*1280}
        buffer_load_dword v41, v42, s[{sWo}:{sWo+3}], s{sT0} offen
        s_mul_i32 s{sT0}, s{sP}, {96*1280}
        v_mov_b32 v42, s{sT0}
        global_load_dword v41, v42, s[46:47]""")
    for gi in range(6): kvgroup(gi)
    a("s_branch L_gnext")
    a("L_vissue:")
    for gi in range(6, 12): kvgroup(gi)
    a("s_branch L_gnext")
    a("L_pdone:")
    st.n = 5
    a(f"s_load_dword s{sN}, s[60:61], 0")
    a("s_cmp_ge_u32 s2, 240")
    a("s_cbranch_scc1 L_prod_notile")
    for t in range(0, 4): issueWo(t)
    a(f"s_waitcnt vmcnt(32)")
    a("s_barrier")
    st()
    for t in range(4, OPT["wo9"]): issueWo(t)
    get_nonce(vF+1)
    a("s_barrier")
    st()
    for t in range(OPT["wo9"], OPT["woq"]): issueWo(t)
    st()
    page("B")
    a("s_barrier")
    st()
    for t in range(OPT["woq"], OPT["wlate"]): issueWo(t)
    a("s_waitcnt vmcnt(0)")
    a("s_barrier")
    st()
    a(f"""s_mov_b32 s{sT0}, {F1_OFF}
    buffer_load_dword v{vF+3}, v{vF}, s[{sS}:{sS+3}], s{sT0} offen sc1""")
    for t in range(OPT["wlate"], 16): issueWo(t)
    a("s_barrier")
    a(f"""s_waitcnt vmcnt({8*(16 - OPT["wlate"])})
    v_cmp_eq_u32 s[{sRdy}:{sRdy+1}], s{sN}, v{vF+3}
    s_nop 1""")
    issueO(0)
    n0 = st.n; st.n = 12; st(); st.n = n0
    bset = [int(c) for c in str(OPT["bset"])[1:]]
    sched = [int(c) for c in str(OPT["osched"])[1:]]
    nxo = 1
    for bi, u in enumerate(bset):
        tgt = sched[bi] if bi < len(sched) else 8
        while nxo < tgt: issueO(nxo); nxo += 1
        lastneeded = (bset[bi+1] - 1) if bi + 1 < len(bset) else 7
        assert lastneeded < nxo
        a(f"s_waitcnt vmcnt({min(63, 16*(nxo - 1 - lastneeded))})")
        a("s_barrier")
        if u in (0, 4): st()
    a("s_branch L_done")
    a("L_prod_notile:")
    a(f"""s_waitcnt vmcnt(0)
    s_barrier
    s_branch L_done""")
    a("L_poll1:")
    a(f"""s_mov_b32 s{sCnt}, 0
    s_mov_b32 s{sT0}, {F1_OFF}
    L_poll1_loop:
    buffer_load_dword v{vF+3}, v{vF}, s[{sS}:{sS+3}], s{sT0} offen sc1
    s_add_u32 s{sCnt}, s{sCnt}, 1
    s_waitcnt vmcnt(0)
    v_cmp_eq_u32 s[{sRdy}:{sRdy+1}], s{sN}, v{vF+3}
    s_cmp_gt_u32 s{sCnt}, {OPT['spin']}
    s_cbranch_scc1 L_poll1_end
    s_andn2_b32 s{sT1}, s{sT2}, s{sRdy}
    s_cbranch_scc1 L_poll1_loop
    L_poll1_end:
    s_setpc_b64 s[4:5]""")

    page("C", fall=False)
    a("L_notprod:")
    vRB = 12; vRA = 16
    vQW, vQR, vKR, vVR, vOo, vNo, vTR = 24, 25, 26, 27, 28, 29, 30
    ACC = 32; FA = [80, 108]
    def acc(tt, i): return ACC + (tt*3 + i)*4
    if OPT["cpf"]:
        a(f"""s_cmp_lg_u32 s{sWv}, 6
        s_cbranch_scc1 L_nocpf
        s_getpc_b64 s[{sY}:{sY+1}]
        L_pcref:
        s_sub_u32 s{sY}, s{sY}, L_pcref-{KN}
        s_subb_u32 s{sY+1}, s{sY+1}, 0
        s_bfe_u32 s{sT0}, s2, 0x30003
        s_mul_i32 s{sT0}, s{sT0}, 24
        v_min_u32 v{vT}, 23, v{vL}
        v_add_u32 v{vT}, s{sT0}, v{vT}
        v_lshlrev_b32 v{vT}, 7, v{vT}
        v_min_u32 v{vT}, L_codeend-{KN}-4, v{vT}
        global_load_dword v250, v{vT}, s[{sY}:{sY+1}]
        L_nocpf:""")
    a("s_waitcnt lgkmcnt(0)")
    srd(a, sS, 48, WS_USED); srd(a, sD, 60, 256); srd(a, sY, 6, X_BYTES)
    a(f"""s_lshl_b32 s{sT0}, s2, 3
    s_add_u32 s{sT0}, s{sT0}, s{sWv}
    s_cmp_lg_u32 s{sT0}, 5
    s_cbranch_scc1 L_nononce
    s_mov_b32 s{sT0}, {E_OFF}
    buffer_load_dword v{vT}, off, s[{sS}:{sS+3}], s{sT0} sc1
    s_mov_b32 s{sT1}, 0x9e3779b1
    s_waitcnt vmcnt(0)
    v_mul_lo_u32 v{vT}, v{vT}, s{sT1}
    v_add_u32 v{vT}, 0x7f4a7c15, v{vT}
    v_max_u32 v{vT}, 1, v{vT}
    s_mov_b64 exec, 1
    buffer_store_dword v{vT}, off, s[{sD}:{sD+3}], 0 sc1
    buffer_store_dword v{vT}, off, s[{sS}:{sS+3}], s{sT0} sc1
    s_mov_b64 exec, -1
    L_nononce:""")
    a(f"""s_cmp_gt_u32 s{sWv}, 4
    s_cselect_b32 s{sT0}, 1, 0
    s_sub_u32 s{sJ}, s{sWv}, s{sT0}
    s_lshl_b32 s{sT0}, s{sJ}, 12
    s_add_u32 s{sT0}, s{sT0}, {QX}
    v_lshlrev_b32 v{vOo}, 4, v{vL}
    v_add_u32 v{vQR}, s{sT0}, v{vOo}
    s_cmp_ge_u32 s{sJ}, 3
    s_cselect_b32 s{sT2}, 12288, 0
    v_lshrrev_b32 v{vT}, 1, v{vG}
    v_xor_b32 v{vT}, v{vT}, v{vC}
    v_lshlrev_b32 v{vT}, 4, v{vT}
    v_lshl_add_u32 v{vT}, v{vC}, 8, v{vT}
    v_and_b32 v{vT+1}, 1, v{vG}
    v_lshl_add_u32 v{vT}, v{vT+1}, 3, v{vT}
    s_add_u32 s{sT0}, s{sT2}, {KBASE}
    v_add_u32 v{vKR}, s{sT0}, v{vT}
    v_lshrrev_b32 v{vT}, 2, v{vC}
    v_lshl_add_u32 v{vT}, v{vG}, 2, v{vT}
    v_and_b32 v{vT+1}, 7, v{vT}
    v_lshlrev_b32 v{vT+1}, 5, v{vT+1}
    v_lshl_add_u32 v{vT}, v{vT}, 8, v{vT+1}
    v_and_b32 v{vT+1}, 3, v{vC}
    v_lshl_add_u32 v{vTR}, v{vT+1}, 3, v{vT}
    s_add_u32 s{sT0}, s{sT2}, {VBASE}
    v_add_u32 v{vVR}, s{sT0}, v{vTR}
    s_lshr_b32 s{sB}, s{sWv}, 1
    s_and_b32 s{sDH}, s{sWv}, 1
    s_mul_i32 s{sT0}, s{sB}, 12288
    s_lshl_b32 s{sT1}, s{sDH}, 11
    s_add_u32 s{sT0}, s{sT0}, s{sT1}
    s_add_u32 s{sT0}, s{sT0}, {QX}
    v_add_u32 v{vQW}, s{sT0}, v{vOo}
    s_mul_i32 s{sT0}, s{sP}, 6
    s_add_u32 s{sT0}, s{sT0}, s{sJ}
    s_lshl_b32 s{sT0}, s{sT0}, 7
    s_lshl_b32 s{sT1}, s{sH}, 2
    s_add_u32 s{sT0}, s{sT0}, s{sT1}
    s_lshl_b32 s{sKV}, s{sT0}, {FS-2}
    s_add_u32 s{sKV}, s{sKV}, {F1_OFF}
    s_lshl_b32 s{sT0}, s{sT0}, 10
    v_add_u32 v{vOo}, s{sT0}, v{vOo}""")
    c = (128 ** -0.5) * math.log2(math.e)
    cb = struct.unpack('<I', struct.pack('<f', c))[0]
    a(f"s_mov_b32 s{sC}, {cb:#x}")
    a(f"s_mov_b32 s{sC+1}, {cb:#x}")
    set_cls()
    a(f"s_cmp_lt_u32 s{sWv}, 4")
    a("s_cbranch_scc1 L_cons")
    KF, VF = 136, 184
    def k_reads():
        r = []
        for T in range(4):
            for hf in range(2):
                tmp = vT + ((2*T+hf) & 3)
                r.append(f"v_xor_b32 v{tmp}, {64*T + 32*hf}, v{vKR}")
                for kt in range(3):
                    r.append(f"ds_read_b64 {vr(KF+(kt*4+T)*4+2*hf,2)}, v{tmp} offset:{kt*4096}")
        return r
    def v_reads():
        r = []
        for t in range(8):
            tmp = vT + 4 + (t & 3)
            r.append(f"v_xor_b32 v{tmp}, {32*t}, v{vVR}")
            for q in range(3):
                r.append(f"ds_read_b64_tr_b16 {vr(VF+t*6+2*q,2)}, v{tmp} offset:{q*4096}")
        return r
    def kvcall(kk):
        if kk in kvs:
            l = L()
            a(f"s_cmp_lg_u32 s{sCls}, {kk}")
            a(f"s_cbranch_scc1 {l}")
            a(f"s_call_b64 s[4:5], L_kvread")
            a(f"{l}:")
    if OPT["hprio"]: a(f"s_setprio {OPT['hprio']}")
    for kk in range(10):
        kvcall(kk)
        if kk == 9: a("s_waitcnt lgkmcnt(0)")
        a("s_barrier")
        if kk == 6: a(f"s_load_dword s{sN}, s[60:61], 0")
        if kk == 0 and OPT["pg"] and OPT["stub"]:
            for nm in "DEFB": a(f"s_call_b64 s[4:5], L_stub{nm}")
    a("s_branch L_qx")
    a("L_kvread:")
    a("s_barrier")
    for x in k_reads(): a(x)
    a("s_barrier")
    for x in v_reads(): a(x)
    a("s_setpc_b64 s[4:5]")
    a("L_cons:")
    if OPT["cprio"]: a(f"s_setprio {OPT['cprio']}")
    a(f"""s_mul_i32 s{sT0}, s{sB}, {48*128}
    v_and_b32 v{vT}, 7, v{vC}
    v_xor_b32 v{vT}, v{vT}, v{vG}
    v_lshlrev_b32 v{vT}, 4, v{vT}
    v_lshl_add_u32 v{vT}, v{vC}, 7, v{vT}
    v_add_u32 v{vRB}, s{sT0}, v{vT}
    v_xor_b32 v{vRB+2}, 64, v{vRB}
    v_add_u32 v{vRB+1}, {2*SLOT}, v{vRB}
    v_add_u32 v{vRB+3}, {2*SLOT}, v{vRB+2}
    v_lshrrev_b32 v{vT}, 2, v{vC}
    v_lshl_add_u32 v{vT+1}, v{vG}, 3, v{vT}
    v_lshlrev_b32 v{vT+1}, 8, v{vT+1}
    v_and_b32 v{vT+2}, 1, v{vG}
    v_lshlrev_b32 v{vT+2}, 3, v{vT+2}
    v_lshl_add_u32 v{vT+2}, v{vT}, 1, v{vT+2}
    v_and_b32 v{vT+3}, 3, v{vC}
    v_lshlrev_b32 v{vT+3}, 3, v{vT+3}
    v_add_u32 v{vT+1}, v{vT+1}, v{vT+3}
    v_add_u32 v{vT+1}, 12288, v{vT+1}
    s_lshl_b32 s{sT0}, s{sDH}, 3
    v_xor_b32 v{vT+2}, s{sT0}, v{vT+2}
    v_lshl_add_u32 v{vRA}, v{vT+2}, 4, v{vT+1}""")
    for tt in range(1, 4):
        a(f"v_xor_b32 v{vRA+2*tt}, {32*tt}, v{vRA}")
    for tt in range(4):
        a(f"v_add_u32 v{vRA+2*tt+1}, {2*SLOT}, v{vRA+2*tt}")
    def reads(kk, sub, fs):
        slot = kk % NSLOT; hi = slot >> 1; so = (slot & 1)*SLOT; F = FA[fs]
        r = [f"ds_read_b128 {vr(F+16,4)}, v{vRB+2*sub+hi} offset:{so}"]
        for tt in range(4):
            for q in range(2):
                r.append(f"ds_read_b64_tr_b16 {vr(F+4*tt+2*q,2)}, v{vRA+2*tt+hi} offset:{so + (32*sub + 4*q)*256}")
        for i in range(1, 3):
            r.append(f"ds_read_b128 {vr(F+16+4*i,4)}, v{vRB+2*sub+hi} offset:{so + i*2048}")
        return r
    def mfmas(fs, first):
        F = FA[fs]; r = []
        for i in range(3):
            for tt in range(4):
                cc = "0" if first else vr(acc(tt,i),4)
                r.append(f"v_mfma_f32_16x16x32_bf16 {vr(acc(tt,i),4)}, {vr(F+4*tt,4)}, {vr(F+16+4*i,4)}, {cc}")
        return r
    st.n = 1; st()
    for kk in range(9):
        if kk == 6: page("D")
        kvcall(kk)
        a("s_barrier")
        if kk in (0, 3, 7): st()
        if kk == 6: a(f"s_load_dword s{sN}, s[60:61], 0")
        mix(a, mfmas(1, False) if kk else [], reads(kk, 0, 0), per=OPT['rper'])
        a("s_waitcnt lgkmcnt(0)")
        mix(a, mfmas(0, kk == 0), reads(kk, 1, 1), per=OPT['rper'])
        a("s_waitcnt lgkmcnt(0)")
    QW = 232
    def qcvt(i):
        r = []
        for T in range(2):
            d = QW + (i*2+T)*4
            for u in range(2):
                s_ = acc(2*T+u, i)
                r.append(f"v_cvt_pk_bf16_f32 v{d+2*u}, v{s_}, v{s_+1}")
                r.append(f"v_cvt_pk_bf16_f32 v{d+2*u+1}, v{s_+2}, v{s_+3}")
            r.append(f"ds_write_b128 v{vQW}, {vr(d,4)} offset:{i*4096 + T*1024}")
        return r
    m0_, m1_ = mfmas(0, False), mfmas(1, False)
    for m in m1_: a(m)
    a("s_barrier")
    st()
    r0, r1 = reads(9, 0, 0), reads(9, 1, 1)
    for x in r0[:9] + r1[:6]: a(x)
    a("s_waitcnt lgkmcnt(6)")
    mix(a, m0_[:4], r1[6:9] + [r0[9], r1[9], r0[10], r1[10]], per=2, lead=False)
    a("s_waitcnt lgkmcnt(4)")
    for m in m1_[:4]: a(m)
    a("s_waitcnt lgkmcnt(2)")
    for m in m0_[4:8] + m1_[4:7]: a(m)
    a("s_waitcnt lgkmcnt(0)")
    mix(a, m1_[7:8] + m0_[8:], qcvt(0), per=2, lead=False)
    mix(a, m1_[8:], qcvt(1)[:6], per=2, lead=True)
    for x in qcvt(1)[6:]: a(x)
    a("s_nop 3")
    for x in qcvt(2): a(x)
    a("L_qx:")
    a("s_waitcnt lgkmcnt(0)")
    a("s_barrier")
    st()
    QF = 56; SA = 32; PF = 44; OA = 80
    for T in range(4):
        a(f"ds_read_b128 {vr(QF+4*T,4)}, v{vQR} offset:{T*1024}")
    for T in range(4):
        a(f"s_waitcnt lgkmcnt({3-T})")
        for kt in range(3):
            cc = "0" if T == 0 else vr(SA+4*kt,4)
            a(f"v_mfma_f32_16x16x32_bf16 {vr(SA+4*kt,4)}, {vr(KF+(kt*4+T)*4,4)}, {vr(QF+4*T,4)}, {cc}")
    if OPT["wflag"]:
        a("s_nop 2")
    else:
        a(f"""v_mov_b32 v{vNo}, 0
        v_mov_b32 v{vQW}, {CNT}
        ds_write_b32 v{vQW}, v{vNo}""")
    M, M2, Ls, L2 = 4, 5, 6, 7
    v = [SA+j for j in range(12)]
    a(f"""s_nop 2
    v_max3_f32 v{M}, v{v[0]}, v{v[1]}, v{v[2]}
    v_max3_f32 v{M2}, v{v[3]}, v{v[4]}, v{v[5]}
    v_max3_f32 v{Ls}, v{v[6]}, v{v[7]}, v{v[8]}
    v_max3_f32 v{L2}, v{v[9]}, v{v[10]}, v{v[11]}
    v_max3_f32 v{M}, v{M}, v{M2}, v{Ls}
    v_max_f32 v{M}, v{M}, v{L2}""")
    for sw in ("v_permlane32_swap_b32", "v_permlane16_swap_b32"):
        a(f"""v_mov_b32 v{M2}, v{M}
        s_nop 1
        {sw} v{M}, v{M2}
        v_max_f32 v{M}, v{M}, v{M2}""")
    a(f"v_mul_f32 v{M}, s{sC}, v{M}")
    for j in range(6):
        a(f"v_pk_fma_f32 {vr(SA+2*j,2)}, {vr(SA+2*j,2)}, s[{sC}:{sC+1}], {vr(M,2)} op_sel_hi:[1,1,0] neg_lo:[0,0,1] neg_hi:[0,0,1]")
    for x in v: a(f"v_exp_f32 v{x}, v{x}")
    a("s_waitcnt lgkmcnt(0)")
    for j in range(6):
        a(f"v_cvt_pk_bf16_f32 v{PF+j}, v{SA+2*j}, v{SA+2*j+1}")
    a(f"v_pk_add_f32 {vr(Ls,2)}, {vr(SA,2)}, {vr(SA+2,2)}")
    pv = [f"v_mfma_f32_16x16x32_bf16 {vr(OA+4*t,4)}, {vr(VF+t*6,4)}, {vr(PF,4)}, 0" for t in range(8)]
    pv += [f"v_mfma_f32_16x16x16_bf16 {vr(OA+4*t,4)}, {vr(VF+t*6+4,2)}, {vr(PF+4,2)}, {vr(OA+4*t,4)}" for t in range(8)]
    sm = [f"v_pk_add_f32 {vr(M,2)}, {vr(SA+4,2)}, {vr(SA+6,2)}",
          f"v_pk_add_f32 {vr(Ls,2)}, {vr(Ls,2)}, {vr(SA+8,2)}",
          f"v_pk_add_f32 {vr(M,2)}, {vr(M,2)}, {vr(SA+10,2)}",
          f"v_pk_add_f32 {vr(Ls,2)}, {vr(Ls,2)}, {vr(M,2)}",
          f"v_add_f32 v{Ls}, v{Ls}, v{L2}",
          f"v_mov_b32 v{L2}, v{Ls}", "s_nop 1",
          f"v_permlane32_swap_b32 v{Ls}, v{L2}",
          f"v_add_f32 v{Ls}, v{Ls}, v{L2}",
          f"v_mov_b32 v{L2}, v{Ls}", "s_nop 1",
          f"v_permlane16_swap_b32 v{Ls}, v{L2}",
          f"v_add_f32 v{Ls}, v{Ls}, v{L2}",
          f"v_rcp_f32 v{Ls}, v{Ls}"]
    def epi(T):
        d = QF + 4*T; r = []
        for u in range(2):
            s_ = OA + 4*(2*T+u)
            r.append(f"v_pk_mul_f32 {vr(s_,2)}, {vr(s_,2)}, {vr(Ls,2)} op_sel_hi:[1,0]")
            r.append(f"v_pk_mul_f32 {vr(s_+2,2)}, {vr(s_+2,2)}, {vr(Ls,2)} op_sel_hi:[1,0]")
        for u in range(2):
            s_ = OA + 4*(2*T+u)
            r.append(f"v_cvt_pk_bf16_f32 v{d+2*u}, v{s_}, v{s_+1}")
            r.append(f"v_cvt_pk_bf16_f32 v{d+2*u+1}, v{s_+2}, v{s_+3}")
        r.append(f"buffer_store_dwordx4 {vr(d,4)}, v{vOo}, s[{sS}:{sS+3}], 0 offen offset:{T*1024} sc1")
        return r
    if OPT["pvm"]:
        pa = pv[0:4] + pv[8:12]; pb = pv[4:8] + pv[12:16]
        mix(a, pa, sm, per=2)
        for m in pb[:4]: a(m)
        a("s_nop 1")
        mix(a, pb[4:], epi(0), per=2)
        for x in epi(1): a(x)
        for x in epi(2): a(x)
        for x in epi(3): a(x)
    else:
        mix(a, pv, sm, per=1)
        a("s_nop 0")
        for T in range(4):
            for x in epi(T): a(x)
    st()
    a("s_barrier")
    get_nonce(vNo)
    if OPT["wflag"]:
        a(f"""v_mov_b32 v{vNo}, s{sN}
        s_mov_b64 exec, 1
        s_waitcnt vmcnt(0)
        buffer_store_dword v{vNo}, off, s[{sS}:{sS+3}], s{sKV} sc1
        s_mov_b64 exec, -1""")
    else:
        a(f"""v_mov_b32 v{vT}, 1
        v_mov_b32 v{vNo}, s{sN}
        v_lshlrev_b32 v31, 2, v{vL}
        s_lshl_b32 s{sT0}, s2, {FS}
        s_add_u32 s{sT0}, s{sT0}, {F1_OFF}
        s_mov_b64 exec, 1
        s_waitcnt vmcnt(0)
        ds_add_rtn_u32 v{vT+1}, v{vQW}, v{vT}
        s_waitcnt lgkmcnt(0)
        v_readfirstlane_b32 s{sT1}, v{vT+1}
        s_mov_b32 exec_lo, {-1 if OPT['f1full'] else 1}
        s_cmp_lg_u32 s{sT1}, 5
        s_cbranch_scc1 L_noflag
        buffer_store_dword v{vNo}, v31, s[{sS}:{sS+3}], s{sT0} offen sc1
        L_noflag:
        s_mov_b64 exec, -1""")
    a(f"""
    s_cmp_ge_u32 s2, 240
    s_cbranch_scc1 L_done
    s_cmp_lt_u32 s{sWv}, 4
    s_cbranch_scc1 L_ph2
    s_barrier
    s_barrier
    s_endpgm
    L_ph2:""")
    st()
    vRA2, vB0, vB1, vB2, vPo, vF2, vPw, vOut, vFa, vFb = 12, 16, 17, 18, 25, 26, 27, 28, 19, 20
    sSig = 40
    AR = 32; BS = [160, 192]; AC = [224, 232]; ST = [240, 244, 248, 252]
    decode_tile()
    a(f"""s_lshl_b32 s{sT0}, s{sWv}, 6
    v_xor_b32 v{vRA2}, s{sT0}, v{vTR}
    v_xor_b32 v{vRA2+2}, 32, v{vRA2}
    v_add_u32 v{vRA2+1}, 0x10000, v{vRA2}
    v_add_u32 v{vRA2+3}, 0x10000, v{vRA2+2}
    v_add_u32 v22, 0x20000, v{vRA2}
    v_add_u32 v23, 0x20000, v{vRA2+2}
    v_lshlrev_b32 v{vB0}, 4, v{vL}
    v_add_u32 v{vB1}, 0x10000, v{vB0}
    v_add_u32 v{vB2}, 0x20000, v{vB0}
    s_add_u32 s{sSig}, s{sJ}, 1
    s_and_b32 s{sSig}, s{sSig}, 7
    s_lshl_b32 s{sSig}, s{sSig}, 15
    s_andn2_b32 s{sT0}, s2, 7
    s_lshl_b32 s{sT0}, s{sT0}, 3
    s_add_u32 s{sT0}, s{sT0}, s{sJ}
    s_lshl_b32 s{sT0}, s{sT0}, 12
    s_lshl_b32 s{sT1}, s{sWv}, 10
    s_add_u32 s{sT0}, s{sT0}, s{sT1}
    s_add_u32 s{sT0}, s{sT0}, {P_OFF}
    v_add_u32 v{vPw}, s{sT0}, v{vB0}
    s_lshl_b32 s{sT0}, s2, 15
    s_add_u32 s{sT0}, s{sT0}, s{sT1}
    s_add_u32 s{sT0}, s{sT0}, {P_OFF}
    v_add_u32 v{vPo}, s{sT0}, v{vB0}
    s_lshl_b32 s{sT0}, s2, 2
    s_add_u32 s{sT0}, s{sT0}, s{sWv}
    s_lshl_b32 s{sT0}, s{sT0}, {3+FS}
    s_add_u32 s{sT0}, s{sT0}, {F2_OFF}
    v_min_u32 v{vF2}, 6, v{vL}
    v_lshlrev_b32 v{vF2}, {FS}, v{vF2}
    v_add_u32 v{vF2}, s{sT0}, v{vF2}
    s_andn2_b32 s{sT0}, s2, 7
    s_lshl_b32 s{sT0}, s{sT0}, 2
    s_add_u32 s{sT0}, s{sT0}, s{sWv}
    s_lshl_b32 s{sT0}, s{sT0}, {3+FS}
    s_add_u32 s{sT0}, s{sT0}, {F2_OFF}
    s_add_u32 s{sT1}, s{sJ}, 1
    v_add_u32 v{vT}, s{sT1}, v{vL}
    v_and_b32 v{vT}, 7, v{vT}
    v_lshlrev_b32 v{vT}, 5, v{vT}
    v_add_u32 v{vT}, v{vT}, v{vL}
    v_lshlrev_b32 v{vT}, {FS}, v{vT}
    v_add_u32 v{vT}, s{sT0}, v{vT}
    v_mov_b32 v{vT+1}, 0x7ffffff0
    v_cmp_gt_u32 vcc, {OPT['fsplit']}, v{vL}
    s_nop 1
    v_cndmask_b32 v{vFa}, v{vT+1}, v{vT}, vcc
    v_cndmask_b32 v{vFb}, v{vT}, v{vT+1}, vcc
    v_cmp_gt_u32 vcc, 7, v{vL}
    s_nop 1
    v_cndmask_b32 v{vFb}, v{vT+1}, v{vFb}, vcc
    s_lshl_b32 s{sT0}, s{sTA}, 3
    s_add_u32 s{sT0}, s{sT0}, s{sJ}
    s_mul_i32 s{sT0}, s{sT0}, {16*1280}
    s_lshl_b32 s{sT1}, s{sTB}, 8
    s_add_u32 s{sT0}, s{sT0}, s{sT1}
    s_lshl_b32 s{sT1}, s{sWv}, 6
    s_add_u32 s{sT0}, s{sT0}, s{sT1}
    v_mul_u32_u24 v{vOut}, 1280, v{vC}
    v_lshl_add_u32 v{vOut}, v{vG}, 3, v{vOut}
    v_add_u32 v{vOut}, s{sT0}, v{vOut}
    s_barrier""")
    st()
    def areads(ts):
        r = []
        for t in ts:
            ad = WOBLK[t]*8192; hi = ad >> 16; lo = ad & 0xffff
            for tt in range(2):
                for q in range(2):
                    r.append(f"ds_read_b64_tr_b16 {vr(AR+(t*2+tt)*4+2*q,2)}, v{vRA2+2*tt+hi if hi < 2 else 22+tt} offset:{lo + q*4096}")
        return r
    for x in areads(range(OPT["wlate"])): a(x)
    a("s_waitcnt lgkmcnt(0)")
    a("s_barrier")
    page("E")
    def breads(hp):
        u, hf = hp >> 1, hp & 1
        ad = OREG(u) + hf*8192
        base = [vB0, vB1, vB2][ad >> 16]
        return [f"ds_read_b128 {vr(BS[hf]+4*k,4)}, v{base} offset:{(ad & 0xffff) + k*1024}" for k in range(8)]
    def mf2(hp):
        u, hf = hp >> 1, hp & 1
        r = []
        for k in range(8):
            for tt in range(2):
                d = AC[u & 1] + 4*tt
                cc = "0" if (hf == 0 and k == 0) else vr(d,4)
                r.append(f"v_mfma_f32_16x16x32_bf16 {vr(d,4)}, {vr(AR+((hf*8+k)*2+tt)*4,4)}, {vr(BS[hf]+4*k,4)}, {cc}")
        return r
    def pstore(u):
        s_ = AC[u & 1]; d = ST[u & 3]
        return [f"v_cvt_pk_bf16_f32 v{d+j}, v{s_+2*j}, v{s_+2*j+1}" for j in range(4)] + \
               [f"buffer_store_dwordx4 {vr(d,4)}, v{vPw}, s[{sS}:{sS+3}], s{sSig} offen sc1",
                f"s_add_u32 s{sSig}, s{sSig}, 0x8000", f"s_and_b32 s{sSig}, s{sSig}, 0x3ffff"]
    FSP = OPT["fsplit"]
    held = []
    for hp in range(17):
        u = hp >> 1
        side = breads(hp) if hp < 16 else []
        mf = mf2(hp - 1) if hp >= 1 else []
        nb = OPT["g2m"] if mf else 0
        for m in mf[:nb]: a(m)
        mf = mf[nb:]
        if hp < 16 and (hp & 1) == 0 and u in [int(c) for c in str(OPT['bset'])[1:]]:
            a("s_barrier")
            if u in (0, 4): st()
        extra = pstore(u - 1) if (hp & 1) == 1 and u >= 1 else []
        if extra and hp < OPT["sdel"]:
            held += extra[4:]; extra = extra[:4]
        elif hp >= OPT["sdel"] and held:
            extra = extra[:4] + held + extra[4:]; held = []
        if FSP and hp == OPT["fblk"]:
            issued = (hp - 1)//2 if hp & 1 else (hp - 2)//2
            extra = extra + [f"s_waitcnt vmcnt({issued - FSP})", f"buffer_store_dword v{vNo}, v{vFa}, s[{sS}:{sS+3}], 0 offen sc1"]
        if OPT["g0fast"] and hp == 0:
            for x in side: a(x)
            continue
        if OPT["g0fast"] and hp == 1:
            ex = side + areads(range(OPT["wlate"], 16))
            issued = 0
            for k in range(8):
                a(f"s_waitcnt lgkmcnt({min(15, 7 - k + issued)})")
                a(mf[2*k])
                for x in ex[3*k:3*k+2]: a(x); issued += 1
                a(mf[2*k+1])
                for x in ex[3*k+2:3*k+3]: a(x); issued += 1
            a("s_waitcnt lgkmcnt(0)")
            continue
        if hp == 1: extra = areads(range(OPT["wlate"], 16))
        rp = OPT["g2per"]
        mix(a, mf[:8//rp], side, per=rp)
        rest = mf[8//rp:]
        mix(a, rest, extra, per=max(1, -(-len(extra)//max(1, len(rest)))))
        a("s_waitcnt lgkmcnt(0)")
    st()
    sPend = 41
    HB = 32; SUM = AC[1]
    a(f"""s_waitcnt vmcnt({1 if FSP and OPT['fblk'] >= 15 else 0})
    buffer_store_dword v{vNo}, v{vFb}, s[{sS}:{sS+3}], 0 offen sc1
    s_mov_b32 s{sPend}, 0x7f
    s_mov_b32 s{sCnt}, 0
    s_mov_b32 s42, 0xffff0000""")
    if OPT["psl"]: a(f"s_sleep {OPT['psl']}")
    if OPT["pg"]:
        a(f"buffer_load_dword v{vT}, v{vF2}, s[{sS}:{sS+3}], 0 offen sc1")
        a("s_branch L_poll2w")
        page("F", fall=False)
    a(f"""L_poll2:
    buffer_load_dword v{vT}, v{vF2}, s[{sS}:{sS+3}], 0 offen sc1
    L_poll2w:
    s_add_u32 s{sCnt}, s{sCnt}, 1
    s_waitcnt vmcnt(0)
    v_cmp_eq_u32 vcc, s{sN}, v{vT}
    s_nop 1
    s_and_b32 s{sT2}, vcc_lo, s{sPend}
    s_andn2_b32 s{sPend}, s{sPend}, s{sT2}""")
    for u in range(7):
        l = L()
        a(f"""s_bitcmp1_b32 s{sT2}, {u}
        s_cbranch_scc0 {l}
        s_add_u32 s{sT0}, s{sJ}, {7-u}
        s_and_b32 s{sT0}, s{sT0}, 7
        s_lshl_b32 s{sT0}, s{sT0}, 12
        buffer_load_dwordx4 {vr(HB+4*u,4)}, v{vPo}, s[{sS}:{sS+3}], s{sT0} offen sc1""")
        a(f"{l}:")
    a(f"""s_cmp_gt_u32 s{sCnt}, {OPT['spin']}
    s_cbranch_scc1 L_p2go
    s_cmp_lg_u32 s{sPend}, 0
    s_cbranch_scc1 L_poll2
    L_p2go:""")
    st()
    a("s_waitcnt vmcnt(0)")
    for u in range(7):
        for d in range(4):
            x = HB + 4*u + d
            a(f"v_lshlrev_b32 v{vT+2*(d&1)}, 16, v{x}")
            a(f"v_and_b32 v{vT+2*(d&1)+1}, s42, v{x}")
            a(f"v_pk_add_f32 {vr(SUM+2*d,2)}, {vr(SUM+2*d,2)}, {vr(vT+2*(d&1),2)}")
    for d in range(4):
        a(f"v_cvt_pk_bf16_f32 v{HB+d}, v{SUM+2*d}, v{SUM+2*d+1}")
    a(f"buffer_store_dwordx2 {vr(HB,2)}, v{vOut}, s[{sY}:{sY+3}], 0 offen {OPT['outf']}")
    a(f"buffer_store_dwordx2 {vr(HB+2,2)}, v{vOut}, s[{sY}:{sY+3}], 0 offen offset:32 {OPT['outf']}")
    a("L_done:")
    st.dump(0, sWv, 48, vT)
    a("L_end:")
    a("s_endpgm")
    a("L_codeend:")

def main(out):
    a = Asm(); gen(a)
    t = HDR
    t += f"; @launch grid=(256,1,1) block=(448,1,1) lds=163840\n"
    t += '.amdgcn_target "amdgcn-amd-amdhsa--gfx950"\n.text\n'
    t += f".globl {KN}\n.p2align {12 if OPT['pg'] else 8}\n.p2align 8\n.type {KN},@function\n{KN}:\n" + a.text()
    t += '.section .rodata,"a"\n.p2align 6\n' + kd(KN, 256, 102 if OPT["stamp"] else 64)
    open(out, "w").write(t)

if __name__ == "__main__":
    for kv in sys.argv[2:]:
        k, v = kv.split("=")
        OPT[k] = int(v) if v.lstrip("-").isdigit() else v.replace("_", " ")
    main(sys.argv[1])
```

```python
import sys, math, struct
from gen2 import Asm, vr, HDR, kd, srd, X_BYTES, KV_BYTES, W_BYTES, O_BYTES
import gen2
OPT = gen2.OPT
OPT.update(dict(stamp=False, ntx="", ntw="", ntkv="", ntwo="", kvc='x24682468', rot=1, xrot=1, la=2,
                spin=400000, cpf=1, woq=4, kvspread=0, kvend=5, pre8=1, sigm=0, bset='x01234567', osched='x345678', fsplit=6, fblk=16, fpos=1, p1mask=0, pollb4=0, hprio=0, cprio=0, g0fast=0, g2m=2, g2per=1, sdel=0, pg=1, stub=1, rper=2, imaj=1, prio=3, pw=28, head=0, cpfw=6, cpfe=1, ppos=99, ftouch=18, pvm=1, psum=1, wflag=1, wo9=4, wlate=12, tf='sc1', outf='', psl=0, f1full=1, fast=0, old='sc1', wbl=0))
Stamper = gen2.Stamper
KN = "standalone__mha_block_cached__near_ridge_kernel"

SLOT = 28672; NSLOT = 4
KBASE = SLOT*NSLOT; VBASE = KBASE + 24576
QX = 11*8192
WOBLK = [7,8,9,10, 0,1,2,3,4,5,6,14, 16,17,18,19]
def OREG(u): return u*16384
P_OFF = 0x800000
F1_OFF = 0x1000000; E_OFF = 0x1080000; F2_OFF = 0x1100000; WS_USED = 0x1200000
FS = 7
CNT = 131072

DESC = '; ---------------------------------------------------------------------------------------------\n; ---------------------------------------------------------------------------------------------\n'

def mix(a, main, side, per=2, lead=True):
    main = list(main); side = list(side)
    while main or side:
        if not lead and main: a(main.pop(0))
        for _ in range(per):
            if side: a(side.pop(0))
        if lead and main: a(main.pop(0))

def gen(a):
    sX, sK, sV, sW, sS, sD, sY = 8, 12, 16, 20, 24, 52, 56
    sH, sP, sWv, sB, sDH = 28, 29, 30, 31, 32
    sT0, sT1, sT2 = 33, 34, 35
    sOW, sOX, sKV, sCls, sC, sJ = 36, 37, 38, 39, 50, 51
    sN, sTA, sTB, sCnt = 3, 6, 7, 37
    vL, vG, vC, vT = 1, 2, 3, 4
    lab = [0]
    def L():
        lab[0] += 1; return f"L{lab[0]}"
    def page(name, fall=True):
        if not OPT["pg"]: return
        if fall: a(f"s_branch L_pg{name}")
        a(".p2align 12")
        a(f"L_stub{name}:")
        a("s_setpc_b64 s[4:5]")
        a(f"L_pg{name}:")
    a("s_cmp_ge_u32 s2, 256")
    a("s_cbranch_scc1 L_end")
    st = Stamper(a, 62); st()
    a(f"""s_load_dwordx8 s[40:47], s[0:1], 0
    s_load_dwordx4 s[4:7], s[0:1], 32
    s_load_dwordx2 s[60:61], s[0:1], 48
    s_load_dwordx2 s[48:49], s[0:1], 56
    v_lshrrev_b32 v{vT}, 6, v0
    v_and_b32 v{vL}, 63, v0
    v_readfirstlane_b32 s{sWv}, v{vT}
    v_lshrrev_b32 v{vG}, 4, v{vL}
    v_and_b32 v{vC}, 15, v{vL}
    s_and_b32 s{sT0}, s2, 7
    s_lshl_b32 s{sT0}, s{sT0}, 2
    s_bfe_u32 s{sT1}, s2, 0x20003
    s_add_u32 s{sH}, s{sT0}, s{sT1}
    s_lshr_b32 s{sP}, s2, 5""")
    def cpf(skip):
        a(f"""s_cmp_lg_u32 s{sWv}, {OPT['cpfw']}
        s_cbranch_scc1 {skip}
        s_getpc_b64 s[{sY}:{sY+1}]
        L_pcref:
        s_bfe_u32 s{sT0}, s2, 0x30003
        s_mul_i32 s{sT0}, s{sT0}, 24
        v_min_u32 v{vT}, 23, v{vL}
        v_add_u32 v{vT}, s{sT0}, v{vT}
        v_lshlrev_b32 v{vT}, 7, v{vT}
        v_min_u32 v{vT}, L_codeend-L_pcref-4, v{vT}
        global_load_dword v31, v{vT}, s[{sY}:{sY+1}]""")
    if OPT["cpfe"]:
        a(f"""s_cmp_eq_u32 s{sWv}, 4
        s_cbranch_scc1 L_prod""")
        cpf("L_notprod")
        a("s_branch L_notprod")
        a("L_prod:")
    else:
        a(f"""s_cmp_lg_u32 s{sWv}, 4
        s_cbranch_scc1 L_notprod""")
    kvs = [int(c) for c in str(OPT["kvc"])[1:]]
    def set_cls():
        a(f"""s_lshl_b32 s{sT0}, s{sP}, 2
        s_lshr_b32 s{sCls}, {sum(k << (4*i) for i, k in enumerate(kvs))}, s{sT0}
        s_and_b32 s{sCls}, s{sCls}, 0xf""")

    def get_nonce(vreg):
        l0, l1 = L(), L()
        a(f"s_waitcnt lgkmcnt(0)")
        a(f"s_mov_b32 s{sCnt}, 0")
        a(f"{l0}:")
        a(f"""s_cmp_lg_u32 s{sN}, 0
        s_cbranch_scc1 {l1}
        s_cmp_gt_u32 s{sCnt}, {OPT['spin']}
        s_cbranch_scc1 {l1}
        buffer_load_dword v{vreg}, off, s[{sD}:{sD+3}], 0 sc1
        s_add_u32 s{sCnt}, s{sCnt}, 1
        s_waitcnt vmcnt(0)
        v_readfirstlane_b32 s{sN}, v{vreg}
        s_nop 0
        s_branch {l0}""")
        a(f"{l1}:")
    def decode_tile():
        a(f"""s_lshr_b32 s{sT0}, s2, 3
        s_mul_i32 s{sTA}, s{sT0}, 52
        s_lshr_b32 s{sTA}, s{sTA}, 8
        s_mul_i32 s{sTB}, s{sTA}, 5
        s_sub_u32 s{sTB}, s{sT0}, s{sTB}
        s_and_b32 s{sJ}, s2, 7""")

    if OPT["prio"]: a(f"s_setprio {OPT['prio']}")
    vW, vX, vK, vV = 12, 16, 20, 24
    if OPT["rot"] == 1:
        a(f"""s_mul_i32 s{sT0}, s{sT1}, 5
        s_add_u32 s{sT0}, s{sT0}, 1
        s_lshr_b32 s{sT0}, s{sT0}, 1
        s_add_u32 s{sT2}, s{sT0}, s{sP}""")
    elif OPT["rot"] >= 2:
        R = OPT["rot"]
        tab = [round(10*i/R) % 10 for i in range(R)]
        lut = sum(tab[(x % R)] << (4*x) for x in range(11))
        a(f"""s_add_u32 s{sT0}, s{sT1}, s{sP}
        s_lshl_b32 s{sT0}, s{sT0}, 2
        s_mov_b32 s36, {lut & 0xffffffff}
        s_mov_b32 s37, {lut >> 32}
        s_lshr_b64 s[36:37], s[36:37], s{sT0}
        s_and_b32 s{sT2}, s36, 15""")
    else:
        a(f"s_mov_b32 s{sT2}, 0")
    if OPT["xrot"]:
        a(f"""s_and_b32 s{sT0}, s2, 7
        s_add_u32 s{sT2}, s{sT2}, s{sT0}
        s_cmp_ge_u32 s{sT2}, 10
        s_cselect_b32 s{sT0}, 10, 0
        s_sub_u32 s{sT2}, s{sT2}, s{sT0}""")
    if OPT["rot"] == 1:
        a(f"""s_cmp_ge_u32 s{sT2}, 10
        s_cselect_b32 s{sT0}, 10, 0
        s_sub_u32 s{sT2}, s{sT2}, s{sT0}""")
    a(f"""s_lshl_b32 s{sOW}, s{sT2}, 19
    s_lshl_b32 s{sOX}, s{sT2}, 7
    s_lshl_b32 s{sT0}, s{sH}, 8
    v_lshlrev_b32 v{vT}, 1, v{vG}
    v_xor_b32 v{vT}, v{vT}, v{vC}
    v_lshlrev_b32 v{vT}, 4, v{vT}
    v_lshl_add_u32 v{vW}, v{vG}, 13, v{vT}
    v_add_u32 v{vW}, s{sT0}, v{vW}
    v_add_u32 v{vW+1}, {4*8192 - 1024}, v{vW}
    v_xor_b32 v{vW+2}, 0x80, v{vW}
    v_add_u32 v{vW+3}, {12*8192 - 3072}, v{vW+2}
    v_add_u32 v{vW+2}, {8*8192 - 2048}, v{vW+2}
    s_mul_i32 s{sT0}, s{sP}, {96*1280}
    v_lshrrev_b32 v{vT+1}, 3, v{vL}
    v_and_b32 v{vT+2}, 7, v{vL}
    v_xor_b32 v{vT+2}, v{vT+2}, v{vT+1}
    v_lshlrev_b32 v{vT+2}, 4, v{vT+2}
    v_mul_u32_u24 v{vX}, 1280, v{vT+1}
    v_add3_u32 v{vX}, v{vX}, v{vT+2}, s{sT0}
    v_add_u32 v{vX+1}, {8*1280 - 1024}, v{vX}
    v_add_u32 v{vX+2}, {16*1280 - 2048}, v{vX}
    v_add_u32 v{vX+3}, {24*1280 - 3072}, v{vX}
    s_waitcnt lgkmcnt(0)""")
    srd(a, sW, 46, W_BYTES); srd(a, sX, 40, X_BYTES)
    sSlot, sI = 31, 32
    H = OPT["head"]
    def ggroup(gi):
        if gi < 4:
            a(f"s_add_u32 m0, s{sSlot}, {12288 + gi*4096}")
            a(f"s_add_u32 s{sT0}, s{sOW}, {gi*16*8192}")
            for i in range(4):
                a(f"buffer_load_dwordx4 v{vW+i}, s[{sW}:{sW+3}], s{sT0} offen offset:{i*1024} {OPT['ntw']} lds")
        else:
            a(f"s_add_u32 m0, s{sSlot}, {(gi-4)*4096}")
            a(f"s_add_u32 s{sT0}, s{sOX}, {(gi-4)*32*1280}")
            for i in range(4):
                a(f"buffer_load_dwordx4 v{vX+i}, s[{sX}:{sX+3}], s{sT0} offen offset:{i*1024} {OPT['ntx']} lds")
    def ghead():
        for gi in range(H): ggroup(gi)
    def gtail():
        for gi in range(H, 7): ggroup(gi)
        a(f"""s_add_u32 s{sOW}, s{sOW}, {64*8192}
        s_add_u32 s{sOX}, s{sOX}, 128
        s_cmp_ge_u32 s{sOX}, 1280
        s_cselect_b32 s{sOW}, 0, s{sOW}
        s_cselect_b32 s{sOX}, 0, s{sOX}
        s_add_u32 s{sSlot}, s{sSlot}, {SLOT}
        s_cmp_ge_u32 s{sSlot}, {NSLOT*SLOT}
        s_cselect_b32 s{sSlot}, 0, s{sSlot}
        s_add_u32 s{sI}, s{sI}, 1""")
    a(f"""s_mov_b32 s{sSlot}, 0
    s_mov_b32 s{sI}, 0""")
    ghead(); gtail()
    srd(a, sK, 42, KV_BYTES); srd(a, sV, 44, KV_BYTES)
    a(f"""s_lshl_b32 s{sKV}, s{sP}, 6
    s_add_u32 s{sKV}, s{sKV}, s{sH}
    s_mul_i32 s{sKV}, s{sKV}, 12288
    v_xor_b32 v{vT+1}, v{vC}, v{vG}
    v_lshlrev_b32 v{vT+1}, 4, v{vT+1}
    v_lshl_add_u32 v{vK}, v{vG}, 8, v{vT+1}
    v_xor_b32 v{vK+1}, 64, v{vK}
    v_xor_b32 v{vK+2}, 128, v{vK}
    v_xor_b32 v{vK+3}, 192, v{vK}
    v_lshl_add_u32 v{vV}, v{vG}, 8, v{vT}
    v_xor_b32 v{vV+1}, 128, v{vV}""")
    set_cls()
    sWo = 56
    vW2, vO, vF = 28, 32, 36
    sR2, sRho, sSig, sSplit, sRdy = 50, 40, 41, 42, 44
    srd(a, sWo, 4, W_BYTES); srd(a, sS, 48, WS_USED); srd(a, sD, 60, 256)
    a("s_mov_b64 s[46:47], s[6:7]")
    decode_tile()
    if OPT["wflag"]:
        pollvec = f"""s_lshl_b32 s{sT0}, s{sTA}, 8
        s_lshl_b32 s{sT1}, s{sJ}, 2
        s_add_u32 s{sT0}, s{sT0}, s{sT1}
        v_bfe_u32 v{vF}, v{vL}, 2, 3
        v_and_b32 v{vF+2}, 3, v{vL}
        v_lshl_add_u32 v{vF}, v{vF}, 5, v{vF+2}
        v_add_u32 v{vF}, s{sT0}, v{vF}
        v_lshlrev_b32 v{vF}, {FS}, v{vF}"""
    else:
        pollvec = f"""s_lshl_b32 s{sT0}, s{sT0}, 5
        s_add_u32 s{sT0}, s{sT0}, s{sJ}
        v_and_b32 v{vF}, 7, v{vL}
        v_lshl_add_u32 v{vF}, v{vF}, 3, s{sT0}
        v_lshlrev_b32 v{vF}, {FS}, v{vF}"""
    a(f"""s_mul_i32 s{sT0}, s{sJ}, {512*1280}
    s_lshl_b32 s{sT1}, s{sTB}, 8
    s_add_u32 s{sT0}, s{sT0}, s{sT1}
    v_mul_u32_u24 v{vW2}, 1280, v{vG}
    v_add3_u32 v{vW2}, v{vW2}, v{vT}, s{sT0}
    v_xor_b32 v{vW2+1}, 0x80, v{vW2}
    v_add_u32 v{vW2+2}, {8*1280 - 2048}, v{vW2}
    v_add_u32 v{vW2+3}, {12*1280 - 3072}, v{vW2+1}
    v_add_u32 v{vW2+1}, {4*1280 - 1024}, v{vW2+1}
    s_lshl_b32 s{sT0}, s{sTA}, 10
    s_lshl_b32 s{sT1}, s{sJ}, 4
    s_add_u32 s{sT0}, s{sT0}, s{sT1}
    s_lshl_b32 s{sT0}, s{sT0}, 10
    v_lshlrev_b32 v{vO}, 4, v{vL}
    v_add_u32 v{vO}, s{sT0}, v{vO}
    s_mul_i32 s{sT0}, s{sTA}, 43
    s_lshr_b32 s{sT0}, s{sT0}, 5
    s_mul_i32 s{sSplit}, s{sT0}, 6
    s_add_u32 s{sSplit}, s{sSplit}, 6
    s_lshl_b32 s{sT1}, s{sTA}, 3
    s_sub_u32 s{sSplit}, s{sSplit}, s{sT1}
    {pollvec}
    s_and_b32 s{sRho}, s{sTA}, 3
    s_lshl_b32 s{sR2}, s{sRho}, 2
    s_lshl_b32 s{sRho}, s{sRho}, 12
    s_add_u32 s{sSig}, s{sJ}, 1
    s_and_b32 s{sSig}, s{sSig}, 7
    s_mov_b32 s{sRdy}, 0""")
    def issueWo(t):
        a(f"s_mul_i32 s{sT1}, s{sR2}, {32*1280}")
        for jj in range(2):
            a(f"s_mov_b32 m0, {WOBLK[t]*8192 + jj*4096}")
            a(f"s_add_u32 s{sT0}, s{sT1}, {jj*16*1280}")
            for i in range(4):
                a(f"buffer_load_dwordx4 v{vW2+i}, s[{sWo}:{sWo+3}], s{sT0} offen offset:{i*1024} {OPT['ntwo']} lds")
        a(f"""s_add_u32 s{sR2}, s{sR2}, 1
        s_and_b32 s{sR2}, s{sR2}, 15""")
    def issueO(u):
        l1 = L()
        if OPT["wflag"]:
            a(f"""s_lshl_b32 s{sT1}, s{sSig}, 2
            s_lshl_b32 s{sT2}, 0xf, s{sT1}""")
        else:
            a(f"""s_cmp_lt_u32 s{sSig}, s{sSplit}
            s_cselect_b32 s{sT2}, 0xf, 0xf0""")
        a(f"""s_andn2_b32 s{sT1}, s{sT2}, s{sRdy}
        s_cbranch_scc0 {l1}
        s_call_b64 s[4:5], L_poll1""")
        a(f"{l1}:")
        a(f"s_lshl_b32 s{sT1}, s{sSig}, 17")
        for G in range(4):
            a(f"s_mov_b32 m0, {OREG(u) + G*4096}")
            a(f"s_add_u32 s{sT0}, s{sT1}, s{sRho}")
            for i in range(4):
                a(f"buffer_load_dwordx4 v{vO}, s[{sS}:{sS+3}], s{sT0} offen offset:{i*1024} sc1 lds")
            a(f"""s_add_u32 s{sRho}, s{sRho}, 4096
            s_and_b32 s{sRho}, s{sRho}, 0x3fff""")
        a(f"""s_add_u32 s{sSig}, s{sSig}, 1
        s_and_b32 s{sSig}, s{sSig}, 7""")
    kvgroups = [(base, s_, vreg, nv, b, jj) for (base, s_, vreg, nv) in ((KBASE, sK, vK, 4), (VBASE, sV, vV, 2)) for b in range(2) for jj in range(3)]
    def kvgroup(gi):
        base, s_, vreg, nv, b, jj = kvgroups[gi]
        a(f"s_mov_b32 m0, {base + b*12288 + jj*4096}")
        a(f"s_add_u32 s{sT0}, s{sKV}, {b*32*12288 + jj*4096}")
        for i in range(4):
            a(f"buffer_load_dwordx4 v{vreg + i % nv}, s[{s_}:{s_+3}], s{sT0} offen offset:{i*1024} {OPT['ntkv']} lds")
    st()
    a("s_branch L_ghead0")
    a("L_gissue:")
    gtail()
    a(f"""s_cmp_eq_u32 s{sI}, 10
    s_cbranch_scc1 L_pdone
    L_ghead0:""")
    ghead()
    a(f"""s_cmp_eq_u32 s{sI}, 1
    s_cbranch_scc1 L_gissue
    s_sub_u32 s{sT0}, s{sI}, s{sCls}
    s_cmp_eq_u32 s{sT0}, 1
    s_cbranch_scc1 L_kvwait
    s_waitcnt vmcnt({28 + 4*H})
    s_barrier
    s_cmp_lg_u32 s{sI}, s{sCls}
    s_cbranch_scc1 L_gissue""")
    if OPT["ftouch"] & 1:
        a(f"""s_mov_b32 s{sT0}, {F1_OFF}
        buffer_load_dword v{vF+3}, v{vF}, s[{sS}:{sS+3}], s{sT0} offen {OPT['tf']}""")
    if OPT["ftouch"] & 2:
        a(f"""s_lshl_b32 s{sT0}, s2, {5+FS}
        s_add_u32 s{sT0}, s{sT0}, {F2_OFF}
        v_and_b32 v40, 31, v{vL}
        v_lshlrev_b32 v40, {FS}, v40
        buffer_load_dword v41, v40, s[{sS}:{sS+3}], s{sT0} offen {OPT['tf']}""")
    if OPT["ftouch"] & 16:
        a(f"""s_mul_i32 s{sT0}, s{sP}, {6*32}
        s_add_u32 s{sT0}, s{sT0}, s{sH}
        s_lshl_b32 s{sT0}, s{sT0}, {FS}
        s_add_u32 s{sT0}, s{sT0}, {F1_OFF}
        v_min_u32 v40, 5, v{vL}
        v_lshlrev_b32 v40, {5+FS}, v40
        buffer_load_dword v41, v40, s[{sS}:{sS+3}], s{sT0} offen {OPT['tf']}""")
    if OPT["ftouch"] & 32:
        a(f"""s_lshl_b32 s{sT0}, s2, {5+FS}
        s_add_u32 s{sT0}, s{sT0}, {F2_OFF + (7 << FS)}
        buffer_load_dword v41, off, s[{sS}:{sS+3}], s{sT0} {OPT['tf']}""")
    if OPT["ftouch"] & 4:
        a(f"""s_mul_i32 s{sT0}, s{sP}, 6
        s_lshl_b32 s{sT0}, s{sT0}, 7
        s_lshl_b32 s{sT1}, s{sH}, 2
        s_add_u32 s{sT0}, s{sT0}, s{sT1}
        s_lshl_b32 s{sT0}, s{sT0}, 10
        v_min_u32 v40, 5, v{vL}
        v_lshlrev_b32 v40, 17, v40
        buffer_load_dword v41, v40, s[{sS}:{sS+3}], s{sT0} offen {OPT['tf']}
        v_and_b32 v40, 7, v{vL}
        v_lshlrev_b32 v42, 17, v40
        s_lshl_b32 s{sT0}, s{sTA}, 20
        s_lshl_b32 s{sT1}, s{sJ}, 14
        s_add_u32 s{sT0}, s{sT0}, s{sT1}
        buffer_load_dword v41, v42, s[{sS}:{sS+3}], s{sT0} offen {OPT['tf']}
        v_lshlrev_b32 v42, 15, v40
        s_andn2_b32 s{sT0}, s2, 7
        s_lshl_b32 s{sT0}, s{sT0}, 3
        s_add_u32 s{sT0}, s{sT0}, s{sJ}
        s_lshl_b32 s{sT0}, s{sT0}, 12
        s_add_u32 s{sT0}, s{sT0}, {P_OFF}
        buffer_load_dword v41, v42, s[{sS}:{sS+3}], s{sT0} offen {OPT['tf']}""")
    if OPT["ftouch"] & 8:
        a(f"""v_and_b32 v40, 7, v{vL}
        v_mul_u32_u24 v42, {64*1280}, v40
        s_mul_i32 s{sT0}, s{sJ}, {512*1280}
        buffer_load_dword v41, v42, s[{sWo}:{sWo+3}], s{sT0} offen
        s_mul_i32 s{sT0}, s{sP}, {96*1280}
        v_mov_b32 v42, s{sT0}
        global_load_dword v41, v42, s[46:47]""")
    for gi in range(12): kvgroup(gi)
    a(f"""s_waitcnt vmcnt({min(63, 48 + 4*H)})
    s_barrier
    s_branch L_gissue
    L_kvwait:
    s_waitcnt vmcnt(52)
    s_barrier
    s_waitcnt vmcnt(28)
    s_barrier
    s_branch L_gissue
    L_pdone:
    s_waitcnt vmcnt(28)
    s_barrier""")
    st.n = 5
    a(f"s_load_dword s{sN}, s[60:61], 0")
    a("s_cmp_ge_u32 s2, 240")
    a("s_cbranch_scc1 L_prod_notile")
    for t in range(0, 4): issueWo(t)
    a(f"s_waitcnt vmcnt(32)")
    if OPT["ftouch"] & 64:
        a(f"""s_lshl_b32 s{sT0}, s2, {5+FS}
        s_add_u32 s{sT0}, s{sT0}, {F2_OFF}
        v_and_b32 v40, 31, v{vL}
        v_lshlrev_b32 v40, {FS}, v40""")
    a("s_barrier")
    st()
    if OPT["ftouch"] & 64:
        a(f"buffer_load_dword v41, v40, s[{sS}:{sS+3}], s{sT0} offen {OPT['tf']}")
    for t in range(4, OPT["wo9"]): issueWo(t)
    get_nonce(vF+1)
    a("s_barrier")
    st()
    for t in range(OPT["wo9"], OPT["woq"]): issueWo(t)
    st()
    page("B")
    a("s_barrier")
    st()
    pollK = f"""s_mov_b32 s{sT0}, {F1_OFF}
    buffer_load_dword v{vF+3}, v{vF}, s[{sS}:{sS+3}], s{sT0} offen sc1"""
    pp = OPT["ppos"]
    for t in range(OPT["woq"], OPT["wlate"]):
        if t == pp: a(pollK)
        issueWo(t)
    if pp == OPT["wlate"]: a(pollK)
    a(f"s_waitcnt vmcnt({1 if pp == OPT['wlate'] else 0})")
    a("s_barrier")
    st()
    if pp > OPT["wlate"]: a(pollK)
    for t in range(OPT["wlate"], 16): issueWo(t)
    a("s_barrier")
    a(f"""s_waitcnt vmcnt({8*(16 - OPT["wlate"])})
    v_cmp_eq_u32 s[{sRdy}:{sRdy+1}], s{sN}, v{vF+3}
    s_nop 1""")
    issueO(0)
    n0 = st.n; st.n = 12; st(); st.n = n0
    bset = [int(c) for c in str(OPT["bset"])[1:]]
    sched = [int(c) for c in str(OPT["osched"])[1:]]
    nxo = 1
    for bi, u in enumerate(bset):
        tgt = sched[bi] if bi < len(sched) else 8
        while nxo < tgt: issueO(nxo); nxo += 1
        lastneeded = (bset[bi+1] - 1) if bi + 1 < len(bset) else 7
        assert lastneeded < nxo
        a(f"s_waitcnt vmcnt({min(63, 16*(nxo - 1 - lastneeded))})")
        a("s_barrier")
        if u in (0, 4): st()
    a("s_branch L_done")
    a("L_prod_notile:")
    a(f"""s_waitcnt vmcnt(0)
    s_barrier
    s_branch L_done""")
    a("L_poll1:")
    a(f"""s_mov_b32 s{sCnt}, 0
    s_mov_b32 s{sT0}, {F1_OFF}
    L_poll1_loop:
    buffer_load_dword v{vF+3}, v{vF}, s[{sS}:{sS+3}], s{sT0} offen sc1
    s_add_u32 s{sCnt}, s{sCnt}, 1
    s_waitcnt vmcnt(0)
    v_cmp_eq_u32 s[{sRdy}:{sRdy+1}], s{sN}, v{vF+3}
    s_cmp_gt_u32 s{sCnt}, {OPT['spin']}
    s_cbranch_scc1 L_poll1_end
    s_andn2_b32 s{sT1}, s{sT2}, s{sRdy}
    s_cbranch_scc1 L_poll1_loop
    L_poll1_end:
    s_setpc_b64 s[4:5]""")

    page("C", fall=False)
    a("L_notprod:")
    vRB = 12; vRA = 16
    vQW, vQR, vKR, vVR, vOo, vNo, vTR = 24, 25, 26, 27, 28, 29, 30
    ACC = 32; FA = [80, 108]
    def acc(tt, i): return ACC + (tt*3 + i)*4
    if not OPT["cpfe"]: cpf("L_nocpf"); a("L_nocpf:")
    a("s_waitcnt lgkmcnt(0)")
    srd(a, sS, 48, WS_USED); srd(a, sD, 60, 256); srd(a, sY, 6, X_BYTES)
    a(f"""s_lshl_b32 s{sT0}, s2, 3
    s_add_u32 s{sT0}, s{sT0}, s{sWv}
    s_cmp_lg_u32 s{sT0}, 5
    s_cbranch_scc1 L_nononce
    s_mov_b32 s{sT0}, {E_OFF}
    buffer_load_dword v{vT}, off, s[{sS}:{sS+3}], s{sT0} sc1
    s_mov_b32 s{sT1}, 0x9e3779b1
    s_waitcnt vmcnt(0)
    v_mul_lo_u32 v{vT}, v{vT}, s{sT1}
    v_add_u32 v{vT}, 0x7f4a7c15, v{vT}
    v_max_u32 v{vT}, 1, v{vT}
    s_mov_b64 exec, 1
    buffer_store_dword v{vT}, off, s[{sD}:{sD+3}], 0 sc1
    buffer_store_dword v{vT}, off, s[{sS}:{sS+3}], s{sT0} sc1
    s_mov_b64 exec, -1
    L_nononce:""")
    a(f"""s_cmp_gt_u32 s{sWv}, 4
    s_cselect_b32 s{sT0}, 1, 0
    s_sub_u32 s{sJ}, s{sWv}, s{sT0}
    s_lshl_b32 s{sT0}, s{sJ}, 12
    s_add_u32 s{sT0}, s{sT0}, {QX}
    v_lshlrev_b32 v{vOo}, 4, v{vL}
    v_add_u32 v{vQR}, s{sT0}, v{vOo}
    s_cmp_ge_u32 s{sJ}, 3
    s_cselect_b32 s{sT2}, 12288, 0
    v_lshrrev_b32 v{vT}, 1, v{vG}
    v_xor_b32 v{vT}, v{vT}, v{vC}
    v_lshlrev_b32 v{vT}, 4, v{vT}
    v_lshl_add_u32 v{vT}, v{vC}, 8, v{vT}
    v_and_b32 v{vT+1}, 1, v{vG}
    v_lshl_add_u32 v{vT}, v{vT+1}, 3, v{vT}
    s_add_u32 s{sT0}, s{sT2}, {KBASE}
    v_add_u32 v{vKR}, s{sT0}, v{vT}
    v_lshrrev_b32 v{vT}, 2, v{vC}
    v_lshl_add_u32 v{vT}, v{vG}, 2, v{vT}
    v_and_b32 v{vT+1}, 7, v{vT}
    v_lshlrev_b32 v{vT+1}, 5, v{vT+1}
    v_lshl_add_u32 v{vT}, v{vT}, 8, v{vT+1}
    v_and_b32 v{vT+1}, 3, v{vC}
    v_lshl_add_u32 v{vTR}, v{vT+1}, 3, v{vT}
    s_add_u32 s{sT0}, s{sT2}, {VBASE}
    v_add_u32 v{vVR}, s{sT0}, v{vTR}
    s_lshr_b32 s{sB}, s{sWv}, 1
    s_and_b32 s{sDH}, s{sWv}, 1
    s_mul_i32 s{sT0}, s{sB}, 12288
    s_lshl_b32 s{sT1}, s{sDH}, 11
    s_add_u32 s{sT0}, s{sT0}, s{sT1}
    s_add_u32 s{sT0}, s{sT0}, {QX}
    v_add_u32 v{vQW}, s{sT0}, v{vOo}
    s_mul_i32 s{sT0}, s{sP}, 6
    s_add_u32 s{sT0}, s{sT0}, s{sJ}
    s_lshl_b32 s{sT0}, s{sT0}, 7
    s_lshl_b32 s{sT1}, s{sH}, 2
    s_add_u32 s{sT0}, s{sT0}, s{sT1}
    s_lshl_b32 s{sKV}, s{sT0}, {FS-2}
    s_add_u32 s{sKV}, s{sKV}, {F1_OFF}
    s_lshl_b32 s{sT0}, s{sT0}, 10
    v_add_u32 v{vOo}, s{sT0}, v{vOo}""")
    c = (128 ** -0.5) * math.log2(math.e)
    cb = struct.unpack('<I', struct.pack('<f', c))[0]
    a(f"s_mov_b32 s{sC}, {cb:#x}")
    a(f"s_mov_b32 s{sC+1}, {cb:#x}")
    set_cls()
    a(f"s_cmp_lt_u32 s{sWv}, 4")
    a("s_cbranch_scc1 L_cons")
    KF, VF = 136, 184
    def k_reads():
        r = []
        for T in range(4):
            for hf in range(2):
                tmp = vT + ((2*T+hf) & 3)
                r.append(f"v_xor_b32 v{tmp}, {64*T + 32*hf}, v{vKR}")
                for kt in range(3):
                    r.append(f"ds_read_b64 {vr(KF+(kt*4+T)*4+2*hf,2)}, v{tmp} offset:{kt*4096}")
        return r
    def v_reads():
        r = []
        for t in range(8):
            tmp = vT + 4 + (t & 3)
            r.append(f"v_xor_b32 v{tmp}, {32*t}, v{vVR}")
            for q in range(3):
                r.append(f"ds_read_b64_tr_b16 {vr(VF+t*6+2*q,2)}, v{tmp} offset:{q*4096}")
        return r
    def kvcall(kk):
        if kk in kvs:
            l = L()
            a(f"s_cmp_lg_u32 s{sCls}, {kk}")
            a(f"s_cbranch_scc1 {l}")
            a(f"s_call_b64 s[4:5], L_kvread")
            a(f"{l}:")
    if OPT["hprio"]: a(f"s_setprio {OPT['hprio']}")
    for kk in range(10):
        kvcall(kk)
        if kk == 9: a("s_waitcnt lgkmcnt(0)")
        a("s_barrier")
        if kk == 6: a(f"s_load_dword s{sN}, s[60:61], 0")
        if kk == 0 and OPT["pg"] and OPT["stub"]:
            for nm in "DEFB": a(f"s_call_b64 s[4:5], L_stub{nm}")
    a("s_branch L_qx")
    a("L_kvread:")
    a("s_barrier")
    for x in k_reads(): a(x)
    a("s_barrier")
    for x in v_reads(): a(x)
    a("s_setpc_b64 s[4:5]")
    a("L_cons:")
    if OPT["cprio"]: a(f"s_setprio {OPT['cprio']}")
    a(f"""s_mul_i32 s{sT0}, s{sB}, {48*128}
    v_and_b32 v{vT}, 7, v{vC}
    v_xor_b32 v{vT}, v{vT}, v{vG}
    v_lshlrev_b32 v{vT}, 4, v{vT}
    v_lshl_add_u32 v{vT}, v{vC}, 7, v{vT}
    v_add_u32 v{vRB}, s{sT0}, v{vT}
    v_xor_b32 v{vRB+2}, 64, v{vRB}
    v_add_u32 v{vRB+1}, {2*SLOT}, v{vRB}
    v_add_u32 v{vRB+3}, {2*SLOT}, v{vRB+2}
    v_lshrrev_b32 v{vT}, 2, v{vC}
    v_lshl_add_u32 v{vT+1}, v{vG}, 3, v{vT}
    v_lshlrev_b32 v{vT+1}, 8, v{vT+1}
    v_and_b32 v{vT+2}, 1, v{vG}
    v_lshlrev_b32 v{vT+2}, 3, v{vT+2}
    v_lshl_add_u32 v{vT+2}, v{vT}, 1, v{vT+2}
    v_and_b32 v{vT+3}, 3, v{vC}
    v_lshlrev_b32 v{vT+3}, 3, v{vT+3}
    v_add_u32 v{vT+1}, v{vT+1}, v{vT+3}
    v_add_u32 v{vT+1}, 12288, v{vT+1}
    s_lshl_b32 s{sT0}, s{sDH}, 3
    v_xor_b32 v{vT+2}, s{sT0}, v{vT+2}
    v_lshl_add_u32 v{vRA}, v{vT+2}, 4, v{vT+1}""")
    for tt in range(1, 4):
        a(f"v_xor_b32 v{vRA+2*tt}, {32*tt}, v{vRA}")
    for tt in range(4):
        a(f"v_add_u32 v{vRA+2*tt+1}, {2*SLOT}, v{vRA+2*tt}")
    def reads(kk, sub, fs):
        slot = kk % NSLOT; hi = slot >> 1; so = (slot & 1)*SLOT; F = FA[fs]
        r = [f"ds_read_b128 {vr(F+16,4)}, v{vRB+2*sub+hi} offset:{so}"]
        for tt in range(4):
            for q in range(2):
                r.append(f"ds_read_b64_tr_b16 {vr(F+4*tt+2*q,2)}, v{vRA+2*tt+hi} offset:{so + (32*sub + 4*q)*256}")
        for i in range(1, 3):
            r.append(f"ds_read_b128 {vr(F+16+4*i,4)}, v{vRB+2*sub+hi} offset:{so + i*2048}")
        return r
    def mfmas(fs, first):
        F = FA[fs]; r = []
        for i in range(3):
            for tt in range(4):
                cc = "0" if first else vr(acc(tt,i),4)
                r.append(f"v_mfma_f32_16x16x32_bf16 {vr(acc(tt,i),4)}, {vr(F+4*tt,4)}, {vr(F+16+4*i,4)}, {cc}")
        return r
    st.n = 1; st()
    for kk in range(9):
        if kk == 6: page("D")
        kvcall(kk)
        a("s_barrier")
        if kk in (0, 3, 7): st()
        if kk == 6: a(f"s_load_dword s{sN}, s[60:61], 0")
        mix(a, mfmas(1, False) if kk else [], reads(kk, 0, 0), per=OPT['rper'])
        a("s_waitcnt lgkmcnt(0)")
        mix(a, mfmas(0, kk == 0), reads(kk, 1, 1), per=OPT['rper'])
        a("s_waitcnt lgkmcnt(0)")
    QW = 232
    def qcvt(i):
        r = []
        for T in range(2):
            d = QW + (i*2+T)*4
            for u in range(2):
                s_ = acc(2*T+u, i)
                r.append(f"v_cvt_pk_bf16_f32 v{d+2*u}, v{s_}, v{s_+1}")
                r.append(f"v_cvt_pk_bf16_f32 v{d+2*u+1}, v{s_+2}, v{s_+3}")
            r.append(f"ds_write_b128 v{vQW}, {vr(d,4)} offset:{i*4096 + T*1024}")
        return r
    m0_, m1_ = mfmas(0, False), mfmas(1, False)
    for m in m1_: a(m)
    a("s_barrier")
    st()
    r0, r1 = reads(9, 0, 0), reads(9, 1, 1)
    for x in r0[:9] + r1[:6]: a(x)
    a("s_waitcnt lgkmcnt(6)")
    mix(a, m0_[:4], r1[6:9] + [r0[9], r1[9], r0[10], r1[10]], per=2, lead=False)
    a("s_waitcnt lgkmcnt(4)")
    for m in m1_[:4]: a(m)
    a("s_waitcnt lgkmcnt(2)")
    for m in m0_[4:8] + m1_[4:7]: a(m)
    a("s_waitcnt lgkmcnt(0)")
    mix(a, m1_[7:8] + m0_[8:], qcvt(0), per=2, lead=False)
    mix(a, m1_[8:], qcvt(1)[:6], per=2, lead=True)
    for x in qcvt(1)[6:]: a(x)
    a("s_nop 3")
    for x in qcvt(2): a(x)
    a("L_qx:")
    a("s_waitcnt lgkmcnt(0)")
    a("s_barrier")
    st()
    QF = 56; SA = 32; PF = 44; OA = 80
    for T in range(4):
        a(f"ds_read_b128 {vr(QF+4*T,4)}, v{vQR} offset:{T*1024}")
    for T in range(4):
        a(f"s_waitcnt lgkmcnt({3-T})")
        for kt in range(3):
            cc = "0" if T == 0 else vr(SA+4*kt,4)
            a(f"v_mfma_f32_16x16x32_bf16 {vr(SA+4*kt,4)}, {vr(KF+(kt*4+T)*4,4)}, {vr(QF+4*T,4)}, {cc}")
    if OPT["wflag"]:
        a("s_nop 2")
    else:
        a(f"""v_mov_b32 v{vNo}, 0
        v_mov_b32 v{vQW}, {CNT}
        ds_write_b32 v{vQW}, v{vNo}""")
    M, M2, Ls, L2 = 4, 5, 6, 7
    v = [SA+j for j in range(12)]
    a(f"""s_nop 2
    v_max3_f32 v{M}, v{v[0]}, v{v[1]}, v{v[2]}
    v_max3_f32 v{M2}, v{v[3]}, v{v[4]}, v{v[5]}
    v_max3_f32 v{Ls}, v{v[6]}, v{v[7]}, v{v[8]}
    v_max3_f32 v{L2}, v{v[9]}, v{v[10]}, v{v[11]}
    v_max3_f32 v{M}, v{M}, v{M2}, v{Ls}
    v_max_f32 v{M}, v{M}, v{L2}""")
    for sw in ("v_permlane32_swap_b32", "v_permlane16_swap_b32"):
        a(f"""v_mov_b32 v{M2}, v{M}
        s_nop 1
        {sw} v{M}, v{M2}
        v_max_f32 v{M}, v{M}, v{M2}""")
    a(f"v_mul_f32 v{M}, s{sC}, v{M}")
    for j in range(6):
        a(f"v_pk_fma_f32 {vr(SA+2*j,2)}, {vr(SA+2*j,2)}, s[{sC}:{sC+1}], {vr(M,2)} op_sel_hi:[1,1,0] neg_lo:[0,0,1] neg_hi:[0,0,1]")
    for x in v: a(f"v_exp_f32 v{x}, v{x}")
    a("s_waitcnt lgkmcnt(0)")
    for j in range(6):
        a(f"v_cvt_pk_bf16_f32 v{PF+j}, v{SA+2*j}, v{SA+2*j+1}")
    a(f"v_pk_add_f32 {vr(Ls,2)}, {vr(SA,2)}, {vr(SA+2,2)}")
    pv = [f"v_mfma_f32_16x16x32_bf16 {vr(OA+4*t,4)}, {vr(VF+t*6,4)}, {vr(PF,4)}, 0" for t in range(8)]
    pv += [f"v_mfma_f32_16x16x16_bf16 {vr(OA+4*t,4)}, {vr(VF+t*6+4,2)}, {vr(PF+4,2)}, {vr(OA+4*t,4)}" for t in range(8)]
    sm = [f"v_pk_add_f32 {vr(M,2)}, {vr(SA+4,2)}, {vr(SA+6,2)}",
          f"v_pk_add_f32 {vr(Ls,2)}, {vr(Ls,2)}, {vr(SA+8,2)}",
          f"v_pk_add_f32 {vr(M,2)}, {vr(M,2)}, {vr(SA+10,2)}",
          f"v_pk_add_f32 {vr(Ls,2)}, {vr(Ls,2)}, {vr(M,2)}",
          f"v_add_f32 v{Ls}, v{Ls}, v{L2}",
          f"v_mov_b32 v{L2}, v{Ls}", "s_nop 1",
          f"v_permlane32_swap_b32 v{Ls}, v{L2}",
          f"v_add_f32 v{Ls}, v{Ls}, v{L2}",
          f"v_mov_b32 v{L2}, v{Ls}", "s_nop 1",
          f"v_permlane16_swap_b32 v{Ls}, v{L2}",
          f"v_add_f32 v{Ls}, v{Ls}, v{L2}",
          f"v_rcp_f32 v{Ls}, v{Ls}"]
    def epi(T):
        d = QF + 4*T; r = []
        for u in range(2):
            s_ = OA + 4*(2*T+u)
            r.append(f"v_pk_mul_f32 {vr(s_,2)}, {vr(s_,2)}, {vr(Ls,2)} op_sel_hi:[1,0]")
            r.append(f"v_pk_mul_f32 {vr(s_+2,2)}, {vr(s_+2,2)}, {vr(Ls,2)} op_sel_hi:[1,0]")
        for u in range(2):
            s_ = OA + 4*(2*T+u)
            r.append(f"v_cvt_pk_bf16_f32 v{d+2*u}, v{s_}, v{s_+1}")
            r.append(f"v_cvt_pk_bf16_f32 v{d+2*u+1}, v{s_+2}, v{s_+3}")
        r.append(f"buffer_store_dwordx4 {vr(d,4)}, v{vOo}, s[{sS}:{sS+3}], 0 offen offset:{T*1024} sc1")
        return r
    if OPT["pvm"]:
        pa = pv[0:4] + pv[8:12]; pb = pv[4:8] + pv[12:16]
        mix(a, pa, sm, per=2)
        for m in pb[:4]: a(m)
        a("s_nop 1")
        mix(a, pb[4:], epi(0), per=2)
        for x in epi(1): a(x)
        for x in epi(2): a(x)
        for x in epi(3): a(x)
    else:
        mix(a, pv, sm, per=1)
        a("s_nop 0")
        for T in range(4):
            for x in epi(T): a(x)
    st()
    a("s_barrier")
    get_nonce(vNo)
    if OPT["wflag"]:
        a(f"""v_mov_b32 v{vNo}, s{sN}
        s_mov_b64 exec, 1
        s_waitcnt vmcnt(0)
        buffer_store_dword v{vNo}, off, s[{sS}:{sS+3}], s{sKV} sc1
        s_mov_b64 exec, -1""")
    else:
        a(f"""v_mov_b32 v{vT}, 1
        v_mov_b32 v{vNo}, s{sN}
        v_lshlrev_b32 v31, 2, v{vL}
        s_lshl_b32 s{sT0}, s2, {FS}
        s_add_u32 s{sT0}, s{sT0}, {F1_OFF}
        s_mov_b64 exec, 1
        s_waitcnt vmcnt(0)
        ds_add_rtn_u32 v{vT+1}, v{vQW}, v{vT}
        s_waitcnt lgkmcnt(0)
        v_readfirstlane_b32 s{sT1}, v{vT+1}
        s_mov_b32 exec_lo, {-1 if OPT['f1full'] else 1}
        s_cmp_lg_u32 s{sT1}, 5
        s_cbranch_scc1 L_noflag
        buffer_store_dword v{vNo}, v31, s[{sS}:{sS+3}], s{sT0} offen sc1
        L_noflag:
        s_mov_b64 exec, -1""")
    a(f"""
    s_cmp_ge_u32 s2, 240
    s_cbranch_scc1 L_done
    s_cmp_lt_u32 s{sWv}, 4
    s_cbranch_scc1 L_ph2
    s_barrier
    s_barrier
    s_endpgm
    L_ph2:""")
    st()
    vRA2, vB0, vB1, vB2, vPo, vF2, vPw, vOut, vFa, vFb = 12, 16, 17, 18, 25, 26, 27, 28, 19, 20
    sSig = 40
    AR = 32; BS = [160, 192]; AC = [224, 232]; ST = [240, 244, 248, 252]
    decode_tile()
    a(f"""s_lshl_b32 s{sT0}, s{sWv}, 6
    v_xor_b32 v{vRA2}, s{sT0}, v{vTR}
    v_xor_b32 v{vRA2+2}, 32, v{vRA2}
    v_add_u32 v{vRA2+1}, 0x10000, v{vRA2}
    v_add_u32 v{vRA2+3}, 0x10000, v{vRA2+2}
    v_add_u32 v22, 0x20000, v{vRA2}
    v_add_u32 v23, 0x20000, v{vRA2+2}
    v_lshlrev_b32 v{vB0}, 4, v{vL}
    v_add_u32 v{vB1}, 0x10000, v{vB0}
    v_add_u32 v{vB2}, 0x20000, v{vB0}
    s_add_u32 s{sSig}, s{sJ}, 1
    s_and_b32 s{sSig}, s{sSig}, 7
    s_lshl_b32 s{sSig}, s{sSig}, 15
    s_andn2_b32 s{sT0}, s2, 7
    s_lshl_b32 s{sT0}, s{sT0}, 3
    s_add_u32 s{sT0}, s{sT0}, s{sJ}
    s_lshl_b32 s{sT0}, s{sT0}, 12
    s_lshl_b32 s{sT1}, s{sWv}, 10
    s_add_u32 s{sT0}, s{sT0}, s{sT1}
    s_add_u32 s{sT0}, s{sT0}, {P_OFF}
    v_add_u32 v{vPw}, s{sT0}, v{vB0}
    s_lshl_b32 s{sT0}, s2, 15
    s_add_u32 s{sT0}, s{sT0}, s{sT1}
    s_add_u32 s{sT0}, s{sT0}, {P_OFF}
    v_add_u32 v{vPo}, s{sT0}, v{vB0}
    s_lshl_b32 s{sT0}, s2, 2
    s_add_u32 s{sT0}, s{sT0}, s{sWv}
    s_lshl_b32 s{sT0}, s{sT0}, {3+FS}
    s_add_u32 s{sT0}, s{sT0}, {F2_OFF}
    v_min_u32 v{vF2}, 6, v{vL}
    v_lshlrev_b32 v{vF2}, {FS}, v{vF2}
    v_add_u32 v{vF2}, s{sT0}, v{vF2}
    s_andn2_b32 s{sT0}, s2, 7
    s_lshl_b32 s{sT0}, s{sT0}, 2
    s_add_u32 s{sT0}, s{sT0}, s{sWv}
    s_lshl_b32 s{sT0}, s{sT0}, {3+FS}
    s_add_u32 s{sT0}, s{sT0}, {F2_OFF}
    s_add_u32 s{sT1}, s{sJ}, 1
    v_add_u32 v{vT}, s{sT1}, v{vL}
    v_and_b32 v{vT}, 7, v{vT}
    v_lshlrev_b32 v{vT}, 5, v{vT}
    v_add_u32 v{vT}, v{vT}, v{vL}
    v_lshlrev_b32 v{vT}, {FS}, v{vT}
    v_add_u32 v{vT}, s{sT0}, v{vT}
    v_mov_b32 v{vT+1}, 0x7ffffff0
    v_cmp_gt_u32 vcc, {OPT['fsplit']}, v{vL}
    s_nop 1
    v_cndmask_b32 v{vFa}, v{vT+1}, v{vT}, vcc
    v_cndmask_b32 v{vFb}, v{vT}, v{vT+1}, vcc
    v_cmp_gt_u32 vcc, 7, v{vL}
    s_nop 1
    v_cndmask_b32 v{vFb}, v{vT+1}, v{vFb}, vcc
    s_lshl_b32 s{sT0}, s{sTA}, 3
    s_add_u32 s{sT0}, s{sT0}, s{sJ}
    s_mul_i32 s{sT0}, s{sT0}, {16*1280}
    s_lshl_b32 s{sT1}, s{sTB}, 8
    s_add_u32 s{sT0}, s{sT0}, s{sT1}
    s_lshl_b32 s{sT1}, s{sWv}, 6
    s_add_u32 s{sT0}, s{sT0}, s{sT1}
    v_mul_u32_u24 v{vOut}, 1280, v{vC}
    v_lshl_add_u32 v{vOut}, v{vG}, 3, v{vOut}
    v_add_u32 v{vOut}, s{sT0}, v{vOut}
    s_barrier""")
    st()
    def areads(ts):
        r = []
        for t in ts:
            ad = WOBLK[t]*8192; hi = ad >> 16; lo = ad & 0xffff
            for tt in range(2):
                for q in range(2):
                    r.append(f"ds_read_b64_tr_b16 {vr(AR+(t*2+tt)*4+2*q,2)}, v{vRA2+2*tt+hi if hi < 2 else 22+tt} offset:{lo + q*4096}")
        return r
    for x in areads(range(OPT["wlate"])): a(x)
    a("s_waitcnt lgkmcnt(0)")
    a("s_barrier")
    page("E")
    def breads(hp):
        u, hf = hp >> 1, hp & 1
        ad = OREG(u) + hf*8192
        base = [vB0, vB1, vB2][ad >> 16]
        return [f"ds_read_b128 {vr(BS[hf]+4*k,4)}, v{base} offset:{(ad & 0xffff) + k*1024}" for k in range(8)]
    def mf2(hp):
        u, hf = hp >> 1, hp & 1
        r = []
        for k in range(8):
            for tt in range(2):
                d = AC[u & 1] + 4*tt
                cc = "0" if (hf == 0 and k == 0) else vr(d,4)
                r.append(f"v_mfma_f32_16x16x32_bf16 {vr(d,4)}, {vr(AR+((hf*8+k)*2+tt)*4,4)}, {vr(BS[hf]+4*k,4)}, {cc}")
        return r
    def pstore(u):
        s_ = AC[u & 1]; d = ST[u & 3]
        return [f"v_cvt_pk_bf16_f32 v{d+j}, v{s_+2*j}, v{s_+2*j+1}" for j in range(4)] + \
               [f"buffer_store_dwordx4 {vr(d,4)}, v{vPw}, s[{sS}:{sS+3}], s{sSig} offen sc1",
                f"s_add_u32 s{sSig}, s{sSig}, 0x8000", f"s_and_b32 s{sSig}, s{sSig}, 0x3ffff"]
    FSP = OPT["fsplit"]
    held = []
    for hp in range(17):
        u = hp >> 1
        side = breads(hp) if hp < 16 else []
        mf = mf2(hp - 1) if hp >= 1 else []
        nb = OPT["g2m"] if mf else 0
        for m in mf[:nb]: a(m)
        mf = mf[nb:]
        if hp < 16 and (hp & 1) == 0 and u in [int(c) for c in str(OPT['bset'])[1:]]:
            a("s_barrier")
            if u in (0, 4): st()
        extra = pstore(u - 1) if (hp & 1) == 1 and u >= 1 else []
        if extra and hp < OPT["sdel"]:
            held += extra[4:]; extra = extra[:4]
        elif hp >= OPT["sdel"] and held:
            extra = extra[:4] + held + extra[4:]; held = []
        if FSP and hp == OPT["fblk"]:
            issued = (hp - 1)//2 if hp & 1 else (hp - 2)//2
            extra = extra + [f"s_waitcnt vmcnt({issued - FSP})", f"buffer_store_dword v{vNo}, v{vFa}, s[{sS}:{sS+3}], 0 offen sc1"]
        if OPT["g0fast"] and hp == 0:
            for x in side: a(x)
            continue
        if OPT["g0fast"] and hp == 1:
            ex = side + areads(range(OPT["wlate"], 16))
            issued = 0
            for k in range(8):
                a(f"s_waitcnt lgkmcnt({min(15, 7 - k + issued)})")
                a(mf[2*k])
                for x in ex[3*k:3*k+2]: a(x); issued += 1
                a(mf[2*k+1])
                for x in ex[3*k+2:3*k+3]: a(x); issued += 1
            a("s_waitcnt lgkmcnt(0)")
            continue
        if hp == 1: extra = areads(range(OPT["wlate"], 16))
        rp = OPT["g2per"]
        if hp == 16 and OPT["fpos"] == 1:
            for x in extra: a(x)
            extra = []
        if hp == 16 and OPT["fpos"] == 2:
            for m in mf: a(m)
            mf = []
        mix(a, mf[:8//rp], side, per=rp)
        rest = mf[8//rp:]
        if hp == 16:
            fp = OPT["fpos"]
            if fp < 0:
                for x in extra: a(x)
                extra = []
        mix(a, rest, extra, per=max(1, -(-len(extra)//max(1, len(rest)))))
        a("s_waitcnt lgkmcnt(0)")
    st()
    sPend = 41
    HB = 32; SUM = AC[1]
    firstpoll = f"buffer_load_dword v{vT}, v{vF2}, s[{sS}:{sS+3}], 0 offen sc1"
    if OPT["p1mask"]:
        firstpoll = f"v_mov_b32 v{vT}, 0\ns_mov_b64 exec, {OPT['p1mask']}\n{firstpoll}\ns_mov_b64 exec, -1"
    pb = OPT["pollb4"]
    if pb: a(firstpoll)
    a(f"""s_waitcnt vmcnt({(1 if FSP and OPT['fblk'] >= 15 else 0) + pb})
    buffer_store_dword v{vNo}, v{vFb}, s[{sS}:{sS+3}], 0 offen sc1
    s_mov_b32 s{sPend}, 0x7f
    s_mov_b32 s{sCnt}, 0
    s_mov_b32 s42, 0xffff0000""")
    if OPT["psl"]: a(f"s_sleep {OPT['psl']}")
    if OPT["pg"]:
        if not pb: a(firstpoll)
        if pb: a("s_waitcnt vmcnt(1)\ns_branch L_poll2x")
        a("s_branch L_poll2w")
        page("F", fall=False)
    a(f"""L_poll2:
    buffer_load_dword v{vT}, v{vF2}, s[{sS}:{sS+3}], 0 offen sc1
    L_poll2w:
    s_add_u32 s{sCnt}, s{sCnt}, 1
    s_waitcnt vmcnt(0)
    L_poll2x:
    v_cmp_eq_u32 vcc, s{sN}, v{vT}
    s_nop 1
    s_and_b32 s{sT2}, vcc_lo, s{sPend}
    s_andn2_b32 s{sPend}, s{sPend}, s{sT2}""")
    for u in range(7):
        l = L()
        a(f"""s_bitcmp1_b32 s{sT2}, {u}
        s_cbranch_scc0 {l}
        s_add_u32 s{sT0}, s{sJ}, {7-u}
        s_and_b32 s{sT0}, s{sT0}, 7
        s_lshl_b32 s{sT0}, s{sT0}, 12
        buffer_load_dwordx4 {vr(HB+4*u,4)}, v{vPo}, s[{sS}:{sS+3}], s{sT0} offen sc1""")
        a(f"{l}:")
    a(f"""s_cmp_gt_u32 s{sCnt}, {OPT['spin']}
    s_cbranch_scc1 L_p2go
    s_cmp_lg_u32 s{sPend}, 0
    s_cbranch_scc1 L_poll2
    L_p2go:""")
    st()
    a("s_waitcnt vmcnt(0)")
    for u in range(7):
        for d in range(4):
            x = HB + 4*u + d
            a(f"v_lshlrev_b32 v{vT+2*(d&1)}, 16, v{x}")
            a(f"v_and_b32 v{vT+2*(d&1)+1}, s42, v{x}")
            a(f"v_pk_add_f32 {vr(SUM+2*d,2)}, {vr(SUM+2*d,2)}, {vr(vT+2*(d&1),2)}")
    for d in range(4):
        a(f"v_cvt_pk_bf16_f32 v{HB+d}, v{SUM+2*d}, v{SUM+2*d+1}")
    a(f"buffer_store_dwordx2 {vr(HB,2)}, v{vOut}, s[{sY}:{sY+3}], 0 offen {OPT['outf']}")
    a(f"buffer_store_dwordx2 {vr(HB+2,2)}, v{vOut}, s[{sY}:{sY+3}], 0 offen offset:32 {OPT['outf']}")
    a("L_done:")
    st.dump(0, sWv, 48, vT)
    a("L_end:")
    a("s_endpgm")
    a("L_codeend:")

def main(out):
    a = Asm(); gen(a)
    t = HDR
    t += f"; @launch grid=(256,1,1) block=(448,1,1) lds=163840\n"
    t += DESC
    t += '.amdgcn_target "amdgcn-amd-amdhsa--gfx950"\n.text\n'
    t += f".globl {KN}\n.p2align {12 if OPT['pg'] else 8}\n.p2align 8\n.type {KN},@function\n{KN}:\n" + a.text()
    t += '.section .rodata,"a"\n.p2align 6\n' + kd(KN, 256, 102 if OPT["stamp"] else 64)
    open(out, "w").write(t)

if __name__ == "__main__":
    for kv in sys.argv[2:]:
        k, v = kv.split("=")
        OPT[k] = int(v) if v.lstrip("-").isdigit() else v.replace("_", " ")
    main(sys.argv[1])
```

```python
import sys, math, struct
from gen2 import Asm, vr, HDR, kd, srd, X_BYTES, KV_BYTES, W_BYTES, O_BYTES
import gen2
OPT = gen2.OPT
OPT.update(dict(stamp=False, ntx="", ntw="", ntkv="", ntwo="", kvc='x24682468', rot=1, xrot=1, la=2,
                spin=400000, cpf=1, woq=4, kvspread=0, kvend=5, pre8=1, sigm=0, bset='x01234567', osched='x345678', fsplit=6, fblk=16, fpos=1, p1mask=0, pollb4=0, hprio=0, cprio=0, g0fast=0, g2m=2, g2per=1, sdel=0, pg=1, stub=1, rper=2, imaj=1, prio=3, pw=28, head=0, cpfw=6, cpfe=1, vpos=1, wo1=1, ppos=99, ftouch=18, pvm=1, psum=1, wflag=1, wo9=4, wlate=12, tf='sc1', outf='', psl=0, f1full=1, fast=0, old='sc1', wbl=0))
Stamper = gen2.Stamper
KN = "standalone__mha_block_cached__near_ridge_kernel"

SLOT = 28672; NSLOT = 4
KBASE = SLOT*NSLOT; VBASE = KBASE + 24576
QX = 11*8192
WOBLK = [7,8,9,10, 0,1,2,3,4,5,6,14, 16,17,18,19]
def OREG(u): return u*16384
P_OFF = 0x800000
F1_OFF = 0x1000000; E_OFF = 0x1080000; F2_OFF = 0x1100000; WS_USED = 0x1200000
FS = 7
CNT = 131072

DESC = '; ---------------------------------------------------------------------------------------------\n; ---------------------------------------------------------------------------------------------\n'

def mix(a, main, side, per=2, lead=True):
    main = list(main); side = list(side)
    while main or side:
        if not lead and main: a(main.pop(0))
        for _ in range(per):
            if side: a(side.pop(0))
        if lead and main: a(main.pop(0))

def gen(a):
    sX, sK, sV, sW, sS, sD, sY = 8, 12, 16, 20, 24, 52, 56
    sH, sP, sWv, sB, sDH = 28, 29, 30, 31, 32
    sT0, sT1, sT2 = 33, 34, 35
    sOW, sOX, sKV, sCls, sC, sJ = 36, 37, 38, 39, 50, 51
    sN, sTA, sTB, sCnt = 3, 6, 7, 37
    vL, vG, vC, vT = 1, 2, 3, 4
    lab = [0]
    def L():
        lab[0] += 1; return f"L{lab[0]}"
    def page(name, fall=True):
        if not OPT["pg"]: return
        if fall: a(f"s_branch L_pg{name}")
        a(".p2align 12")
        a(f"L_stub{name}:")
        a("s_setpc_b64 s[4:5]")
        a(f"L_pg{name}:")
    a("s_cmp_ge_u32 s2, 256")
    a("s_cbranch_scc1 L_end")
    st = Stamper(a, 62); st()
    a(f"""s_load_dwordx8 s[40:47], s[0:1], 0
    s_load_dwordx4 s[4:7], s[0:1], 32
    s_load_dwordx2 s[60:61], s[0:1], 48
    s_load_dwordx2 s[48:49], s[0:1], 56
    v_lshrrev_b32 v{vT}, 6, v0
    v_and_b32 v{vL}, 63, v0
    v_readfirstlane_b32 s{sWv}, v{vT}
    v_lshrrev_b32 v{vG}, 4, v{vL}
    v_and_b32 v{vC}, 15, v{vL}
    s_and_b32 s{sT0}, s2, 7
    s_lshl_b32 s{sT0}, s{sT0}, 2
    s_bfe_u32 s{sT1}, s2, 0x20003
    s_add_u32 s{sH}, s{sT0}, s{sT1}
    s_lshr_b32 s{sP}, s2, 5""")
    def cpf(skip):
        a(f"""s_cmp_lg_u32 s{sWv}, {OPT['cpfw']}
        s_cbranch_scc1 {skip}
        s_getpc_b64 s[{sY}:{sY+1}]
        L_pcref:
        s_bfe_u32 s{sT0}, s2, 0x30003
        s_mul_i32 s{sT0}, s{sT0}, 24
        v_min_u32 v{vT}, 23, v{vL}
        v_add_u32 v{vT}, s{sT0}, v{vT}
        v_lshlrev_b32 v{vT}, 7, v{vT}
        v_min_u32 v{vT}, L_codeend-L_pcref-4, v{vT}
        global_load_dword v31, v{vT}, s[{sY}:{sY+1}]""")
    if OPT["cpfe"]:
        a(f"""s_cmp_eq_u32 s{sWv}, 4
        s_cbranch_scc1 L_prod""")
        cpf("L_notprod")
        a("s_branch L_notprod")
        a("L_prod:")
    else:
        a(f"""s_cmp_lg_u32 s{sWv}, 4
        s_cbranch_scc1 L_notprod""")
    kvs = [int(c) for c in str(OPT["kvc"])[1:]]
    def set_cls():
        a(f"""s_lshl_b32 s{sT0}, s{sP}, 2
        s_lshr_b32 s{sCls}, {sum(k << (4*i) for i, k in enumerate(kvs))}, s{sT0}
        s_and_b32 s{sCls}, s{sCls}, 0xf""")

    def get_nonce(vreg):
        l0, l1 = L(), L()
        a(f"s_waitcnt lgkmcnt(0)")
        a(f"s_mov_b32 s{sCnt}, 0")
        a(f"{l0}:")
        a(f"""s_cmp_lg_u32 s{sN}, 0
        s_cbranch_scc1 {l1}
        s_cmp_gt_u32 s{sCnt}, {OPT['spin']}
        s_cbranch_scc1 {l1}
        buffer_load_dword v{vreg}, off, s[{sD}:{sD+3}], 0 sc1
        s_add_u32 s{sCnt}, s{sCnt}, 1
        s_waitcnt vmcnt(0)
        v_readfirstlane_b32 s{sN}, v{vreg}
        s_nop 0
        s_branch {l0}""")
        a(f"{l1}:")
    def decode_tile():
        a(f"""s_lshr_b32 s{sT0}, s2, 3
        s_mul_i32 s{sTA}, s{sT0}, 52
        s_lshr_b32 s{sTA}, s{sTA}, 8
        s_mul_i32 s{sTB}, s{sTA}, 5
        s_sub_u32 s{sTB}, s{sT0}, s{sTB}
        s_and_b32 s{sJ}, s2, 7""")

    if OPT["prio"]: a(f"s_setprio {OPT['prio']}")
    vW, vX, vK, vV = 12, 16, 20, 24
    if OPT["rot"] == 1:
        a(f"""s_mul_i32 s{sT0}, s{sT1}, 5
        s_add_u32 s{sT0}, s{sT0}, 1
        s_lshr_b32 s{sT0}, s{sT0}, 1
        s_add_u32 s{sT2}, s{sT0}, s{sP}""")
    elif OPT["rot"] >= 2:
        R = OPT["rot"]
        tab = [round(10*i/R) % 10 for i in range(R)]
        lut = sum(tab[(x % R)] << (4*x) for x in range(11))
        a(f"""s_add_u32 s{sT0}, s{sT1}, s{sP}
        s_lshl_b32 s{sT0}, s{sT0}, 2
        s_mov_b32 s36, {lut & 0xffffffff}
        s_mov_b32 s37, {lut >> 32}
        s_lshr_b64 s[36:37], s[36:37], s{sT0}
        s_and_b32 s{sT2}, s36, 15""")
    else:
        a(f"s_mov_b32 s{sT2}, 0")
    if OPT["xrot"]:
        a(f"""s_and_b32 s{sT0}, s2, 7
        s_add_u32 s{sT2}, s{sT2}, s{sT0}
        s_cmp_ge_u32 s{sT2}, 10
        s_cselect_b32 s{sT0}, 10, 0
        s_sub_u32 s{sT2}, s{sT2}, s{sT0}""")
    if OPT["rot"] == 1:
        a(f"""s_cmp_ge_u32 s{sT2}, 10
        s_cselect_b32 s{sT0}, 10, 0
        s_sub_u32 s{sT2}, s{sT2}, s{sT0}""")
    a(f"""s_lshl_b32 s{sOW}, s{sT2}, 19
    s_lshl_b32 s{sOX}, s{sT2}, 7
    s_lshl_b32 s{sT0}, s{sH}, 8
    v_lshlrev_b32 v{vT}, 1, v{vG}
    v_xor_b32 v{vT}, v{vT}, v{vC}
    v_lshlrev_b32 v{vT}, 4, v{vT}
    v_lshl_add_u32 v{vW}, v{vG}, 13, v{vT}
    v_add_u32 v{vW}, s{sT0}, v{vW}
    v_add_u32 v{vW+1}, {4*8192 - 1024}, v{vW}
    v_xor_b32 v{vW+2}, 0x80, v{vW}
    v_add_u32 v{vW+3}, {12*8192 - 3072}, v{vW+2}
    v_add_u32 v{vW+2}, {8*8192 - 2048}, v{vW+2}
    s_mul_i32 s{sT0}, s{sP}, {96*1280}
    v_lshrrev_b32 v{vT+1}, 3, v{vL}
    v_and_b32 v{vT+2}, 7, v{vL}
    v_xor_b32 v{vT+2}, v{vT+2}, v{vT+1}
    v_lshlrev_b32 v{vT+2}, 4, v{vT+2}
    v_mul_u32_u24 v{vX}, 1280, v{vT+1}
    v_add3_u32 v{vX}, v{vX}, v{vT+2}, s{sT0}
    v_add_u32 v{vX+1}, {8*1280 - 1024}, v{vX}
    v_add_u32 v{vX+2}, {16*1280 - 2048}, v{vX}
    v_add_u32 v{vX+3}, {24*1280 - 3072}, v{vX}
    s_waitcnt lgkmcnt(0)""")
    srd(a, sW, 46, W_BYTES); srd(a, sX, 40, X_BYTES)
    sSlot, sI = 31, 32
    H = OPT["head"]
    def ggroup(gi):
        if gi < 4:
            a(f"s_add_u32 m0, s{sSlot}, {12288 + gi*4096}")
            a(f"s_add_u32 s{sT0}, s{sOW}, {gi*16*8192}")
            for i in range(4):
                a(f"buffer_load_dwordx4 v{vW+i}, s[{sW}:{sW+3}], s{sT0} offen offset:{i*1024} {OPT['ntw']} lds")
        else:
            a(f"s_add_u32 m0, s{sSlot}, {(gi-4)*4096}")
            a(f"s_add_u32 s{sT0}, s{sOX}, {(gi-4)*32*1280}")
            for i in range(4):
                a(f"buffer_load_dwordx4 v{vX+i}, s[{sX}:{sX+3}], s{sT0} offen offset:{i*1024} {OPT['ntx']} lds")
    def ghead():
        for gi in range(H): ggroup(gi)
    def gtail():
        for gi in range(H, 7): ggroup(gi)
        a(f"""s_add_u32 s{sOW}, s{sOW}, {64*8192}
        s_add_u32 s{sOX}, s{sOX}, 128
        s_cmp_ge_u32 s{sOX}, 1280
        s_cselect_b32 s{sOW}, 0, s{sOW}
        s_cselect_b32 s{sOX}, 0, s{sOX}
        s_add_u32 s{sSlot}, s{sSlot}, {SLOT}
        s_cmp_ge_u32 s{sSlot}, {NSLOT*SLOT}
        s_cselect_b32 s{sSlot}, 0, s{sSlot}
        s_add_u32 s{sI}, s{sI}, 1""")
    a(f"""s_mov_b32 s{sSlot}, 0
    s_mov_b32 s{sI}, 0""")
    ghead(); gtail()
    srd(a, sK, 42, KV_BYTES); srd(a, sV, 44, KV_BYTES)
    a(f"""s_lshl_b32 s{sKV}, s{sP}, 6
    s_add_u32 s{sKV}, s{sKV}, s{sH}
    s_mul_i32 s{sKV}, s{sKV}, 12288
    v_xor_b32 v{vT+1}, v{vC}, v{vG}
    v_lshlrev_b32 v{vT+1}, 4, v{vT+1}
    v_lshl_add_u32 v{vK}, v{vG}, 8, v{vT+1}
    v_xor_b32 v{vK+1}, 64, v{vK}
    v_xor_b32 v{vK+2}, 128, v{vK}
    v_xor_b32 v{vK+3}, 192, v{vK}
    v_lshl_add_u32 v{vV}, v{vG}, 8, v{vT}
    v_xor_b32 v{vV+1}, 128, v{vV}""")
    set_cls()
    sWo = 56
    vW2, vO, vF = 28, 32, 36
    sR2, sRho, sSig, sSplit, sRdy = 50, 40, 41, 42, 44
    srd(a, sWo, 4, W_BYTES); srd(a, sS, 48, WS_USED); srd(a, sD, 60, 256)
    a("s_mov_b64 s[46:47], s[6:7]")
    decode_tile()
    if OPT["wflag"]:
        pollvec = f"""s_lshl_b32 s{sT0}, s{sTA}, 8
        s_lshl_b32 s{sT1}, s{sJ}, 2
        s_add_u32 s{sT0}, s{sT0}, s{sT1}
        v_bfe_u32 v{vF}, v{vL}, 2, 3
        v_and_b32 v{vF+2}, 3, v{vL}
        v_lshl_add_u32 v{vF}, v{vF}, 5, v{vF+2}
        v_add_u32 v{vF}, s{sT0}, v{vF}
        v_lshlrev_b32 v{vF}, {FS}, v{vF}"""
    else:
        pollvec = f"""s_lshl_b32 s{sT0}, s{sT0}, 5
        s_add_u32 s{sT0}, s{sT0}, s{sJ}
        v_and_b32 v{vF}, 7, v{vL}
        v_lshl_add_u32 v{vF}, v{vF}, 3, s{sT0}
        v_lshlrev_b32 v{vF}, {FS}, v{vF}"""
    a(f"""s_mul_i32 s{sT0}, s{sJ}, {512*1280}
    s_lshl_b32 s{sT1}, s{sTB}, 8
    s_add_u32 s{sT0}, s{sT0}, s{sT1}
    v_mul_u32_u24 v{vW2}, 1280, v{vG}
    v_add3_u32 v{vW2}, v{vW2}, v{vT}, s{sT0}
    v_xor_b32 v{vW2+1}, 0x80, v{vW2}
    v_add_u32 v{vW2+2}, {8*1280 - 2048}, v{vW2}
    v_add_u32 v{vW2+3}, {12*1280 - 3072}, v{vW2+1}
    v_add_u32 v{vW2+1}, {4*1280 - 1024}, v{vW2+1}
    s_lshl_b32 s{sT0}, s{sTA}, 10
    s_lshl_b32 s{sT1}, s{sJ}, 4
    s_add_u32 s{sT0}, s{sT0}, s{sT1}
    s_lshl_b32 s{sT0}, s{sT0}, 10
    v_lshlrev_b32 v{vO}, 4, v{vL}
    v_add_u32 v{vO}, s{sT0}, v{vO}
    s_mul_i32 s{sT0}, s{sTA}, 43
    s_lshr_b32 s{sT0}, s{sT0}, 5
    s_mul_i32 s{sSplit}, s{sT0}, 6
    s_add_u32 s{sSplit}, s{sSplit}, 6
    s_lshl_b32 s{sT1}, s{sTA}, 3
    s_sub_u32 s{sSplit}, s{sSplit}, s{sT1}
    {pollvec}
    s_and_b32 s{sRho}, s{sTA}, 3
    s_lshl_b32 s{sR2}, s{sRho}, 2
    s_lshl_b32 s{sRho}, s{sRho}, 12
    s_add_u32 s{sSig}, s{sJ}, 1
    s_and_b32 s{sSig}, s{sSig}, 7
    s_mov_b32 s{sRdy}, 0""")
    def issueWo(t):
        a(f"s_mul_i32 s{sT1}, s{sR2}, {32*1280}")
        for jj in range(2):
            a(f"s_mov_b32 m0, {WOBLK[t]*8192 + jj*4096}")
            a(f"s_add_u32 s{sT0}, s{sT1}, {jj*16*1280}")
            for i in range(4):
                a(f"buffer_load_dwordx4 v{vW2+i}, s[{sWo}:{sWo+3}], s{sT0} offen offset:{i*1024} {OPT['ntwo']} lds")
        a(f"""s_add_u32 s{sR2}, s{sR2}, 1
        s_and_b32 s{sR2}, s{sR2}, 15""")
    def issueO(u):
        l1 = L()
        if OPT["wflag"]:
            a(f"""s_lshl_b32 s{sT1}, s{sSig}, 2
            s_lshl_b32 s{sT2}, 0xf, s{sT1}""")
        else:
            a(f"""s_cmp_lt_u32 s{sSig}, s{sSplit}
            s_cselect_b32 s{sT2}, 0xf, 0xf0""")
        a(f"""s_andn2_b32 s{sT1}, s{sT2}, s{sRdy}
        s_cbranch_scc0 {l1}
        s_call_b64 s[4:5], L_poll1""")
        a(f"{l1}:")
        a(f"s_lshl_b32 s{sT1}, s{sSig}, 17")
        for G in range(4):
            a(f"s_mov_b32 m0, {OREG(u) + G*4096}")
            a(f"s_add_u32 s{sT0}, s{sT1}, s{sRho}")
            for i in range(4):
                a(f"buffer_load_dwordx4 v{vO}, s[{sS}:{sS+3}], s{sT0} offen offset:{i*1024} sc1 lds")
            a(f"""s_add_u32 s{sRho}, s{sRho}, 4096
            s_and_b32 s{sRho}, s{sRho}, 0x3fff""")
        a(f"""s_add_u32 s{sSig}, s{sSig}, 1
        s_and_b32 s{sSig}, s{sSig}, 7""")
    kvgroups = [(base, s_, vreg, nv, b, jj) for (base, s_, vreg, nv) in ((KBASE, sK, vK, 4), (VBASE, sV, vV, 2)) for b in range(2) for jj in range(3)]
    def kvgroup(gi):
        base, s_, vreg, nv, b, jj = kvgroups[gi]
        a(f"s_mov_b32 m0, {base + b*12288 + jj*4096}")
        a(f"s_add_u32 s{sT0}, s{sKV}, {b*32*12288 + jj*4096}")
        for i in range(4):
            a(f"buffer_load_dwordx4 v{vreg + i % nv}, s[{s_}:{s_+3}], s{sT0} offen offset:{i*1024} {OPT['ntkv']} lds")
    st()
    a("s_branch L_ghead0")
    a("L_gissue:")
    gtail()
    a(f"""s_cmp_eq_u32 s{sI}, 10
    s_cbranch_scc1 L_pdone
    L_ghead0:""")
    ghead()
    a(f"""s_cmp_eq_u32 s{sI}, 1
    s_cbranch_scc1 L_gissue
    s_sub_u32 s{sT0}, s{sI}, s{sCls}
    s_cmp_eq_u32 s{sT0}, 1
    s_cbranch_scc1 L_kvwait
    s_waitcnt vmcnt({28 + 4*H})
    s_barrier
    s_cmp_lg_u32 s{sI}, s{sCls}
    s_cbranch_scc1 L_gissue""")
    if OPT["ftouch"] & 1:
        a(f"""s_mov_b32 s{sT0}, {F1_OFF}
        buffer_load_dword v{vF+3}, v{vF}, s[{sS}:{sS+3}], s{sT0} offen {OPT['tf']}""")
    if OPT["ftouch"] & 2:
        a(f"""s_lshl_b32 s{sT0}, s2, {5+FS}
        s_add_u32 s{sT0}, s{sT0}, {F2_OFF}
        v_and_b32 v40, 31, v{vL}
        v_lshlrev_b32 v40, {FS}, v40
        buffer_load_dword v41, v40, s[{sS}:{sS+3}], s{sT0} offen {OPT['tf']}""")
    if OPT["ftouch"] & 16:
        a(f"""s_mul_i32 s{sT0}, s{sP}, {6*32}
        s_add_u32 s{sT0}, s{sT0}, s{sH}
        s_lshl_b32 s{sT0}, s{sT0}, {FS}
        s_add_u32 s{sT0}, s{sT0}, {F1_OFF}
        v_min_u32 v40, 5, v{vL}
        v_lshlrev_b32 v40, {5+FS}, v40
        buffer_load_dword v41, v40, s[{sS}:{sS+3}], s{sT0} offen {OPT['tf']}""")
    if OPT["ftouch"] & 32:
        a(f"""s_lshl_b32 s{sT0}, s2, {5+FS}
        s_add_u32 s{sT0}, s{sT0}, {F2_OFF + (7 << FS)}
        buffer_load_dword v41, off, s[{sS}:{sS+3}], s{sT0} {OPT['tf']}""")
    if OPT["ftouch"] & 4:
        a(f"""s_mul_i32 s{sT0}, s{sP}, 6
        s_lshl_b32 s{sT0}, s{sT0}, 7
        s_lshl_b32 s{sT1}, s{sH}, 2
        s_add_u32 s{sT0}, s{sT0}, s{sT1}
        s_lshl_b32 s{sT0}, s{sT0}, 10
        v_min_u32 v40, 5, v{vL}
        v_lshlrev_b32 v40, 17, v40
        buffer_load_dword v41, v40, s[{sS}:{sS+3}], s{sT0} offen {OPT['tf']}
        v_and_b32 v40, 7, v{vL}
        v_lshlrev_b32 v42, 17, v40
        s_lshl_b32 s{sT0}, s{sTA}, 20
        s_lshl_b32 s{sT1}, s{sJ}, 14
        s_add_u32 s{sT0}, s{sT0}, s{sT1}
        buffer_load_dword v41, v42, s[{sS}:{sS+3}], s{sT0} offen {OPT['tf']}
        v_lshlrev_b32 v42, 15, v40
        s_andn2_b32 s{sT0}, s2, 7
        s_lshl_b32 s{sT0}, s{sT0}, 3
        s_add_u32 s{sT0}, s{sT0}, s{sJ}
        s_lshl_b32 s{sT0}, s{sT0}, 12
        s_add_u32 s{sT0}, s{sT0}, {P_OFF}
        buffer_load_dword v41, v42, s[{sS}:{sS+3}], s{sT0} offen {OPT['tf']}""")
    if OPT["ftouch"] & 8:
        a(f"""v_and_b32 v40, 7, v{vL}
        v_mul_u32_u24 v42, {64*1280}, v40
        s_mul_i32 s{sT0}, s{sJ}, {512*1280}
        buffer_load_dword v41, v42, s[{sWo}:{sWo+3}], s{sT0} offen
        s_mul_i32 s{sT0}, s{sP}, {96*1280}
        v_mov_b32 v42, s{sT0}
        global_load_dword v41, v42, s[46:47]""")
    for gi in range(6): kvgroup(gi)
    a(f"""s_waitcnt vmcnt({24 + 4*H})
    s_barrier
    s_branch L_gissue
    L_kvwait:
    s_waitcnt vmcnt(28)
    s_barrier
    s_branch L_gissue
    L_pdone:
    s_waitcnt vmcnt(28)
    s_barrier""")
    for gi in range(6, 12): kvgroup(gi)
    st.n = 5
    a(f"s_load_dword s{sN}, s[60:61], 0")
    a("s_waitcnt vmcnt(24)")
    a("s_barrier")
    st()
    a("s_cmp_ge_u32 s2, 240")
    a("s_cbranch_scc1 L_prod_notile")
    for t in range(0, OPT["wo1"]): issueWo(t)
    get_nonce(vF+1)
    a("s_barrier")
    st()
    for t in range(OPT["wo1"], 4): issueWo(t)
    a("s_waitcnt vmcnt(32)")
    a("s_barrier")
    st()
    page("B")
    a("s_barrier")
    st()
    pollK = f"""s_mov_b32 s{sT0}, {F1_OFF}
    buffer_load_dword v{vF+3}, v{vF}, s[{sS}:{sS+3}], s{sT0} offen sc1"""
    pp = OPT["ppos"]
    for t in range(OPT["woq"], OPT["wlate"]):
        if t == pp: a(pollK)
        issueWo(t)
    if pp == OPT["wlate"]: a(pollK)
    a(f"s_waitcnt vmcnt({1 if pp == OPT['wlate'] else 0})")
    a("s_barrier")
    st()
    if pp > OPT["wlate"]: a(pollK)
    for t in range(OPT["wlate"], 16): issueWo(t)
    a("s_barrier")
    a(f"""s_waitcnt vmcnt({8*(16 - OPT["wlate"])})
    v_cmp_eq_u32 s[{sRdy}:{sRdy+1}], s{sN}, v{vF+3}
    s_nop 1""")
    issueO(0)
    n0 = st.n; st.n = 12; st(); st.n = n0
    bset = [int(c) for c in str(OPT["bset"])[1:]]
    sched = [int(c) for c in str(OPT["osched"])[1:]]
    nxo = 1
    for bi, u in enumerate(bset):
        tgt = sched[bi] if bi < len(sched) else 8
        while nxo < tgt: issueO(nxo); nxo += 1
        lastneeded = (bset[bi+1] - 1) if bi + 1 < len(bset) else 7
        assert lastneeded < nxo
        a(f"s_waitcnt vmcnt({min(63, 16*(nxo - 1 - lastneeded))})")
        a("s_barrier")
        if u in (0, 4): st()
    a("s_branch L_done")
    a("L_prod_notile:")
    a(f"""s_barrier
    s_waitcnt vmcnt(0)
    s_barrier
    s_branch L_done""")
    a("L_poll1:")
    a(f"""s_mov_b32 s{sCnt}, 0
    s_mov_b32 s{sT0}, {F1_OFF}
    L_poll1_loop:
    buffer_load_dword v{vF+3}, v{vF}, s[{sS}:{sS+3}], s{sT0} offen sc1
    s_add_u32 s{sCnt}, s{sCnt}, 1
    s_waitcnt vmcnt(0)
    v_cmp_eq_u32 s[{sRdy}:{sRdy+1}], s{sN}, v{vF+3}
    s_cmp_gt_u32 s{sCnt}, {OPT['spin']}
    s_cbranch_scc1 L_poll1_end
    s_andn2_b32 s{sT1}, s{sT2}, s{sRdy}
    s_cbranch_scc1 L_poll1_loop
    L_poll1_end:
    s_setpc_b64 s[4:5]""")

    page("C", fall=False)
    a("L_notprod:")
    vRB = 12; vRA = 16
    vQW, vQR, vKR, vVR, vOo, vNo, vTR = 24, 25, 26, 27, 28, 29, 30
    ACC = 32; FA = [80, 108]
    def acc(tt, i): return ACC + (tt*3 + i)*4
    if not OPT["cpfe"]: cpf("L_nocpf"); a("L_nocpf:")
    a("s_waitcnt lgkmcnt(0)")
    srd(a, sS, 48, WS_USED); srd(a, sD, 60, 256); srd(a, sY, 6, X_BYTES)
    a(f"""s_lshl_b32 s{sT0}, s2, 3
    s_add_u32 s{sT0}, s{sT0}, s{sWv}
    s_cmp_lg_u32 s{sT0}, 5
    s_cbranch_scc1 L_nononce
    s_mov_b32 s{sT0}, {E_OFF}
    buffer_load_dword v{vT}, off, s[{sS}:{sS+3}], s{sT0} sc1
    s_mov_b32 s{sT1}, 0x9e3779b1
    s_waitcnt vmcnt(0)
    v_mul_lo_u32 v{vT}, v{vT}, s{sT1}
    v_add_u32 v{vT}, 0x7f4a7c15, v{vT}
    v_max_u32 v{vT}, 1, v{vT}
    s_mov_b64 exec, 1
    buffer_store_dword v{vT}, off, s[{sD}:{sD+3}], 0 sc1
    buffer_store_dword v{vT}, off, s[{sS}:{sS+3}], s{sT0} sc1
    s_mov_b64 exec, -1
    L_nononce:""")
    a(f"""s_cmp_gt_u32 s{sWv}, 4
    s_cselect_b32 s{sT0}, 1, 0
    s_sub_u32 s{sJ}, s{sWv}, s{sT0}
    s_lshl_b32 s{sT0}, s{sJ}, 12
    s_add_u32 s{sT0}, s{sT0}, {QX}
    v_lshlrev_b32 v{vOo}, 4, v{vL}
    v_add_u32 v{vQR}, s{sT0}, v{vOo}
    s_cmp_ge_u32 s{sJ}, 3
    s_cselect_b32 s{sT2}, 12288, 0
    v_lshrrev_b32 v{vT}, 1, v{vG}
    v_xor_b32 v{vT}, v{vT}, v{vC}
    v_lshlrev_b32 v{vT}, 4, v{vT}
    v_lshl_add_u32 v{vT}, v{vC}, 8, v{vT}
    v_and_b32 v{vT+1}, 1, v{vG}
    v_lshl_add_u32 v{vT}, v{vT+1}, 3, v{vT}
    s_add_u32 s{sT0}, s{sT2}, {KBASE}
    v_add_u32 v{vKR}, s{sT0}, v{vT}
    v_lshrrev_b32 v{vT}, 2, v{vC}
    v_lshl_add_u32 v{vT}, v{vG}, 2, v{vT}
    v_and_b32 v{vT+1}, 7, v{vT}
    v_lshlrev_b32 v{vT+1}, 5, v{vT+1}
    v_lshl_add_u32 v{vT}, v{vT}, 8, v{vT+1}
    v_and_b32 v{vT+1}, 3, v{vC}
    v_lshl_add_u32 v{vTR}, v{vT+1}, 3, v{vT}
    s_add_u32 s{sT0}, s{sT2}, {VBASE}
    v_add_u32 v{vVR}, s{sT0}, v{vTR}
    s_lshr_b32 s{sB}, s{sWv}, 1
    s_and_b32 s{sDH}, s{sWv}, 1
    s_mul_i32 s{sT0}, s{sB}, 12288
    s_lshl_b32 s{sT1}, s{sDH}, 11
    s_add_u32 s{sT0}, s{sT0}, s{sT1}
    s_add_u32 s{sT0}, s{sT0}, {QX}
    v_add_u32 v{vQW}, s{sT0}, v{vOo}
    s_mul_i32 s{sT0}, s{sP}, 6
    s_add_u32 s{sT0}, s{sT0}, s{sJ}
    s_lshl_b32 s{sT0}, s{sT0}, 7
    s_lshl_b32 s{sT1}, s{sH}, 2
    s_add_u32 s{sT0}, s{sT0}, s{sT1}
    s_lshl_b32 s{sKV}, s{sT0}, {FS-2}
    s_add_u32 s{sKV}, s{sKV}, {F1_OFF}
    s_lshl_b32 s{sT0}, s{sT0}, 10
    v_add_u32 v{vOo}, s{sT0}, v{vOo}""")
    c = (128 ** -0.5) * math.log2(math.e)
    cb = struct.unpack('<I', struct.pack('<f', c))[0]
    a(f"s_mov_b32 s{sC}, {cb:#x}")
    a(f"s_mov_b32 s{sC+1}, {cb:#x}")
    set_cls()
    a(f"s_cmp_lt_u32 s{sWv}, 4")
    a("s_cbranch_scc1 L_cons")
    KF, VF = 136, 184
    def k_reads():
        r = []
        for T in range(4):
            for hf in range(2):
                tmp = vT + ((2*T+hf) & 3)
                r.append(f"v_xor_b32 v{tmp}, {64*T + 32*hf}, v{vKR}")
                for kt in range(3):
                    r.append(f"ds_read_b64 {vr(KF+(kt*4+T)*4+2*hf,2)}, v{tmp} offset:{kt*4096}")
        return r
    def v_reads():
        r = []
        for t in range(8):
            tmp = vT + 4 + (t & 3)
            r.append(f"v_xor_b32 v{tmp}, {32*t}, v{vVR}")
            for q in range(3):
                r.append(f"ds_read_b64_tr_b16 {vr(VF+t*6+2*q,2)}, v{tmp} offset:{q*4096}")
        return r
    def kvcall(kk):
        if kk in kvs:
            l = L()
            a(f"s_cmp_lg_u32 s{sCls}, {kk}")
            a(f"s_cbranch_scc1 {l}")
            a(f"s_call_b64 s[4:5], L_kvread")
            a(f"{l}:")
    if OPT["hprio"]: a(f"s_setprio {OPT['hprio']}")
    for kk in range(10):
        kvcall(kk)
        if kk == 9: a("s_waitcnt lgkmcnt(0)")
        a("s_barrier")
        if kk == 6: a(f"s_load_dword s{sN}, s[60:61], 0")
        if kk == 0 and OPT["pg"] and OPT["stub"]:
            for nm in "DEFB": a(f"s_call_b64 s[4:5], L_stub{nm}")
    a("s_branch L_qx")
    a("L_kvread:")
    a("s_barrier")
    for x in k_reads(): a(x)
    a("s_setpc_b64 s[4:5]")
    a("L_cons:")
    if OPT["cprio"]: a(f"s_setprio {OPT['cprio']}")
    a(f"""s_mul_i32 s{sT0}, s{sB}, {48*128}
    v_and_b32 v{vT}, 7, v{vC}
    v_xor_b32 v{vT}, v{vT}, v{vG}
    v_lshlrev_b32 v{vT}, 4, v{vT}
    v_lshl_add_u32 v{vT}, v{vC}, 7, v{vT}
    v_add_u32 v{vRB}, s{sT0}, v{vT}
    v_xor_b32 v{vRB+2}, 64, v{vRB}
    v_add_u32 v{vRB+1}, {2*SLOT}, v{vRB}
    v_add_u32 v{vRB+3}, {2*SLOT}, v{vRB+2}
    v_lshrrev_b32 v{vT}, 2, v{vC}
    v_lshl_add_u32 v{vT+1}, v{vG}, 3, v{vT}
    v_lshlrev_b32 v{vT+1}, 8, v{vT+1}
    v_and_b32 v{vT+2}, 1, v{vG}
    v_lshlrev_b32 v{vT+2}, 3, v{vT+2}
    v_lshl_add_u32 v{vT+2}, v{vT}, 1, v{vT+2}
    v_and_b32 v{vT+3}, 3, v{vC}
    v_lshlrev_b32 v{vT+3}, 3, v{vT+3}
    v_add_u32 v{vT+1}, v{vT+1}, v{vT+3}
    v_add_u32 v{vT+1}, 12288, v{vT+1}
    s_lshl_b32 s{sT0}, s{sDH}, 3
    v_xor_b32 v{vT+2}, s{sT0}, v{vT+2}
    v_lshl_add_u32 v{vRA}, v{vT+2}, 4, v{vT+1}""")
    for tt in range(1, 4):
        a(f"v_xor_b32 v{vRA+2*tt}, {32*tt}, v{vRA}")
    for tt in range(4):
        a(f"v_add_u32 v{vRA+2*tt+1}, {2*SLOT}, v{vRA+2*tt}")
    def reads(kk, sub, fs):
        slot = kk % NSLOT; hi = slot >> 1; so = (slot & 1)*SLOT; F = FA[fs]
        r = [f"ds_read_b128 {vr(F+16,4)}, v{vRB+2*sub+hi} offset:{so}"]
        for tt in range(4):
            for q in range(2):
                r.append(f"ds_read_b64_tr_b16 {vr(F+4*tt+2*q,2)}, v{vRA+2*tt+hi} offset:{so + (32*sub + 4*q)*256}")
        for i in range(1, 3):
            r.append(f"ds_read_b128 {vr(F+16+4*i,4)}, v{vRB+2*sub+hi} offset:{so + i*2048}")
        return r
    def mfmas(fs, first):
        F = FA[fs]; r = []
        for i in range(3):
            for tt in range(4):
                cc = "0" if first else vr(acc(tt,i),4)
                r.append(f"v_mfma_f32_16x16x32_bf16 {vr(acc(tt,i),4)}, {vr(F+4*tt,4)}, {vr(F+16+4*i,4)}, {cc}")
        return r
    st.n = 1; st()
    for kk in range(9):
        if kk == 7: page("D")
        kvcall(kk)
        a("s_barrier")
        if kk in (0, 3, 7): st()
        if kk == 6: a(f"s_load_dword s{sN}, s[60:61], 0")
        mix(a, mfmas(1, False) if kk else [], reads(kk, 0, 0), per=OPT['rper'])
        a("s_waitcnt lgkmcnt(0)")
        mix(a, mfmas(0, kk == 0), reads(kk, 1, 1), per=OPT['rper'])
        a("s_waitcnt lgkmcnt(0)")
    QW = 232
    def qcvt(i):
        r = []
        for T in range(2):
            d = QW + (i*2+T)*4
            for u in range(2):
                s_ = acc(2*T+u, i)
                r.append(f"v_cvt_pk_bf16_f32 v{d+2*u}, v{s_}, v{s_+1}")
                r.append(f"v_cvt_pk_bf16_f32 v{d+2*u+1}, v{s_+2}, v{s_+3}")
            r.append(f"ds_write_b128 v{vQW}, {vr(d,4)} offset:{i*4096 + T*1024}")
        return r
    m0_, m1_ = mfmas(0, False), mfmas(1, False)
    for m in m1_: a(m)
    a("s_barrier")
    st()
    r0, r1 = reads(9, 0, 0), reads(9, 1, 1)
    for x in r0[:9] + r1[:6]: a(x)
    a("s_waitcnt lgkmcnt(6)")
    mix(a, m0_[:4], r1[6:9] + [r0[9], r1[9], r0[10], r1[10]], per=2, lead=False)
    a("s_waitcnt lgkmcnt(4)")
    for m in m1_[:4]: a(m)
    a("s_waitcnt lgkmcnt(2)")
    for m in m0_[4:8] + m1_[4:7]: a(m)
    a("s_waitcnt lgkmcnt(0)")
    mix(a, m1_[7:8] + m0_[8:], qcvt(0), per=2, lead=False)
    mix(a, m1_[8:], qcvt(1)[:6], per=2, lead=True)
    for x in qcvt(1)[6:]: a(x)
    a("s_nop 3")
    for x in qcvt(2): a(x)
    a("L_qx:")
    a("s_waitcnt lgkmcnt(0)")
    a("s_barrier")
    st()
    QF = 56; SA = 32; PF = 44; OA = 80
    for T in range(4):
        a(f"ds_read_b128 {vr(QF+4*T,4)}, v{vQR} offset:{T*1024}")
    for T in range(4):
        a(f"s_waitcnt lgkmcnt({3-T})")
        for kt in range(3):
            cc = "0" if T == 0 else vr(SA+4*kt,4)
            a(f"v_mfma_f32_16x16x32_bf16 {vr(SA+4*kt,4)}, {vr(KF+(kt*4+T)*4,4)}, {vr(QF+4*T,4)}, {cc}")
    if OPT["wflag"]:
        a("s_nop 2")
    else:
        a(f"""v_mov_b32 v{vNo}, 0
        v_mov_b32 v{vQW}, {CNT}
        ds_write_b32 v{vQW}, v{vNo}""")
    M, M2, Ls, L2 = 4, 5, 6, 7
    v = [SA+j for j in range(12)]
    a(f"""s_nop 2
    v_max3_f32 v{M}, v{v[0]}, v{v[1]}, v{v[2]}
    v_max3_f32 v{M2}, v{v[3]}, v{v[4]}, v{v[5]}
    v_max3_f32 v{Ls}, v{v[6]}, v{v[7]}, v{v[8]}
    v_max3_f32 v{L2}, v{v[9]}, v{v[10]}, v{v[11]}
    v_max3_f32 v{M}, v{M}, v{M2}, v{Ls}
    v_max_f32 v{M}, v{M}, v{L2}""")
    for sw in ("v_permlane32_swap_b32", "v_permlane16_swap_b32"):
        a(f"""v_mov_b32 v{M2}, v{M}
        s_nop 1
        {sw} v{M}, v{M2}
        v_max_f32 v{M}, v{M}, v{M2}""")
    a(f"v_mul_f32 v{M}, s{sC}, v{M}")
    for j in range(6):
        a(f"v_pk_fma_f32 {vr(SA+2*j,2)}, {vr(SA+2*j,2)}, s[{sC}:{sC+1}], {vr(M,2)} op_sel_hi:[1,1,0] neg_lo:[0,0,1] neg_hi:[0,0,1]")
    vrd = v_reads()
    if OPT["vpos"] == 1:
        a("s_barrier")
        mix(a, [f"v_exp_f32 v{x}, v{x}" for x in v], vrd, per=3)
        a("s_nop 0")
    else:
        for x in v: a(f"v_exp_f32 v{x}, v{x}")
        a("s_nop 0")
    for j in range(6):
        a(f"v_cvt_pk_bf16_f32 v{PF+j}, v{SA+2*j}, v{SA+2*j+1}")
    if OPT["vpos"] == 2:
        a("s_barrier")
        for x in vrd: a(x)
    a("s_waitcnt lgkmcnt(0)")
    a(f"v_pk_add_f32 {vr(Ls,2)}, {vr(SA,2)}, {vr(SA+2,2)}")
    pv = [f"v_mfma_f32_16x16x32_bf16 {vr(OA+4*t,4)}, {vr(VF+t*6,4)}, {vr(PF,4)}, 0" for t in range(8)]
    pv += [f"v_mfma_f32_16x16x16_bf16 {vr(OA+4*t,4)}, {vr(VF+t*6+4,2)}, {vr(PF+4,2)}, {vr(OA+4*t,4)}" for t in range(8)]
    sm = [f"v_pk_add_f32 {vr(M,2)}, {vr(SA+4,2)}, {vr(SA+6,2)}",
          f"v_pk_add_f32 {vr(Ls,2)}, {vr(Ls,2)}, {vr(SA+8,2)}",
          f"v_pk_add_f32 {vr(M,2)}, {vr(M,2)}, {vr(SA+10,2)}",
          f"v_pk_add_f32 {vr(Ls,2)}, {vr(Ls,2)}, {vr(M,2)}",
          f"v_add_f32 v{Ls}, v{Ls}, v{L2}",
          f"v_mov_b32 v{L2}, v{Ls}", "s_nop 1",
          f"v_permlane32_swap_b32 v{Ls}, v{L2}",
          f"v_add_f32 v{Ls}, v{Ls}, v{L2}",
          f"v_mov_b32 v{L2}, v{Ls}", "s_nop 1",
          f"v_permlane16_swap_b32 v{Ls}, v{L2}",
          f"v_add_f32 v{Ls}, v{Ls}, v{L2}",
          f"v_rcp_f32 v{Ls}, v{Ls}"]
    def epi(T):
        d = QF + 4*T; r = []
        for u in range(2):
            s_ = OA + 4*(2*T+u)
            r.append(f"v_pk_mul_f32 {vr(s_,2)}, {vr(s_,2)}, {vr(Ls,2)} op_sel_hi:[1,0]")
            r.append(f"v_pk_mul_f32 {vr(s_+2,2)}, {vr(s_+2,2)}, {vr(Ls,2)} op_sel_hi:[1,0]")
        for u in range(2):
            s_ = OA + 4*(2*T+u)
            r.append(f"v_cvt_pk_bf16_f32 v{d+2*u}, v{s_}, v{s_+1}")
            r.append(f"v_cvt_pk_bf16_f32 v{d+2*u+1}, v{s_+2}, v{s_+3}")
        r.append(f"buffer_store_dwordx4 {vr(d,4)}, v{vOo}, s[{sS}:{sS+3}], 0 offen offset:{T*1024} sc1")
        return r
    if OPT["pvm"]:
        pa = pv[0:4] + pv[8:12]; pb = pv[4:8] + pv[12:16]
        mix(a, pa, sm, per=2)
        for m in pb[:4]: a(m)
        a("s_nop 1")
        mix(a, pb[4:], epi(0), per=2)
        for x in epi(1): a(x)
        for x in epi(2): a(x)
        for x in epi(3): a(x)
    else:
        mix(a, pv, sm, per=1)
        a("s_nop 0")
        for T in range(4):
            for x in epi(T): a(x)
    st()
    a("s_barrier")
    get_nonce(vNo)
    if OPT["wflag"]:
        a(f"""v_mov_b32 v{vNo}, s{sN}
        s_mov_b64 exec, 1
        s_waitcnt vmcnt(0)
        buffer_store_dword v{vNo}, off, s[{sS}:{sS+3}], s{sKV} sc1
        s_mov_b64 exec, -1""")
    else:
        a(f"""v_mov_b32 v{vT}, 1
        v_mov_b32 v{vNo}, s{sN}
        v_lshlrev_b32 v31, 2, v{vL}
        s_lshl_b32 s{sT0}, s2, {FS}
        s_add_u32 s{sT0}, s{sT0}, {F1_OFF}
        s_mov_b64 exec, 1
        s_waitcnt vmcnt(0)
        ds_add_rtn_u32 v{vT+1}, v{vQW}, v{vT}
        s_waitcnt lgkmcnt(0)
        v_readfirstlane_b32 s{sT1}, v{vT+1}
        s_mov_b32 exec_lo, {-1 if OPT['f1full'] else 1}
        s_cmp_lg_u32 s{sT1}, 5
        s_cbranch_scc1 L_noflag
        buffer_store_dword v{vNo}, v31, s[{sS}:{sS+3}], s{sT0} offen sc1
        L_noflag:
        s_mov_b64 exec, -1""")
    a(f"""
    s_cmp_ge_u32 s2, 240
    s_cbranch_scc1 L_done
    s_cmp_lt_u32 s{sWv}, 4
    s_cbranch_scc1 L_ph2
    s_barrier
    s_barrier
    s_endpgm
    L_ph2:""")
    st()
    vRA2, vB0, vB1, vB2, vPo, vF2, vPw, vOut, vFa, vFb = 12, 16, 17, 18, 25, 26, 27, 28, 19, 20
    sSig = 40
    AR = 32; BS = [160, 192]; AC = [224, 232]; ST = [240, 244, 248, 252]
    decode_tile()
    a(f"""s_lshl_b32 s{sT0}, s{sWv}, 6
    v_xor_b32 v{vRA2}, s{sT0}, v{vTR}
    v_xor_b32 v{vRA2+2}, 32, v{vRA2}
    v_add_u32 v{vRA2+1}, 0x10000, v{vRA2}
    v_add_u32 v{vRA2+3}, 0x10000, v{vRA2+2}
    v_add_u32 v22, 0x20000, v{vRA2}
    v_add_u32 v23, 0x20000, v{vRA2+2}
    v_lshlrev_b32 v{vB0}, 4, v{vL}
    v_add_u32 v{vB1}, 0x10000, v{vB0}
    v_add_u32 v{vB2}, 0x20000, v{vB0}
    s_add_u32 s{sSig}, s{sJ}, 1
    s_and_b32 s{sSig}, s{sSig}, 7
    s_lshl_b32 s{sSig}, s{sSig}, 15
    s_andn2_b32 s{sT0}, s2, 7
    s_lshl_b32 s{sT0}, s{sT0}, 3
    s_add_u32 s{sT0}, s{sT0}, s{sJ}
    s_lshl_b32 s{sT0}, s{sT0}, 12
    s_lshl_b32 s{sT1}, s{sWv}, 10
    s_add_u32 s{sT0}, s{sT0}, s{sT1}
    s_add_u32 s{sT0}, s{sT0}, {P_OFF}
    v_add_u32 v{vPw}, s{sT0}, v{vB0}
    s_lshl_b32 s{sT0}, s2, 15
    s_add_u32 s{sT0}, s{sT0}, s{sT1}
    s_add_u32 s{sT0}, s{sT0}, {P_OFF}
    v_add_u32 v{vPo}, s{sT0}, v{vB0}
    s_lshl_b32 s{sT0}, s2, 2
    s_add_u32 s{sT0}, s{sT0}, s{sWv}
    s_lshl_b32 s{sT0}, s{sT0}, {3+FS}
    s_add_u32 s{sT0}, s{sT0}, {F2_OFF}
    v_min_u32 v{vF2}, 6, v{vL}
    v_lshlrev_b32 v{vF2}, {FS}, v{vF2}
    v_add_u32 v{vF2}, s{sT0}, v{vF2}
    s_andn2_b32 s{sT0}, s2, 7
    s_lshl_b32 s{sT0}, s{sT0}, 2
    s_add_u32 s{sT0}, s{sT0}, s{sWv}
    s_lshl_b32 s{sT0}, s{sT0}, {3+FS}
    s_add_u32 s{sT0}, s{sT0}, {F2_OFF}
    s_add_u32 s{sT1}, s{sJ}, 1
    v_add_u32 v{vT}, s{sT1}, v{vL}
    v_and_b32 v{vT}, 7, v{vT}
    v_lshlrev_b32 v{vT}, 5, v{vT}
    v_add_u32 v{vT}, v{vT}, v{vL}
    v_lshlrev_b32 v{vT}, {FS}, v{vT}
    v_add_u32 v{vT}, s{sT0}, v{vT}
    v_mov_b32 v{vT+1}, 0x7ffffff0
    v_cmp_gt_u32 vcc, {OPT['fsplit']}, v{vL}
    s_nop 1
    v_cndmask_b32 v{vFa}, v{vT+1}, v{vT}, vcc
    v_cndmask_b32 v{vFb}, v{vT}, v{vT+1}, vcc
    v_cmp_gt_u32 vcc, 7, v{vL}
    s_nop 1
    v_cndmask_b32 v{vFb}, v{vT+1}, v{vFb}, vcc
    s_lshl_b32 s{sT0}, s{sTA}, 3
    s_add_u32 s{sT0}, s{sT0}, s{sJ}
    s_mul_i32 s{sT0}, s{sT0}, {16*1280}
    s_lshl_b32 s{sT1}, s{sTB}, 8
    s_add_u32 s{sT0}, s{sT0}, s{sT1}
    s_lshl_b32 s{sT1}, s{sWv}, 6
    s_add_u32 s{sT0}, s{sT0}, s{sT1}
    v_mul_u32_u24 v{vOut}, 1280, v{vC}
    v_lshl_add_u32 v{vOut}, v{vG}, 3, v{vOut}
    v_add_u32 v{vOut}, s{sT0}, v{vOut}
    s_barrier""")
    st()
    def areads(ts):
        r = []
        for t in ts:
            ad = WOBLK[t]*8192; hi = ad >> 16; lo = ad & 0xffff
            for tt in range(2):
                for q in range(2):
                    r.append(f"ds_read_b64_tr_b16 {vr(AR+(t*2+tt)*4+2*q,2)}, v{vRA2+2*tt+hi if hi < 2 else 22+tt} offset:{lo + q*4096}")
        return r
    for x in areads(range(OPT["wlate"])): a(x)
    a("s_waitcnt lgkmcnt(0)")
    a("s_barrier")
    page("E")
    def breads(hp):
        u, hf = hp >> 1, hp & 1
        ad = OREG(u) + hf*8192
        base = [vB0, vB1, vB2][ad >> 16]
        return [f"ds_read_b128 {vr(BS[hf]+4*k,4)}, v{base} offset:{(ad & 0xffff) + k*1024}" for k in range(8)]
    def mf2(hp):
        u, hf = hp >> 1, hp & 1
        r = []
        for k in range(8):
            for tt in range(2):
                d = AC[u & 1] + 4*tt
                cc = "0" if (hf == 0 and k == 0) else vr(d,4)
                r.append(f"v_mfma_f32_16x16x32_bf16 {vr(d,4)}, {vr(AR+((hf*8+k)*2+tt)*4,4)}, {vr(BS[hf]+4*k,4)}, {cc}")
        return r
    def pstore(u):
        s_ = AC[u & 1]; d = ST[u & 3]
        return [f"v_cvt_pk_bf16_f32 v{d+j}, v{s_+2*j}, v{s_+2*j+1}" for j in range(4)] + \
               [f"buffer_store_dwordx4 {vr(d,4)}, v{vPw}, s[{sS}:{sS+3}], s{sSig} offen sc1",
                f"s_add_u32 s{sSig}, s{sSig}, 0x8000", f"s_and_b32 s{sSig}, s{sSig}, 0x3ffff"]
    FSP = OPT["fsplit"]
    held = []
    for hp in range(17):
        u = hp >> 1
        side = breads(hp) if hp < 16 else []
        mf = mf2(hp - 1) if hp >= 1 else []
        nb = OPT["g2m"] if mf else 0
        for m in mf[:nb]: a(m)
        mf = mf[nb:]
        if hp < 16 and (hp & 1) == 0 and u in [int(c) for c in str(OPT['bset'])[1:]]:
            a("s_barrier")
            if u in (0, 4): st()
        extra = pstore(u - 1) if (hp & 1) == 1 and u >= 1 else []
        if extra and hp < OPT["sdel"]:
            held += extra[4:]; extra = extra[:4]
        elif hp >= OPT["sdel"] and held:
            extra = extra[:4] + held + extra[4:]; held = []
        if FSP and hp == OPT["fblk"]:
            issued = (hp - 1)//2 if hp & 1 else (hp - 2)//2
            extra = extra + [f"s_waitcnt vmcnt({issued - FSP})", f"buffer_store_dword v{vNo}, v{vFa}, s[{sS}:{sS+3}], 0 offen sc1"]
        if OPT["g0fast"] and hp == 0:
            for x in side: a(x)
            continue
        if OPT["g0fast"] and hp == 1:
            ex = side + areads(range(OPT["wlate"], 16))
            issued = 0
            for k in range(8):
                a(f"s_waitcnt lgkmcnt({min(15, 7 - k + issued)})")
                a(mf[2*k])
                for x in ex[3*k:3*k+2]: a(x); issued += 1
                a(mf[2*k+1])
                for x in ex[3*k+2:3*k+3]: a(x); issued += 1
            a("s_waitcnt lgkmcnt(0)")
            continue
        if hp == 1: extra = areads(range(OPT["wlate"], 16))
        rp = OPT["g2per"]
        if hp == 16 and OPT["fpos"] == 1:
            for x in extra: a(x)
            extra = []
        if hp == 16 and OPT["fpos"] == 2:
            for m in mf: a(m)
            mf = []
        mix(a, mf[:8//rp], side, per=rp)
        rest = mf[8//rp:]
        if hp == 16:
            fp = OPT["fpos"]
            if fp < 0:
                for x in extra: a(x)
                extra = []
        mix(a, rest, extra, per=max(1, -(-len(extra)//max(1, len(rest)))))
        a("s_waitcnt lgkmcnt(0)")
    st()
    sPend = 41
    HB = 32; SUM = AC[1]
    firstpoll = f"buffer_load_dword v{vT}, v{vF2}, s[{sS}:{sS+3}], 0 offen sc1"
    if OPT["p1mask"]:
        firstpoll = f"v_mov_b32 v{vT}, 0\ns_mov_b64 exec, {OPT['p1mask']}\n{firstpoll}\ns_mov_b64 exec, -1"
    pb = OPT["pollb4"]
    if pb: a(firstpoll)
    a(f"""s_waitcnt vmcnt({(1 if FSP and OPT['fblk'] >= 15 else 0) + pb})
    buffer_store_dword v{vNo}, v{vFb}, s[{sS}:{sS+3}], 0 offen sc1
    s_mov_b32 s{sPend}, 0x7f
    s_mov_b32 s{sCnt}, 0
    s_mov_b32 s42, 0xffff0000""")
    if OPT["psl"]: a(f"s_sleep {OPT['psl']}")
    if OPT["pg"]:
        if not pb: a(firstpoll)
        if pb: a("s_waitcnt vmcnt(1)\ns_branch L_poll2x")
        a("s_branch L_poll2w")
        page("F", fall=False)
    a(f"""L_poll2:
    buffer_load_dword v{vT}, v{vF2}, s[{sS}:{sS+3}], 0 offen sc1
    L_poll2w:
    s_add_u32 s{sCnt}, s{sCnt}, 1
    s_waitcnt vmcnt(0)
    L_poll2x:
    v_cmp_eq_u32 vcc, s{sN}, v{vT}
    s_nop 1
    s_and_b32 s{sT2}, vcc_lo, s{sPend}
    s_andn2_b32 s{sPend}, s{sPend}, s{sT2}""")
    for u in range(7):
        l = L()
        a(f"""s_bitcmp1_b32 s{sT2}, {u}
        s_cbranch_scc0 {l}
        s_add_u32 s{sT0}, s{sJ}, {7-u}
        s_and_b32 s{sT0}, s{sT0}, 7
        s_lshl_b32 s{sT0}, s{sT0}, 12
        buffer_load_dwordx4 {vr(HB+4*u,4)}, v{vPo}, s[{sS}:{sS+3}], s{sT0} offen sc1""")
        a(f"{l}:")
    a(f"""s_cmp_gt_u32 s{sCnt}, {OPT['spin']}
    s_cbranch_scc1 L_p2go
    s_cmp_lg_u32 s{sPend}, 0
    s_cbranch_scc1 L_poll2
    L_p2go:""")
    st()
    a("s_waitcnt vmcnt(0)")
    for u in range(7):
        for d in range(4):
            x = HB + 4*u + d
            a(f"v_lshlrev_b32 v{vT+2*(d&1)}, 16, v{x}")
            a(f"v_and_b32 v{vT+2*(d&1)+1}, s42, v{x}")
            a(f"v_pk_add_f32 {vr(SUM+2*d,2)}, {vr(SUM+2*d,2)}, {vr(vT+2*(d&1),2)}")
    for d in range(4):
        a(f"v_cvt_pk_bf16_f32 v{HB+d}, v{SUM+2*d}, v{SUM+2*d+1}")
    a(f"buffer_store_dwordx2 {vr(HB,2)}, v{vOut}, s[{sY}:{sY+3}], 0 offen {OPT['outf']}")
    a(f"buffer_store_dwordx2 {vr(HB+2,2)}, v{vOut}, s[{sY}:{sY+3}], 0 offen offset:32 {OPT['outf']}")
    a("L_done:")
    st.dump(0, sWv, 48, vT)
    a("L_end:")
    a("s_endpgm")
    a("L_codeend:")

def main(out):
    a = Asm(); gen(a)
    t = HDR
    t += f"; @launch grid=(256,1,1) block=(448,1,1) lds=163840\n"
    t += DESC
    t += '.amdgcn_target "amdgcn-amd-amdhsa--gfx950"\n.text\n'
    t += f".globl {KN}\n.p2align {12 if OPT['pg'] else 8}\n.p2align 8\n.type {KN},@function\n{KN}:\n" + a.text()
    t += '.section .rodata,"a"\n.p2align 6\n' + kd(KN, 256, 102 if OPT["stamp"] else 64)
    open(out, "w").write(t)

if __name__ == "__main__":
    for kv in sys.argv[2:]:
        k, v = kv.split("=")
        OPT[k] = int(v) if v.lstrip("-").isdigit() else v.replace("_", " ")
    main(sys.argv[1])
```
